```python
import torch

def _softmax(x, axis=-1):
    return torch.softmax(x, dim=axis)

def _gelu(x):
    return torch.nn.functional.gelu(x, approximate='tanh')

def _silu(x):
    return torch.nn.functional.silu(x)

def _sigmoid(x):
    return torch.sigmoid(x)

def _layernorm(x, axis=-1, eps=1e-05):
    m = x.mean(dim=axis, keepdim=True)
    v = x.var(dim=axis, keepdim=True, unbiased=False)
    return (x - m) / torch.sqrt(v + eps)

def _scatter_add(tgt, idx, src, axis=0):
    return tgt.clone().index_add_(axis, idx, src)

def _segment_sum(src, seg, n):
    out = torch.zeros((n,) + src.shape[1:], dtype=src.dtype)
    return out.index_add_(0, seg, src)

def _pad(x, pw):
    flat = tuple((v for pair in reversed(pw) for v in pair))
    return torch.nn.functional.pad(x, flat)
kernel_name = 'adaLN_cond__gqa_block_cached__geglu_ffn__decode'

def setup_inputs():

    _w = lambda a: (lambda t: t.to(torch.bfloat16) if t.is_floating_point() else t)(torch.as_tensor(a))

    def _A_setup():
        B, Sq, D = (1, 1, 576)
        Hq, Hkv, Sk, Dh = (32, 16, 32768, 128)
        assert Hq % Hkv == 0, (Hq, Hkv)
        return {'x': _w((lambda *s: torch.randn(*s, dtype=torch.bfloat16) * 0.1)(B, Sq, D)), 'k_cache': _w((lambda *s: torch.randn(*s, dtype=torch.bfloat16) * 0.8)(B, Hkv, Sk, Dh)), 'v_cache': _w((lambda *s: torch.randn(*s, dtype=torch.bfloat16) * 1.6)(B, Hkv, Sk, Dh)), 'wq': _w((lambda *s: torch.randn(*s, dtype=torch.bfloat16) * 0.8)(D, Hq * Dh) * D ** (-0.5)), 'wo': _w((lambda *s: torch.randn(*s, dtype=torch.bfloat16) * 1.6)(Hq * Dh, D) * (Hq * Dh) ** (-0.5))}
    _A_in = _A_setup()

    def _B_setup():
        B, S, D, F = (1, 1, 576, 4608)
        return {'x': _w((lambda *s: torch.randn(*s, dtype=torch.bfloat16) * 0.1)(B, S, D)), 'w_gate': _w((lambda *s: torch.randn(*s, dtype=torch.bfloat16) * 0.4)(D, F)), 'w_up': _w((lambda *s: torch.randn(*s, dtype=torch.bfloat16) * 0.4)(D, F)), 'w_down': _w((lambda *s: torch.randn(*s, dtype=torch.bfloat16) * 0.4)(F, D))}
    _B_in = _B_setup()
    return {'A_x': _A_in['x'], 'A_k_cache': _A_in['k_cache'], 'A_v_cache': _A_in['v_cache'], 'A_wq': _A_in['wq'], 'A_wo': _A_in['wo'], 'B_x': _B_in['x'], 'B_w_gate': _B_in['w_gate'], 'B_w_up': _B_in['w_up'], 'B_w_down': _B_in['w_down'], 'c': _w((lambda *s: torch.randn(*s, dtype=torch.bfloat16) * 0.4)(1, 576) * 8.0), 'w_mod': _w((lambda *s: torch.randn(*s, dtype=torch.bfloat16) * 0.4)(576, 6 * 576) * 576 ** (-0.5) * 8.0)}

def reference(A_x, A_k_cache, A_v_cache, A_wq, A_wo, B_x, B_w_gate, B_w_up, B_w_down, c, w_mod):

    def _A_ref(x, k_cache, v_cache, wq, wo):
        B, Sq, D = x.shape
        Hq, Dh = (32, 128)
        Hkv = k_cache.shape[1]
        rep = Hq // Hkv
        q = (lambda x, *d: x.permute(*d))((x @ wq).reshape(B, Sq, Hq, Dh), 0, 2, 1, 3)
        k = (lambda x, n, axis: torch.repeat_interleave(x, n, dim=axis))(k_cache, rep, axis=1)
        v = (lambda x, n, axis: torch.repeat_interleave(x, n, dim=axis))(v_cache, rep, axis=1)
        scores = torch.einsum('bhqd,bhkd->bhqk', q, k) * Dh ** (-0.5)
        p = _softmax(scores, axis=-1)
        o = torch.einsum('bhqk,bhkd->bhqd', p, v)
        return (lambda x, *d: x.permute(*d))(o, 0, 2, 1, 3).reshape(B, Sq, Hq * Dh) @ wo

    def _B_ref(x, w_gate, w_up, w_down):
        return _gelu(x @ w_gate) * (x @ w_up) @ w_down
    x = A_x
    mod = (_silu(c) @ w_mod).reshape(c.shape[0], 6, 1, -1)
    sa, ca, ga, sb, cb, gb = (mod[:, 0].clone(), mod[:, 1].clone(), mod[:, 2].clone(), mod[:, 3].clone(), mod[:, 4].clone(), mod[:, 5].clone())
    h = _layernorm(x, axis=-1) * (1 + ca) + sa
    x = x + ga * _A_ref(h, A_k_cache, A_v_cache, A_wq, A_wo)
    h = _layernorm(x, axis=-1) * (1 + cb) + sb
    x = x + gb * _B_ref(h, B_w_gate, B_w_up, B_w_down)
    return x
```

```python
import re

KN = "adaLN_cond__gqa_block_cached__geglu_ffn__decode"

HEADER_COMMENT = """; Kernarg layout for this problem (112 bytes, ptrs only, base s[0:1]):
;   offset  16: d_in[2] A_v_cache  shape=(1, 16, 32768, 128) dtype=bfloat16
"""

_REG = re.compile(r"^(-|\|)?(abs\()?([vsa])(\d+|\[(\d+):(\d+)\])\)?\|?$")

def regs_of(tok):
    tok = tok.strip()
    if tok in ("vcc", "vcc_lo", "vcc_hi"): return {("vcc", 0)}
    if tok in ("exec", "exec_lo", "exec_hi"): return {("exec", 0)}
    if tok == "m0": return {("m0", 0)}
    m = _REG.match(tok)
    if not m: return set()
    k = m.group(3)
    if m.group(5) is not None:
        return {(k, i) for i in range(int(m.group(5)), int(m.group(6)) + 1)}
    return {(k, int(m.group(4)))}

TRANS = ("v_exp_f32", "v_log_f32", "v_rcp_f32", "v_rsq_f32", "v_sqrt_f32", "v_sin_f32", "v_cos_f32", "v_rcp_iflag_f32")

def mfma_passes(mn):
    if "32x32x16" in mn or "32x32x8" in mn: return 8
    if "16x16x32" in mn or "16x16x16" in mn: return 4
    if "4x4x4" in mn: return 2
    raise ValueError(mn)

class Ins:
    __slots__ = ("mn", "ops", "mods", "kind", "wr", "rd", "dpp_rd", "lanesel", "srcc", "ab", "text", "wide_store")

def parse(line):
    t = line.split(";")[0].strip()
    mn, _, rest = t.partition(" ")
    rest = rest.strip()
    ops = []; cur = ""; depth = 0
    for ch in rest:
        if ch == "[": depth += 1
        if ch == "]": depth -= 1
        if ch == "," and depth == 0:
            ops.append(cur.strip()); cur = ""
        else:
            cur += ch
    if cur.strip(): ops.append(cur.strip())
    mods = ""
    if ops:
        last = ops[-1]
        parts = last.split(None, 1)
        if len(parts) == 2 and not last.startswith("hwreg") and not last.startswith("vmcnt") and not last.startswith("lgkmcnt"):
            ops[-1] = parts[0]; mods = parts[1]
    i = Ins(); i.mn = mn; i.ops = ops; i.mods = mods; i.text = t
    i.wr = set(); i.rd = set(); i.dpp_rd = set(); i.lanesel = set(); i.srcc = set(); i.ab = set(); i.wide_store = set()
    R = regs_of
    base = mn.replace("_e32", "").replace("_e64", "").replace("_dpp", "")
    if mn.startswith("v_mfma"):
        i.kind = "mfma"
        i.wr = R(ops[0]); i.ab = R(ops[1]) | R(ops[2]); i.srcc = R(ops[3]); i.rd = i.ab | i.srcc
    elif mn.startswith("v_"):
        i.kind = "valu"
        if base.startswith("v_cmp"):
            i.wr = R(ops[0]);
            for o in ops[1:]: i.rd |= R(o)
            if base.startswith("v_cmpx"): i.wr |= {("exec", 0)}
        elif base in ("v_readlane_b32", "v_readfirstlane_b32"):
            i.wr = R(ops[0]); i.rd = R(ops[1])
            if base == "v_readlane_b32": i.lanesel = R(ops[2])
        elif base == "v_writelane_b32":
            i.wr = R(ops[0]); i.rd = R(ops[1]) | R(ops[0]); i.lanesel = R(ops[2])
        elif base.startswith("v_permlane"):
            i.wr = R(ops[0]) | R(ops[1]); i.rd = set(i.wr)
        elif base in ("v_add_co_u32", "v_sub_co_u32", "v_addc_co_u32", "v_subb_co_u32"):
            i.wr = R(ops[0]) | R(ops[1])
            for o in ops[2:]: i.rd |= R(o)
        else:
            i.wr = R(ops[0])
            for o in ops[1:]: i.rd |= R(o)
            if base in ("v_fmac_f32", "v_dot2c_f32_bf16", "v_mac_f32", "v_pk_fmac_f16"): i.rd |= i.wr
            if base == "v_cndmask_b32" and len(ops) == 3: i.rd |= {("vcc", 0)}
        if "_dpp" in mn or "row_" in mods or "quad_perm" in mods:
            i.dpp_rd = R(ops[1])
            i.rd |= i.wr
    elif mn.startswith("buffer_") or mn.startswith("global_"):
        i.kind = "vmem"
        if mn in ("buffer_wbl2", "buffer_inv"):
            pass
        elif "lds" in mods.split() or mn.startswith("global_load_lds"):
            for o in ops: i.rd |= R(o)
            i.rd |= {("m0", 0)}
        elif "load" in mn:
            i.wr = R(ops[0])
            for o in ops[1:]: i.rd |= R(o)
        elif "store" in mn:
            for o in ops: i.rd |= R(o)
            data = ops[0] if mn.startswith("buffer_") else ops[1]
            if "x3" in mn or "x4" in mn: i.wide_store = R(data)
        elif "atomic" in mn:
            if "sc0" in mods.split():
                i.wr = R(ops[0])
            for o in ops: i.rd |= R(o)
    elif mn.startswith("ds_"):
        i.kind = "ds"
        if mn.startswith("ds_read") or "rtn" in mn or mn.startswith("ds_bpermute") or mn.startswith("ds_permute") or mn.startswith("ds_swizzle"):
            i.wr = R(ops[0])
            for o in ops[1:]: i.rd |= R(o)
        else:
            for o in ops: i.rd |= R(o)
    elif mn.startswith("s_"):
        i.kind = "salu"
        if mn.startswith("s_load") or mn.startswith("s_memrealtime") or mn.startswith("s_memtime"):
            i.kind = "smem"; i.wr = R(ops[0])
            for o in ops[1:]: i.rd |= R(o)
        elif mn.startswith("s_cmp") or mn.startswith("s_bitcmp") or mn.startswith("s_cbranch") or mn in ("s_branch", "s_waitcnt", "s_nop", "s_barrier", "s_endpgm", "s_sleep", "s_setprio"):
            for o in ops: i.rd |= R(o)
        else:
            if ops:
                i.wr = R(ops[0])
                for o in ops[1:]: i.rd |= R(o)
            if "saveexec" in mn: i.wr |= {("exec", 0)}
    else:
        raise ValueError("unknown instruction: " + line)
    return i

class Asm:
    def __init__(self, check=True):
        self.lines = []
        self.hist = []
        self.clock = 0
        self.nlabel = 0
        self.nops_inserted = 0
    def _need(self, i):
        need = 0
        for (p, pc) in reversed(self.hist[-40:]):
            def req(ws):
                nonlocal need
                need = max(need, pc + 1 + ws)
            vw = {r for r in p.wr if r[0] in "va"}
            sw = {r for r in p.wr if r[0] in ("s", "vcc")}
            if p.kind == "valu":
                if i.kind == "mfma" and (vw & i.rd): req(2)
                if i.kind == "valu":
                    if vw & i.dpp_rd: req(2)
                    if i.mn.startswith("v_readlane") or i.mn.startswith("v_readfirstlane"):
                        if vw & i.rd: req(1)
                    if i.mn.startswith("v_permlane") and (vw & i.rd): req(2)
                    if sw & i.rd: req(2)
                    if sw & i.lanesel: req(4)
                    pb = p.mn.replace("_e32", "").replace("_e64", "")
                    if pb in TRANS and (vw & i.rd): req(1)
                    if ("exec", 0) in p.wr: req(5)
                if i.kind == "vmem" and (sw & i.rd): req(5)
                if i.kind == "mfma" and ("exec", 0) in p.wr: req(4)
            if p.kind == "valu" and p.mn.startswith("v_dot"):
                if i.kind in ("valu", "mfma", "vmem", "ds") and (vw & (i.rd | i.wr)):
                    same = i.mn.split("_e32")[0].split("_e64")[0] == p.mn.split("_e32")[0].split("_e64")[0]
                    if same:
                        ab = set()
                        for o in i.ops[1:3]: ab |= regs_of(o)
                        if vw & ab: req(3)
                    else:
                        req(3)
            if p.kind == "mfma":
                n = mfma_passes(p.mn)
                t_rw = {2: 5, 4: 8, 8: 12, 16: 20}[n]
                t_c = {2: 4, 4: 6, 8: 10, 16: 18}[n]
                t_war = {2: 1, 4: 3, 8: 7, 16: 15}[n]
                if i.kind in ("valu", "vmem", "ds"):
                    if p.wr & (i.rd | i.wr): req(t_rw)
                    if i.kind == "valu" and (p.srcc & i.wr): req(t_war)
                if i.kind == "mfma":
                    if p.wr & i.ab: req(t_rw)
                    if p.wr & i.srcc:
                        if not (p.wr == i.srcc and mfma_passes(i.mn) == n and n >= 4): req(t_c if p.wr != i.srcc else 2)
            if p.kind == "vmem" and p.wide_store:
                if i.kind == "valu" and (p.wide_store & i.wr): req(2)
                elif (p.wide_store & i.wr): req(1)
            if p.kind == "salu" and ("m0", 0) in p.wr:
                if ("m0", 0) in i.rd or (i.kind == "vmem" and "lds" in i.mods.split()): req(1)
        return need
    def _nop(self, n):
        while n > 0:
            k = min(n, 16)
            self.lines.append(f"    s_nop {k-1}")
            self.clock += k
            self.nops_inserted += k
            n -= k
    def __call__(self, s):
        for l in s.strip("\n").split("\n"):
            l = l.strip()
            if not l or l.startswith(";"):
                if l: self.lines.append("    " + l)
                continue
            if l.endswith(":"):
                self.label(l[:-1]); continue
            if l.startswith("."):
                self.lines.append(l); continue
            i = parse(l)
            mo = re.search(r"offset:(-?\d+)", i.mods)
            if mo:
                ov = int(mo.group(1))
                if i.mn.startswith("buffer_"): assert 0 <= ov <= 4095, l
                elif i.mn.startswith("global_"): assert -4096 <= ov <= 4095, l
                elif i.mn.startswith("ds_"): assert 0 <= ov <= 65535, l
            if i.mn == "s_nop":
                self.lines.append("    " + l); self.clock += int(i.ops[0], 0) + 1
                continue
            need = self._need(i)
            if need > self.clock: self._nop(need - self.clock)
            self.lines.append("    " + l)
            self.hist.append((i, self.clock))
            self.clock += 1
    def fence(self):
        need = 0
        for (p, pc) in self.hist[-40:]:
            w = 0
            if p.kind == "valu": w = 5 if any(r[0] in ("s", "vcc", "exec") for r in p.wr) else 2
            if p.kind == "mfma": w = {2: 5, 4: 8, 8: 12, 16: 20}[mfma_passes(p.mn)]
            if p.kind == "vmem" and p.wide_store: w = 2
            if p.kind == "salu" and ("m0", 0) in p.wr: w = 1
            need = max(need, pc + 1 + w)
        if need > self.clock: self._nop(need - self.clock)
    def label(self, name, fence=True):
        if fence: self.fence()
        self.lines.append(name + ":")
    def branch(self, ins):
        self.fence()
        self(ins)
    def newlabel(self, p="L"):
        self.nlabel += 1
        return f"{p}_{self.nlabel}"
    def text(self):
        return "\n".join(self.lines) + "\n"

def wrap_single(body, grid, block, lds, nvgpr, nsgpr=102, accum=None, extra_header=""):
    if accum is None:
        accum = (min(nvgpr, 256) + 3) // 4 * 4
    k = KN + "_kernel"
    return (HEADER_COMMENT + extra_header + f"; @launch grid=({grid},1,1) block=({block},1,1) lds={lds}\n" +
f""".amdgcn_target "amdgcn-amd-amdhsa--gfx950"
.text
.globl {k}
.p2align 8
.type {k},@function
{k}:
""" + body + f"""
.section .rodata,"a"
.p2align 6
.amdhsa_kernel {k}
  .amdhsa_next_free_vgpr {nvgpr}
  .amdhsa_next_free_sgpr {nsgpr}
  .amdhsa_accum_offset {accum}
  .amdhsa_group_segment_fixed_size 0
  .amdhsa_kernarg_size 112
  .amdhsa_user_sgpr_count 2
  .amdhsa_user_sgpr_kernarg_segment_ptr 1
  .amdhsa_system_sgpr_workgroup_id_x 1
.end_amdhsa_kernel
""")
```

```python
import sys, argparse
from asmlib import *

WS_EPOCH = 0x0
WS_P1 = 0x1000
WS_P2 = 0x5000
WS_HELLO = 0x9000
WS_T1O = 0x10000
WS_T1ML = 0x50000
WS_T2 = 0x52000
WS_T3 = 0x60000
WS_SIZE = 0x200000
WS_STAMP = 0x10000000

Q_LDS = 0x0000
H_LDS = 0x0200
O_LDS = 0x0800
ST_LDS = 0x0A00
ACT_LDS = 0x0A40
ML_LDS = 0x0A80
X_LDS = 0x0C00
GA_LDS = X_LDS + 3072
CB_LDS = GA_LDS + 3072
SB_LDS = CB_LDS + 3072
GB_LDS = SB_LDS + 3072
X1_LDS = GB_LDS + 3072
PART_LDS = X1_LDS + 3072
WO_LDS = PART_LDS + 8192
WO_PITCH = 528
GU_LDS = WO_LDS + 36 * WO_PITCH + 64
GU_LDS = (GU_LDS + 255) // 256 * 256
GU_PITCH = 1168
LDS_SIZE = GU_LDS + 36 * GU_PITCH + 256
LDS_SIZE = (LDS_SIZE + 255) // 256 * 256

LOG2E = 0x3FB8AA3B
SCALE = 0x3DB504F3
SPIN = 200000

S_K, S_V, S_WS, S_X, S_C, S_WMOD, S_WQ, S_WO, S_WG, S_WU, S_WD, S_OUT = [32 + 4 * i for i in range(12)]
sTAG, sWAVE, sOFF, sCNT = 80, 81, 82, 83
sSCALE, sLOG2E, sG, sJ, sI32, sI18, sCJ = 84, 86, 87, 88, 89, 90, 91
V_ST = 62
sHI = 3


def srd(s):
    return f"s[{s}:{s+3}]"

def vr(b, n):
    return f"v[{b}:{b+n-1}]"


class Gen:
    def __init__(self, R=6, pace=4, pace_pro=4, stamps=False, nv=19, stop=None, dbg=False):
        self.dbg = dbg
        self.a = Asm()
        self.R = R; self.pace = pace; self.pace_pro = pace_pro
        self.stamps = stamps
        self.NV = nv
        self.stop = stop

    def mk_srd(self, s, plo, size, add=None):
        a = self.a
        if add is None:
            a(f"s_mov_b32 s{s}, s{plo}")
            a(f"s_and_b32 s{s+1}, s{plo+1}, 0xffff")
        else:
            a(f"s_add_u32 s{s}, s{plo}, {add}")
            a(f"s_addc_u32 s{s+1}, s{plo+1}, 0")
            a(f"s_and_b32 s{s+1}, s{s+1}, 0xffff")
        a(f"s_mov_b32 s{s+2}, {size}")
        a(f"s_mov_b32 s{s+3}, 0x20000")

    def rnd(self, d, s):
        self.a(f"v_cvt_pk_bf16_f32 v{d}, 0, v{s}")

    def stamp(self, k):
        if not self.stamps: return
        a = self.a
        a("s_memrealtime s[100:101]")
        a("s_waitcnt lgkmcnt(0)")
        a(f"v_writelane_b32 v{V_ST}, s100, {k}")

    def stamp_flush(self):
        if not self.stamps: return
        a = self.a
        a(f"""
        s_mov_b64 exec, 0xff
        s_lshl_b32 s92, s2, 3
        s_add_u32 s92, s92, s{sWAVE}
        s_lshl_b32 s92, s92, 6
        s_add_u32 s92, s92, {WS_STAMP}
        s_add_u32 s92, s28, s92
        s_addc_u32 s93, s29, 0
        v_lshlrev_b32 v60, 3, v0
        v_mov_b32 v{V_ST+1}, 0
        global_store_dwordx2 v60, v[{V_ST}:{V_ST+1}], s[92:93]
        s_mov_b64 exec, -1
        """)

    def row_allreduce(self, op, regs):
        a = self.a
        for sh in (8, 4, 2, 1):
            for r in regs:
                a(f"v_{op}_f32_dpp v{r}, v{r}, v{r} row_ror:{sh} row_mask:0xf bank_mask:0xf")

    def cross_rows(self, op, regs, tmps):
        a = self.a
        for sw in ("16", "32"):
            for r, t in zip(regs, tmps):
                a(f"v_mov_b32 v{t}, v{r}")
            for r, t in zip(regs, tmps):
                a(f"v_permlane{sw}_swap_b32 v{r}, v{t}")
            for r, t in zip(regs, tmps):
                a(f"v_{op}_f32 v{r}, v{r}, v{t}")

    def poll_begin(self, name):
        a = self.a
        a(f"s_mov_b32 s{sCNT}, {SPIN}")
        a.label(name)

    def poll_end(self, name, cond_bad="vccnz"):
        a = self.a
        ok = name + "_ok"
        a(f"s_cbranch_vccz {ok}")
        a(f"s_sub_u32 s{sCNT}, s{sCNT}, 1")
        a(f"s_cmp_lg_u32 s{sCNT}, 0")
        a.branch(f"s_cbranch_scc1 {name}")
        a.label(ok)

    def prologue(self):
        a = self.a
        a(f"""
        s_cmp_ge_u32 s2, 256
        s_cbranch_scc1 L_end
        s_load_dwordx16 s[4:19], s[0:1], 0
        s_load_dwordx8 s[20:27], s[0:1], 64
        s_load_dwordx2 s[28:29], s[0:1], 104
        v_lshrrev_b32 v1, 6, v0
        v_and_b32 v0, 63, v0
        v_readfirstlane_b32 s{sWAVE}, v1
        s_lshr_b32 s{sG}, s2, 4
        s_and_b32 s{sJ}, s2, 15
        s_and_b32 s30, s2, 7
        s_lshr_b32 s{sHI}, s2, 3
        s_lshl_b32 s{sI32}, s30, 5
        s_add_u32 s{sI32}, s{sI32}, s{sHI}
        s_mul_i32 s{sI18}, s30, 18
        s_add_u32 s{sI18}, s{sI18}, s{sHI}
        s_and_b32 s{sCJ}, s{sJ}, 7
        s_lshl_b32 s{sCJ}, s{sCJ}, 1
        s_lshr_b32 s30, s{sJ}, 3
        s_add_u32 s{sCJ}, s{sCJ}, s30
        s_mov_b32 s{sLOG2E}, {LOG2E:#x}
        s_cmp_eq_u32 s{sWAVE}, 7
        s_cbranch_scc1 L_service
        """)
        if self.stamps:
            a(f"v_mov_b32 v{V_ST}, 0")

    vK, vV = 1, 2
    vMK = 4
    vL = 8
    vM = 10
    vA = 11 + 1
    vS = 16
    vO = 20
    vB = 24
    vP = 32
    vT = 36
    vQ = 44
    RING = 64

    def kreg(self, slot): return self.RING + 32 * slot
    def vreg(self, slot): return self.RING + 32 * slot + 16

    def issue(self, slot):
        a = self.a
        k = self.kreg(slot); v = self.vreg(slot)
        for i in range(4):
            a(f"buffer_load_dwordx4 {vr(k+4*i,4)}, v{self.vK}, {srd(S_K)}, s{sOFF} offen offset:{64*i} nt")
        for i in range(4):
            a(f"buffer_load_dwordx4 {vr(v+4*i,4)}, v{self.vV}, {srd(S_V)}, s{sOFF} offen offset:{1024*i} nt")
        a(f"s_add_u32 s{sOFF}, s{sOFF}, {7*4096}")

    def block(self, slot, wk, wv, do_issue):
        a = self.a
        k = self.kreg(slot); v = self.vreg(slot)
        S = self.vS; O = self.vO; P = self.vP; T = self.vT; M = self.vM; A = self.vA; L = self.vL
        a(f"s_waitcnt vmcnt({wk})")
        a(f"v_mfma_f32_16x16x32_bf16 {vr(S,4)}, {vr(k,4)}, {vr(self.vQ,4)}, 0")
        for i in range(1, 4):
            a(f"v_mfma_f32_16x16x32_bf16 {vr(S,4)}, {vr(k+4*i,4)}, {vr(self.vQ+4*i,4)}, {vr(S,4)}")
        for r in range(4):
            self.rnd(S + r, S + r)
        a(f"v_pk_mul_f32 {vr(S,2)}, {vr(S,2)}, s[{sSCALE}:{sSCALE+1}]")
        a(f"v_pk_mul_f32 {vr(S+2,2)}, {vr(S+2,2)}, s[{sSCALE}:{sSCALE+1}]")
        for r in range(4):
            self.rnd(S + r, S + r)
        a(f"v_max3_f32 v{T}, v{S}, v{S+1}, v{S+2}")
        a(f"v_max_f32 v{T}, v{T}, v{S+3}")
        self.cross_rows("max", [T], [T + 1])
        a(f"v_mul_f32 v{T}, s{sLOG2E}, v{T}")
        a(f"v_max_f32 v{T}, v{M}, v{T}")
        a(f"v_sub_f32 v{A}, v{M}, v{T}")
        a(f"v_exp_f32 v{A}, v{A}")
        a(f"v_mov_b32 v{M}, v{T}")
        for r in range(4):
            a(f"v_fma_f32 v{P+r}, v{S+r}, s{sLOG2E}, -v{T}")
        for r in range(4):
            a(f"v_exp_f32 v{P+r}, v{P+r}")
        a(f"v_pk_mul_f32 {vr(L,2)}, {vr(L,2)}, {vr(A,2)} op_sel_hi:[1,0]")
        a(f"v_pk_mul_f32 {vr(O,2)}, {vr(O,2)}, {vr(A,2)} op_sel_hi:[1,0]")
        a(f"v_pk_mul_f32 {vr(O+2,2)}, {vr(O+2,2)}, {vr(A,2)} op_sel_hi:[1,0]")
        a(f"v_pk_add_f32 {vr(L,2)}, {vr(L,2)}, {vr(P,2)}")
        a(f"v_pk_add_f32 {vr(L,2)}, {vr(L,2)}, {vr(P+2,2)}")
        for r in range(4):
            Bs = self.vB + 4 * (r & 1)
            a(f"v_cvt_pk_bf16_f32 v{T+2+r}, v{P+r}, v{P+r}")
            for d in range(4):
                a(f"v_and_b32 v{Bs+d}, v{T+2+r}, v{self.vMK+d}")
            if r == 0:
                a(f"s_waitcnt vmcnt({wv})")
            a(f"v_mfma_f32_16x16x32_bf16 {vr(O,4)}, {vr(v+4*r,4)}, {vr(Bs,4)}, {vr(O,4)}")
        if do_issue:
            a(f"s_waitcnt vmcnt({self.pace})")
            self.issue(slot)

    def streaming(self):
        a = self.a; R = self.R; NV = self.NV
        a(f"""
        v_and_b32 v3, 3, v0
        v_lshlrev_b32 v{self.vK}, 10, v3
        v_bfe_u32 v3, v0, 2, 2
        v_lshl_add_u32 v{self.vK}, v3, 8, v{self.vK}
        v_lshrrev_b32 v3, 4, v0
        v_lshl_add_u32 v{self.vK}, v3, 4, v{self.vK}
        v_lshlrev_b32 v{self.vV}, 4, v0
        s_lshl_b32 s30, s2, 19
        s_lshl_b32 s{sOFF}, s{sWAVE}, 12
        s_waitcnt lgkmcnt(0)
        """)
        self.mk_srd(S_K, 6, 0x80000, add="s30")
        self.mk_srd(S_V, 8, 0x80000, add="s30")
        a(f"s_cmp_lt_u32 s{sWAVE}, 2")
        a("s_cbranch_scc0 L_pro1")
        self.issue(0)
        a.label("L_pro1")
        self.issue(1)
        self.stamp(0)
        a(f"""
        s_mov_b32 s{sSCALE}, {SCALE:#x}
        s_mov_b32 s{sSCALE+1}, {SCALE:#x}
        v_and_b32 v3, 1, v0
        v_mov_b32 v{self.vT}, 0xffff
        v_mov_b32 v{self.vT+1}, 0xffff0000
        v_cmp_eq_u32 vcc, 1, v3
        v_cndmask_b32 v{self.vT}, v{self.vT}, v{self.vT+1}, vcc
        v_bfe_u32 v3, v0, 1, 2
        """)
        for d in range(4):
            a(f"v_cmp_eq_u32 vcc, {d}, v3")
            a(f"v_cndmask_b32 v{self.vMK+d}, 0, v{self.vT}, vcc")
        a(f"""
        v_mov_b32 v{self.vL}, 0
        v_mov_b32 v{self.vL+1}, 0
        v_mov_b32 v{self.vM}, 0xff7fffff
        v_mov_b32 v{self.vA+1}, 0
        """)
        for r in range(4):
            a(f"v_mov_b32 v{self.vO+r}, 0")
        self.mk_srd(S_WS, 28, WS_SIZE)
        self.mk_srd(S_WD, 20, 4608 * 576 * 2)
        for s in range(2, R):
            a(f"s_waitcnt vmcnt({self.pace_pro})")
            self.issue(s)
        a(f"s_cmp_lt_u32 s{sWAVE}, 2")
        a("s_cbranch_scc1 L_pro2")
        a(f"s_waitcnt vmcnt({self.pace_pro})")
        self.issue(0)
        a.label("L_pro2")
        self.stamp(1)
        a(f"""
        v_bfe_u32 v3, v0, 3, 1
        v_lshlrev_b32 v3, 8, v3
        v_lshrrev_b32 v{self.vT}, 4, v0
        v_lshl_add_u32 v3, v{self.vT}, 4, v3
        s_barrier
        """)
        for i in range(4):
            a(f"ds_read_b128 {vr(self.vQ+4*i,4)}, v3 offset:{Q_LDS+64*i}")
        a(f"s_mov_b32 s{sCNT}, 0")
        a("s_waitcnt lgkmcnt(0)")
        self.stamp(2)
        a(f"s_cmp_lt_u32 s{sWAVE}, 2")
        a.branch("s_cbranch_scc0 L_slot1")
        niss = NV - R
        exit_slot = (niss - 1) % R
        exit_pass = (niss - 1) // R
        a.label("L_loop")
        for s in range(R):
            if s == 1: a.label("L_slot1")
            self.block(s, 4 + 8 * (R - 1), 8 * (R - 1), True)
            if s == exit_slot:
                a(f"s_cmp_eq_u32 s{sCNT}, {exit_pass}")
                a.branch("s_cbranch_scc1 L_epi")
        a(f"s_add_u32 s{sCNT}, s{sCNT}, 1")
        a.branch("s_branch L_loop")
        a.label("L_epi")
        for e in range(R):
            s = (exit_slot + 1 + e) % R
            rem = R - 1 - e
            self.block(s, 4 + 8 * rem, 8 * rem, False)
        self.stamp(3)
        L = self.vL; T = self.vT
        a(f"v_add_f32 v{L}, v{L}, v{L+1}")
        self.cross_rows("add", [L], [T])
        a(f"""
        v_bfe_u32 v3, v0, 3, 1
        v_lshlrev_b32 v3, 9, v3
        v_lshrrev_b32 v{T+1}, 4, v0
        v_lshl_add_u32 v3, v{T+1}, 7, v3
        v_and_b32 v{T+1}, 7, v0
        v_lshl_add_u32 v3, v{T+1}, 2, v3
        s_lshl_b32 s30, s{sWAVE}, 10
        v_add_u32 v3, s30, v3
        """)
        for r in range(4):
            a(f"ds_write_b32 v3, v{self.vO+r} offset:{PART_LDS+32*r}")
        a(f"""
        v_bfe_u32 v{T+1}, v0, 3, 1
        v_lshlrev_b32 v{T+1}, 5, v{T+1}
        s_lshl_b32 s30, s{sWAVE}, 2
        v_add_u32 v{T+1}, s30, v{T+1}
        s_mov_b64 exec, 0x101
        ds_write_b32 v{T+1}, v{self.vM} offset:{ML_LDS}
        ds_write_b32 v{T+1}, v{L} offset:{ML_LDS+64}
        s_mov_b64 exec, -1
        """)

    def tail_gather(self):
        a = self.a
        a(f"""
        s_lshl_b32 s30, s{sWAVE}, 6
        v_add_u32 v1, s30, v0
        v_lshlrev_b32 v2, 2, v1
        v_lshlrev_b32 v1, 1, v1
        v_and_b32 v3, 15, v0
        v_lshlrev_b32 v3, 4, v3
        s_lshr_b32 s30, s{sWAVE}, 1
        s_lshl_b32 s30, s30, 3
        v_add_u32 v3, s30, v3
        s_lshl_b32 s30, s{sG}, 14
        s_add_u32 s92, s30, {WS_T1O}
        s_add_u32 s93, s92, 4096
        s_add_u32 s94, s92, 8192
        s_add_u32 s95, s92, 12288
        s_lshl_b32 s30, s{sG}, 8
        s_add_u32 s96, s30, {WS_T1ML}
        """)
        a(f"""
        s_lshl_b32 s30, s{sWAVE}, 6
        v_add_u32 v4, s30, v0
        v_lshlrev_b32 v5, 4, v4
        v_lshlrev_b32 v6, 3, v4
        v_cmp_gt_u32 vcc, 144, v4
        v_mov_b32 v7, 0x7ffffff0
        v_cndmask_b32 v7, v7, v5, vcc
        s_waitcnt lgkmcnt(0)
        s_barrier
        """)
        self.stamp(4)
        CX, CGA, CCB, CSB = 100, 104, 108, 112
        a(f"s_cmp_lt_u32 s{sWAVE}, 3")
        a("s_cbranch_scc0 L_tg_noconst")
        for reg, off in ((CX, X_LDS), (CGA, GA_LDS), (CCB, CB_LDS), (CSB, SB_LDS)):
            a(f"ds_read_b128 {vr(reg,4)}, v5 offset:{off}")
        a.label("L_tg_noconst")
        D = 16
        self.poll_begin("L_t1poll")
        a(f"buffer_load_dwordx2 v[32:33], v3, {srd(S_WS)}, s96 offen sc1")
        for s in range(16):
            a(f"buffer_load_dword v{D+s}, v2, {srd(S_WS)}, s{92 + s//4} offen offset:{1024*(s%4)} sc1")
        a("s_waitcnt vmcnt(16)")
        a("v_mov_b32 v34, v32")
        self.row_allreduce("max", [34])
        a("v_sub_f32 v35, v32, v34")
        a("v_exp_f32 v35, v35")
        a("v_mul_f32 v36, v35, v33")
        self.row_allreduce("add", [36])
        a("v_rcp_f32 v36, v36")
        a("v_mul_f32 v35, v35, v36")
        a("v_mov_b32 v37, 0")
        for s in range(16):
            if s % 4 == 0:
                a(f"s_waitcnt vmcnt({12 - s})")
            a(f"v_fmac_f32_dpp v37, v35, v{D+s} row_newbcast:{s} row_mask:0xf bank_mask:0xf")
        a("v_cmp_u_f32 vcc, v37, v37")
        self.poll_end("L_t1poll")
        a(f"v_cvt_pk_bf16_f32 v37, v37, v37")
        a(f"ds_write_b16 v1, v37 offset:{O_LDS}")
        a("s_waitcnt lgkmcnt(0)")
        self.stamp(5)
        a("s_barrier")
        a(f"s_cmp_eq_u32 s{sWAVE}, 3")
        a("s_cbranch_scc1 L_w3_rest")
        for k in range(8):
            a(f"s_mov_b32 s{92+k}, {WS_T2 + 4608*k}")
        D = 116
        self.poll_begin("L_t2poll")
        for s in range(16):
            a(f"buffer_load_dwordx4 {vr(D+4*s,4)}, v7, {srd(S_WS)}, s{92 + s//2} offen offset:{2304*(s%2)} sc1")
        AC = 80
        for s in range(1, 16):
            a(f"s_waitcnt vmcnt({15 - s})")
            src = D if s == 1 else AC
            a(f"v_pk_add_f32 {vr(AC,2)}, {vr(src,2)}, {vr(D+4*s,2)}")
            a(f"v_pk_add_f32 {vr(AC+2,2)}, {vr(src+2,2)}, {vr(D+4*s+2,2)}")
        a(f"v_add_f32 v84, v{AC}, v{AC+1}")
        a(f"v_add_f32 v85, v{AC+2}, v{AC+3}")
        a("v_add_f32 v84, v84, v85")
        a("v_cmp_u_f32 vcc, v84, v84")
        self.poll_end("L_t2poll")
        self.stamp(6)
        for r in range(4): self.rnd(AC + r, AC + r)
        a(f"v_pk_mul_f32 {vr(AC,2)}, {vr(AC,2)}, {vr(CGA,2)}")
        a(f"v_pk_mul_f32 {vr(AC+2,2)}, {vr(AC+2,2)}, {vr(CGA+2,2)}")
        for r in range(4): self.rnd(AC + r, AC + r)
        a(f"v_pk_add_f32 {vr(AC,2)}, {vr(AC,2)}, {vr(CX,2)}")
        a(f"v_pk_add_f32 {vr(AC+2,2)}, {vr(AC+2,2)}, {vr(CX+2,2)}")
        for r in range(4): self.rnd(AC + r, AC + r)
        a(f"ds_write_b128 v5, {vr(AC,4)} offset:{X1_LDS}")
        a(f"v_add_f32 v84, v{AC}, v{AC+1}")
        a(f"v_mul_f32 v85, v{AC}, v{AC}")
        a(f"v_add_f32 v86, v{AC+2}, v{AC+3}")
        a(f"v_fmac_f32 v85, v{AC+1}, v{AC+1}")
        a(f"v_add_f32 v84, v84, v86")
        a(f"v_fmac_f32 v85, v{AC+2}, v{AC+2}")
        a(f"v_fmac_f32 v85, v{AC+3}, v{AC+3}")
        self.row_allreduce("add", [84, 85])
        self.cross_rows("add", [84, 85], [86, 87])
        a(f"""
        s_lshl_b32 s30, s{sWAVE}, 3
        v_mov_b32 v86, s30
        s_mov_b64 exec, 1
        ds_write_b64 v86, v[84:85] offset:{ST_LDS}
        s_mov_b64 exec, -1
        s_waitcnt lgkmcnt(0)
        s_barrier
        v_mov_b32 v86, 0
        ds_read_b128 v[88:91], v86 offset:{ST_LDS}
        ds_read_b64 v[92:93], v86 offset:{ST_LDS+16}
        s_waitcnt lgkmcnt(0)
        v_add_f32 v84, v88, v90
        v_add_f32 v85, v89, v91
        v_add_f32 v84, v84, v92
        v_add_f32 v85, v85, v93
        v_mul_f32 v84, {self.f32(1.0/576.0)}, v84
        v_mul_f32 v85, {self.f32(1.0/576.0)}, v85
        v_fma_f32 v85, -v84, v84, v85
        v_max_f32 v85, 0, v85
        """)
        self.ln_finish(84, 85, 86)
        for r in range(4):
            a(f"v_sub_f32 v{AC+r}, v{AC+r}, v84")
        for r in range(4): self.rnd(AC + r, AC + r)
        for r in range(4):
            a(f"v_mul_f32 v{AC+r}, v{AC+r}, v85")
        for r in range(4): self.rnd(AC + r, AC + r)
        a(f"v_pk_mul_f32 {vr(AC,2)}, {vr(AC,2)}, {vr(CCB,2)}")
        a(f"v_pk_mul_f32 {vr(AC+2,2)}, {vr(AC+2,2)}, {vr(CCB+2,2)}")
        for r in range(4): self.rnd(AC + r, AC + r)
        a(f"v_pk_add_f32 {vr(AC,2)}, {vr(AC,2)}, {vr(CSB,2)}")
        a(f"v_pk_add_f32 {vr(AC+2,2)}, {vr(AC+2,2)}, {vr(CSB+2,2)}")
        a(f"v_cvt_pk_bf16_f32 v86, v{AC}, v{AC+1}")
        a(f"v_cvt_pk_bf16_f32 v87, v{AC+2}, v{AC+3}")
        a(f"ds_write_b64 v6, v[86:87] offset:{H_LDS}")
        if self.dbg:
            a(f"s_lshl_b32 s92, s2, 11")
            a(f"s_add_u32 s92, s92, 0x100000")
            a(f"buffer_store_dwordx2 v[86:87], v6, {srd(S_WS)}, s92 offen")
        a("s_waitcnt lgkmcnt(0)")
        self.stamp(7)
        a("s_barrier")
        a("s_barrier")
        self.stamp_flush()
        a("s_endpgm")
        a.label("L_w3_rest")
        a("s_barrier")
        a("s_barrier")
        a("s_barrier")
        self.stamp_flush()
        a("s_endpgm")

    def f32(self, x):
        import struct
        return hex(struct.unpack("<I", struct.pack("<f", x))[0])

    def ln_finish(self, mean, var, t):
        a = self.a
        self.rnd(mean, mean)
        self.rnd(var, var)
        a(f"v_add_f32 v{var}, {self.f32(1e-5)}, v{var}")
        self.rnd(var, var)
        a(f"v_sqrt_f32 v{var}, v{var}")
        self.rnd(var, var)
        a(f"v_rcp_f32 v{var}, v{var}")

    def tail_compute(self):
        a = self.a
        WOF = 16
        GUF = 64
        BF = 136
        WD = 208
        a(f"""
        s_sub_u32 s30, s{sWAVE}, 4
        v_and_b32 v1, 15, v0
        v_lshrrev_b32 v2, 4, v0
        v_lshlrev_b32 v2, 4, v2
        s_lshl_b32 s31, s30, 4
        v_add_u32 v3, s31, v1
        v_mul_u32_u24 v3, {WO_PITCH}, v3
        v_add_u32 v3, v3, v2
        v_and_b32 v4, 7, v1
        v_min_u32 v4, 5, v4
        v_lshrrev_b32 v5, 3, v1
        v_mul_u32_u24 v5, 6, v5
        v_add_u32 v4, v4, v5
        s_mul_i32 s31, s30, 12
        v_add_u32 v4, s31, v4
        v_mul_u32_u24 v4, {GU_PITCH}, v4
        v_add_u32 v4, v4, v2
        v_add_u32 v4, {GU_LDS}, v4
        s_lshl_b32 s31, s30, 6
        v_add_u32 v5, s31, v0
        v_lshlrev_b32 v6, 3, v5
        v_lshlrev_b32 v7, 4, v5
        v_cmp_gt_u32 vcc, 144, v5
        v_mov_b32 v8, 0x7ffffff0
        v_cndmask_b32 v6, v8, v6, vcc
        v_cndmask_b32 v7, v8, v7, vcc
        s_mul_i32 s92, s{sI32}, {18*1152}
        """)
        for k in range(18):
            if k % 3 == 0 and k > 0:
                a(f"s_add_u32 s92, s92, {3*1152}")
            a(f"buffer_load_dwordx2 {vr(WD+2*k,2)}, v6, {srd(S_WD)}, s92 offen offset:{1152*(k%3)}")
        a("s_waitcnt lgkmcnt(0)")
        a("s_barrier")
        self.stamp(4)
        for s in range(8):
            a(f"ds_read_b128 {vr(WOF+4*s,4)}, v3 offset:{WO_LDS+64*s}")
        for s in range(18):
            a(f"ds_read_b128 {vr(GUF+4*s,4)}, v4 offset:{64*s}")
        a(f"""
        v_and_b32 v9, 3, v0
        v_cmp_eq_u32 s[94:95], 1, v9
        v_cmp_eq_u32 s[96:97], 2, v9
        v_cmp_eq_u32 s[98:99], 3, v9
        s_mul_i32 s31, s{sG}, 2304
        s_mul_i32 s93, s{sCJ}, 144
        s_add_u32 s93, s93, s31
        s_lshl_b32 s31, s30, 6
        s_add_u32 s93, s93, s31
        s_add_u32 s93, s93, {WS_T2}
        s_mov_b32 s30, 0x05040100
        s_mov_b32 s31, 0x07060302
        s_waitcnt vmcnt(0)
        """)
        for p in range(9):
            for d in range(2):
                x = WD + 4 * p + d
                y = WD + 4 * p + 2 + d
                a(f"v_perm_b32 v{10+d}, v{y}, v{x}, s30")
                a(f"v_perm_b32 v{y}, v{y}, v{x}, s31")
                a(f"v_mov_b32 v{x}, v{10+d}")
        a(f"""
        s_mov_b32 s30, 0x00010001
        s_mov_b32 s31, 0x00010001
        s_cmp_eq_u32 s{sWAVE}, 6
        s_cselect_b32 s30, 1, s30
        s_cselect_b32 s31, 0, s31
        s_waitcnt lgkmcnt(0)
        s_barrier
        """)
        for s in range(8):
            a(f"ds_read_b128 {vr(BF+4*s,4)}, v2 offset:{O_LDS+64*s}")
        for s in range(8):
            a(f"s_waitcnt lgkmcnt({7-s})")
            c = "0" if s == 0 else vr(12, 4)
            a(f"v_mfma_f32_16x16x32_bf16 {vr(12,4)}, {vr(WOF+4*s,4)}, {vr(BF+4*s,4)}, {c}")
        a(f"""
        s_mov_b64 exec, s[30:31]
        buffer_store_dwordx4 v[12:15], v2, {srd(S_WS)}, s93 offen sc1
        s_mov_b64 exec, -1
        """)
        self.stamp(5)
        kb = 0.7978845608028654; kk = 0.044715
        c1 = -2.0 * kb * 1.4426950408889634
        a(f"""
        s_mov_b32 s92, {self.f32(kk)}
        v_lshrrev_b32 v11, 4, v0
        v_lshlrev_b32 v11, 2, v11
        v_add_u32 v11, v11, v9
        s_sub_u32 s30, s{sWAVE}, 4
        s_mul_i32 s30, s30, 6
        v_add_u32 v11, s30, v11
        v_lshlrev_b32 v11, 1, v11
        s_mov_b32 s30, 0x0003000f
        s_mov_b32 s31, 0
        s_mul_i32 s93, s2, 2304
        s_add_u32 s93, s93, {WS_T3}
        v_mov_b32 v8, 0
        """)
        a("s_barrier")
        a("s_barrier")
        self.stamp(6)
        for s in range(18):
            a(f"ds_read_b128 {vr(BF+4*s,4)}, v2 offset:{H_LDS+64*s}")
        for s in range(18):
            a(f"s_waitcnt lgkmcnt({min(17-s,15)})")
            c = "0" if s == 0 else vr(12, 4)
            a(f"v_mfma_f32_16x16x32_bf16 {vr(12,4)}, {vr(GUF+4*s,4)}, {vr(BF+4*s,4)}, {c}")
        a(f"""
        v_cndmask_b32 v12, v12, v13, s[94:95]
        v_cndmask_b32 v12, v12, v14, s[96:97]
        v_cndmask_b32 v12, v12, v15, s[98:99]
        """)
        self.rnd(12, 12)
        a("v_mov_b32 v13, v12")
        a("v_permlane32_swap_b32 v12, v13")
        a(f"""
        v_mul_f32 v14, v12, v12
        v_fma_f32 v14, v14, s92, 1.0
        v_mul_f32 v14, v14, v12
        v_mul_f32 v14, {self.f32(c1)}, v14
        v_exp_f32 v14, v14
        v_add_f32 v14, 1.0, v14
        v_rcp_f32 v14, v14
        v_mul_f32 v14, v14, v12
        """)
        self.rnd(14, 14)
        a("v_mul_f32 v14, v14, v13")
        a("v_cvt_pk_bf16_f32 v14, v14, v14")
        if self.dbg:
            a(f"""
            s_mov_b64 exec, s[30:31]
            s_lshl_b32 s92, s{sI32}, 6
            s_add_u32 s92, s92, 0xF0000
            buffer_store_short v14, v11, {srd(S_WS)}, s92 offen
            s_add_u32 s92, s92, 0x4000
            buffer_store_short_d16_hi v12, v11, {srd(S_WS)}, s92 offen
            s_add_u32 s92, s92, 0x4000
            buffer_store_short_d16_hi v13, v11, {srd(S_WS)}, s92 offen
            s_mov_b64 exec, -1
            """)
        a(f"""
        s_mov_b64 exec, s[30:31]
        ds_write_b16 v11, v14 offset:{ACT_LDS}
        s_mov_b64 exec, -1
        s_waitcnt lgkmcnt(0)
        s_barrier
        ds_read_b128 v[16:19], v8 offset:{ACT_LDS}
        ds_read_b128 v[20:23], v8 offset:{ACT_LDS+16}
        ds_read_b32 v24, v8 offset:{ACT_LDS+32}
        v_mov_b32 v12, 0
        v_mov_b32 v13, 0
        v_mov_b32 v14, 0
        v_mov_b32 v15, 0
        s_waitcnt lgkmcnt(0)
        """)
        for p in range(9):
            a(f"v_dot2c_f32_bf16 v12, v{WD+4*p+0}, v{16+p}")
            a(f"v_dot2c_f32_bf16 v13, v{WD+4*p+2}, v{16+p}")
            a(f"v_dot2c_f32_bf16 v14, v{WD+4*p+1}, v{16+p}")
            a(f"v_dot2c_f32_bf16 v15, v{WD+4*p+3}, v{16+p}")
        a(f"buffer_store_dwordx4 v[12:15], v7, {srd(S_WS)}, s93 offen sc1")
        self.stamp(7)
        self.stamp_flush()
        a("s_endpgm")

    def p1_compute(self, W, XL, XH, AC, third):
        a = self.a
        for j in range(9):
            for d in range(4):
                c0 = "0" if j == 0 else f"v{AC+2*d}"
                c1 = "0" if j == 0 else f"v{AC+2*d+1}"
                a(f"v_dot2_f32_bf16 v{AC+2*d}, v{W+4*j+d}, v{XL+j}, {c0}")
                a(f"v_dot2_f32_bf16 v{AC+2*d+1}, v{W+4*j+d}, v{XH+j}, {c1}")
        for i in range(4):
            a(f"v_permlane32_swap_b32 v{AC+i}, v{AC+i+4}")
        for i in range(4):
            a(f"v_add_f32 v{AC+i}, v{AC+i}, v{AC+i+4}")
        for i in range(2):
            a(f"v_permlane16_swap_b32 v{AC+i}, v{AC+i+2}")
        for i in range(2):
            a(f"v_add_f32 v{AC+i}, v{AC+i}, v{AC+i+2}")
        self.row_allreduce("add", [AC, AC + 1])
        a(f"v_cvt_pk_bf16_f32 v{AC}, v{AC}, v{AC+1}")
        a(f"v_mov_b32 v{AC+1}, s{sTAG}")
        a(f"""
        s_lshl_b32 s30, s{sI18}, 5
        s_add_u32 s30, s30, {WS_P1 + third*4608}
        s_mov_b32 s92, 0x00010001
        s_mov_b32 s93, 0x00010001
        s_mov_b64 exec, s[92:93]
        buffer_store_dwordx2 v[{AC}:{AC+1}], v14, {srd(S_WS)}, s30 offen sc1
        s_mov_b64 exec, -1
        """)

    def wmod_loads(self, W, third):
        a = self.a
        a(f"s_lshl_b32 s30, s{sI18}, 4")
        a(f"s_add_u32 s30, s30, {third*2304}")
        for j in range(9):
            a(f"buffer_load_dwordx4 {vr(W+4*j,4)}, v2, {srd(S_WMOD)}, s30 offen")
            if j < 8: a(f"s_add_u32 s30, s30, {64*6912}")

    def tagcheck(self, regs, t0, t1):
        a = self.a
        assert len(regs) % 2 == 0
        a(f"v_max_u32 v{t0}, v{regs[0]}, v{regs[1]}")
        a(f"v_min_u32 v{t1}, v{regs[0]}, v{regs[1]}")
        for k in range(2, len(regs), 2):
            a(f"v_max3_u32 v{t0}, v{t0}, v{regs[k]}, v{regs[k+1]}")
            a(f"v_min3_u32 v{t1}, v{t1}, v{regs[k]}, v{regs[k+1]}")
        a(f"v_xor_b32 v{t0}, s{sTAG}, v{t0}")
        a(f"v_xor_b32 v{t1}, s{sTAG}, v{t1}")
        a(f"v_or_b32 v{t0}, v{t0}, v{t1}")
        a(f"v_cmp_ne_u32 vcc, 0, v{t0}")

    def quad_loads(self, G, sbase, nm):
        a = self.a
        for m in range(nm):
            for j in range(3):
                if j < 2:
                    a(f"buffer_load_dwordx4 {vr(G+12*m+4*j,4)}, v5, {srd(S_WS)}, s{sbase+m} offen offset:{1024*j} sc1")
                else:
                    a(f"buffer_load_dwordx4 {vr(G+12*m+4*j,4)}, v9, {srd(S_WS)}, s{sbase+m} offen sc1")

    def service(self):
        a = self.a
        a.label("L_service")
        if self.stamps:
            a(f"v_mov_b32 v{V_ST}, 0")
        CR = 15
        XH, XL = 24, 33
        AC = 44
        W0 = 64
        XR = 52
        XV = 100
        WQ = 112
        G = 184
        HB = 184
        PROD = f"s_cmp_lt_u32 s{sHI}, 18"
        a(f"""
        s_setprio 3
        v_lshlrev_b32 v1, 1, v0
        v_mul_u32_u24 v2, 6912, v0
        v_lshlrev_b32 v3, 3, v0
        v_lshrrev_b32 v4, 1, v0
        v_lshlrev_b32 v4, 14, v4
        v_and_b32 v5, 1, v0
        v_lshl_add_u32 v4, v5, 4, v4
        v_lshrrev_b32 v14, 4, v0
        v_lshlrev_b32 v14, 3, v14
        v_lshlrev_b32 v5, 4, v0
        s_waitcnt lgkmcnt(0)
        s_load_dword s{sTAG}, s[28:29], {WS_EPOCH}
        """)
        self.mk_srd(S_C, 22, 1152)
        self.mk_srd(S_WMOD, 24, 576 * 3456 * 2)
        a(PROD)
        a("s_cbranch_scc0 L_sv_nop1a")
        for j in range(9):
            a(f"buffer_load_ushort v{CR+j}, v1, {srd(S_C)}, 0 offen offset:{128*j}")
        self.wmod_loads(W0, 0)
        a.label("L_sv_nop1a")
        self.mk_srd(S_X, 4, 1152)
        self.mk_srd(S_WQ, 10, 576 * 4096 * 2)
        for j in range(3):
            a(f"buffer_load_dwordx2 {vr(XR+2*j,2)}, v3, {srd(S_X)}, 0 offen offset:{512*j}")
        a(f"s_lshl_b32 s92, s{sI32}, 5")
        a("s_add_u32 s93, s92, 8192")
        for j in range(9):
            a(f"buffer_load_dwordx4 {vr(WQ+8*j,4)}, v4, {srd(S_WQ)}, s92 offen")
            a(f"buffer_load_dwordx4 {vr(WQ+8*j+4,4)}, v4, {srd(S_WQ)}, s93 offen")
            if j < 8:
                a(f"s_add_u32 s92, s92, {32*16384}")
                a(f"s_add_u32 s93, s93, {32*16384}")
        self.mk_srd(S_WS, 28, WS_SIZE)
        self.mk_srd(S_WO, 12, 4096 * 576 * 2)
        self.mk_srd(S_WG, 16, 576 * 4608 * 2)
        self.mk_srd(S_WU, 18, 576 * 4608 * 2)
        self.mk_srd(S_OUT, 26, 1152)
        a("s_waitcnt lgkmcnt(0)")
        a(f"s_mul_i32 s{sTAG}, s{sTAG}, 0x9E3779B1")
        a(f"s_add_u32 s{sTAG}, s{sTAG}, 0x7F4A7C15")
        self.stamp(0)
        a(PROD)
        a("s_cbranch_scc0 L_sv_nop1b")
        a("s_waitcnt vmcnt(30)")
        for j in range(9):
            c = CR + j
            a(f"v_lshlrev_b32 v{c}, 16, v{c}")
            a(f"v_mul_f32 v{XH+j}, s{sLOG2E}, v{c}")
            a(f"v_exp_f32 v{XH+j}, -v{XH+j}")
            a(f"v_add_f32 v{XH+j}, 1.0, v{XH+j}")
            a(f"v_rcp_f32 v{XL+j}, v{XH+j}")
            a(f"v_mul_f32 v10, v{XL+j}, v{c}")
            a(f"v_fma_f32 v11, -v10, v{XH+j}, v{c}")
            a(f"v_fma_f32 v{XH+j}, v11, v{XL+j}, v10")
            self.rnd(XH + j, XH + j)
            a(f"v_lshrrev_b32 v{XL+j}, 16, v{XH+j}")
        a("s_waitcnt vmcnt(21)")
        self.p1_compute(W0, XL, XH, AC, 0)
        a.label("L_sv_nop1b")
        self.stamp(1)
        a("s_waitcnt vmcnt(18)")
        for j in range(3):
            for d in range(2):
                a(f"v_lshlrev_b32 v{XV+4*j+2*d}, 16, v{XR+2*j+d}")
                a(f"v_and_b32 v{XV+4*j+2*d+1}, 0xffff0000, v{XR+2*j+d}")
        for j in range(3):
            a(f"ds_write_b128 v5, {vr(XV+4*j,4)} offset:{X_LDS+1024*j}")
        a(f"v_add_f32 v6, v{XV}, v{XV+1}")
        for k in range(2, 12):
            a(f"v_add_f32 v6, v6, v{XV+k}")
        self.row_allreduce("add", [6])
        self.cross_rows("add", [6], [7])
        a(f"v_mul_f32 v6, {self.f32(1.0/576.0)}, v6")
        a("v_mov_b32 v7, 0")
        for k in range(8):
            a(f"v_sub_f32 v8, v{XV+k}, v6")
            a("v_fmac_f32 v7, v8, v8")
        a("s_mov_b64 exec, 0xffff")
        for k in range(8, 12):
            a(f"v_sub_f32 v8, v{XV+k}, v6")
            a("v_fmac_f32 v7, v8, v8")
        a("s_mov_b64 exec, -1")
        self.row_allreduce("add", [7])
        self.cross_rows("add", [7], [8])
        a(f"v_mul_f32 v7, {self.f32(1.0/576.0)}, v7")
        self.ln_finish(6, 7, 8)
        for k in range(12):
            a(f"v_sub_f32 v{XV+k}, v{XV+k}, v6")
        for k in range(12): self.rnd(XV + k, XV + k)
        for k in range(12):
            a(f"v_mul_f32 v{XV+k}, v{XV+k}, v7")
        for k in range(12): self.rnd(XV + k, XV + k)
        a(f"""
        v_and_b32 v6, 1, v0
        v_mul_u32_u24 v6, {8*GU_PITCH}, v6
        v_lshrrev_b32 v7, 1, v0
        v_lshl_add_u32 v6, v7, 2, v6
        v_add_u32 v6, {GU_LDS}, v6
        s_mov_b32 s92, 0x05040100
        s_mov_b32 s93, 0x07060302
        """)
        for j in range(9):
            a(f"s_waitcnt vmcnt({2*(8-j)})")
            A = WQ + 8 * j; B = A + 4
            for d in range(4):
                a(f"v_perm_b32 v{8+d}, v{B+d}, v{A+d}, s92")
                a(f"v_perm_b32 v{B+d}, v{B+d}, v{A+d}, s93")
            for d in range(4):
                a(f"ds_write_b32 v6, v{8+d} offset:{(2*d)*GU_PITCH + 128*j}")
                a(f"ds_write_b32 v6, v{B+d} offset:{(2*d+1)*GU_PITCH + 128*j}")
        a(f"""
        v_and_b32 v7, 15, v0
        v_mul_u32_u24 v7, {GU_PITCH}, v7
        v_lshrrev_b32 v8, 4, v0
        v_lshlrev_b32 v8, 4, v8
        v_add_u32 v7, v7, v8
        v_add_u32 v7, {GU_LDS}, v7
        s_waitcnt lgkmcnt(0)
        """)
        for s in range(18):
            a(f"ds_read_b128 {vr(WQ+4*s,4)}, v7 offset:{64*s}")
        a(f"""
        v_add_u32 v9, 128, v0
        v_min_u32 v9, 143, v9
        v_lshlrev_b32 v9, 4, v9
        s_mov_b32 s92, {WS_P1}
        s_mov_b32 s93, {WS_P1+2304}
        """)
        self.stamp(2)
        self.poll_begin("L_p1poll")
        self.quad_loads(G, 92, 2)
        a("s_waitcnt vmcnt(0)")
        self.tagcheck([G + 4 * k + 1 for k in range(6)] + [G + 4 * k + 3 for k in range(6)], 10, 11)
        self.poll_end("L_p1poll")
        self.stamp(3)
        for j in range(3):
            for d in range(2):
                sa = G + 4 * j + 2 * d; ca = G + 12 + 4 * j + 2 * d
                n0 = XV + 4 * j + 2 * d
                a(f"v_lshlrev_b32 v10, 16, v{ca}")
                a(f"v_and_b32 v11, 0xffff0000, v{ca}")
                a(f"v_lshlrev_b32 v12, 16, v{sa}")
                a(f"v_and_b32 v13, 0xffff0000, v{sa}")
                a(f"v_pk_add_f32 v[10:11], v[10:11], 1.0 op_sel_hi:[1,0]")
                self.rnd(10, 10); self.rnd(11, 11)
                a(f"v_pk_mul_f32 v[10:11], v[10:11], {vr(n0,2)}")
                self.rnd(10, 10); self.rnd(11, 11)
                a(f"v_pk_add_f32 v[10:11], v[10:11], v[12:13]")
                a(f"v_cvt_pk_bf16_f32 v{sa}, v10, v11")
        a(f"v_add_u32 v10, {H_LDS}, v3")
        a(f"v_add_u32 v11, {H_LDS+1024}, v3")
        a(f"ds_write2_b32 v10, v{G}, v{G+2} offset0:0 offset1:1")
        a(f"ds_write2_b32 v10, v{G+4}, v{G+6} offset0:128 offset1:129")
        a(f"ds_write2_b32 v11, v{G+8}, v{G+10} offset0:0 offset1:1")
        a("s_waitcnt lgkmcnt(0)")
        for s in range(18):
            a(f"ds_read_b128 {vr(HB+4*s,4)}, v8 offset:{H_LDS+64*s}")
        for s in range(18):
            a(f"s_waitcnt lgkmcnt({min(17-s,15)})")
            c = "0" if s == 0 else vr(AC, 4)
            a(f"v_mfma_f32_16x16x32_bf16 {vr(AC,4)}, {vr(WQ+4*s,4)}, {vr(HB+4*s,4)}, {c}")
        a(f"""
        v_cvt_pk_bf16_f32 v48, v44, v45
        v_mov_b32 v49, s{sTAG}
        v_cvt_pk_bf16_f32 v50, v46, v47
        v_mov_b32 v51, s{sTAG}
        s_lshl_b32 s30, s{sI32}, 6
        s_add_u32 s30, s30, {WS_P2}
        s_mov_b32 s92, 0x00010001
        s_mov_b32 s93, 0x00010001
        s_mov_b64 exec, s[92:93]
        buffer_store_dwordx4 v[48:51], v8, {srd(S_WS)}, s30 offen sc1
        s_mov_b64 exec, -1
        s_lshl_b32 s30, s{sG}, 10
        s_add_u32 s30, s30, {WS_P2}
        """)
        self.stamp(4)
        self.poll_begin("L_p2poll")
        a(f"buffer_load_dwordx4 v[52:55], v5, {srd(S_WS)}, s30 offen sc1")
        a("s_waitcnt vmcnt(0)")
        self.tagcheck([53, 55], 10, 11)
        self.poll_end("L_p2poll")
        a(f"ds_write2_b32 v3, v52, v54 offset0:{Q_LDS//4} offset1:{Q_LDS//4+1}")
        a("s_waitcnt lgkmcnt(0)")
        self.stamp(5)
        a("s_barrier")
        a("s_setprio 1")
        a(f"""
        v_mov_b32 v44, -1
        v_mov_b32 v45, -1
        v_mov_b32 v46, -1
        v_mov_b32 v47, -1
        s_lshl_b32 s30, s2, 10
        s_add_u32 s30, s30, {WS_T1O}
        buffer_store_dwordx4 v[44:47], v5, {srd(S_WS)}, s30 offen sc1
        s_mul_i32 s30, s2, 2304
        s_add_u32 s30, s30, {WS_T3}
        buffer_store_dwordx4 v[44:47], v5, {srd(S_WS)}, s30 offen sc1
        buffer_store_dwordx4 v[44:47], v5, {srd(S_WS)}, s30 offen offset:1024 sc1
        s_mov_b64 exec, 0xffff
        buffer_store_dwordx4 v[44:47], v5, {srd(S_WS)}, s30 offen offset:2048 sc1
        s_mov_b64 exec, 0x1ff
        s_mul_i32 s30, s{sG}, 2304
        s_mul_i32 s92, s{sCJ}, 144
        s_add_u32 s30, s30, s92
        s_add_u32 s30, s30, {WS_T2}
        buffer_store_dwordx4 v[44:47], v5, {srd(S_WS)}, s30 offen sc1
        s_mov_b64 exec, 1
        s_lshl_b32 s30, s2, 4
        s_add_u32 s30, s30, {WS_T1ML}
        buffer_store_dwordx4 v[44:47], v5, {srd(S_WS)}, s30 offen sc1
        s_mov_b64 exec, -1
        """)
        W1 = 64; W2 = 100
        a(PROD)
        a("s_cbranch_scc0 L_sv_nop1c")
        self.wmod_loads(W1, 1)
        self.wmod_loads(W2, 2)
        a.label("L_sv_nop1c")
        WOR = 136
        a(f"""
        v_mul_u32_u24 v6, 2304, v0
        s_mul_i32 s92, s{sG}, {256*1152}
        s_mul_i32 s30, s{sCJ}, 72
        s_add_u32 s92, s92, s30
        """)
        for j in range(2):
            for row in range(2):
                b = WOR + 36 * j + 18 * row
                for q in range(4):
                    a(f"buffer_load_dwordx4 {vr(b+4*q,4)}, v6, {srd(S_WO)}, s92 offen offset:{1152*row+16*q}")
                a(f"buffer_load_dwordx2 {vr(b+16,2)}, v6, {srd(S_WO)}, s92 offen offset:{1152*row+64}")
            if j == 0: a(f"s_add_u32 s92, s92, {128*1152}")
        a("s_waitcnt vmcnt(20)")
        a(f"""
        v_mov_b32 v44, s{sTAG}
        s_lshl_b32 s30, s2, 2
        s_add_u32 s30, s30, {WS_HELLO}
        v_mov_b32 v45, 0
        s_mov_b64 exec, 1
        buffer_store_dword v44, v45, {srd(S_WS)}, s30 offen sc1
        s_mov_b64 exec, -1
        """)
        a(PROD)
        a("s_cbranch_scc0 L_sv_nop1d")
        self.p1_compute(W1, XL, XH, AC, 1)
        self.p1_compute(W2, XL, XH, AC, 2)
        a.label("L_sv_nop1d")
        a(f"""
        v_lshlrev_b32 v7, 2, v0
        v_add_u32 v12, {WO_LDS}, v7
        s_mov_b32 s92, 0x05040100
        s_mov_b32 s93, 0x07060302
        s_waitcnt vmcnt(0)
        """)
        for j in range(2):
            A = WOR + 36 * j; B = A + 18
            for d in range(18):
                a(f"v_perm_b32 v{10+(d&1)}, v{B+d}, v{A+d}, s92")
                a(f"v_perm_b32 v{B+d}, v{B+d}, v{A+d}, s93")
                a(f"ds_write_b32 v12, v{10+(d&1)} offset:{(2*d)*WO_PITCH + 256*j}")
                a(f"ds_write_b32 v12, v{B+d} offset:{(2*d+1)*WO_PITCH + 256*j}")
        a(f"v_mul_u32_u24 v6, 18432, v0")
        a(f"v_add_u32 v7, {GU_LDS}, v7")
        for mt, sr in ((0, S_WG), (1, S_WU)):
            base = 64 + 96 * mt
            a(f"s_mul_i32 s94, s{sI32}, 36")
            a(f"s_add_u32 s95, s94, 9216")
            for j in range(5):
                for row in range(2):
                    b = base + 18 * j + 8 * row
                    so = 94 + row
                    a(f"buffer_load_dwordx4 {vr(b,4)}, v6, {srd(sr)}, s{so} offen")
                    a(f"buffer_load_dwordx4 {vr(b+4,4)}, v6, {srd(sr)}, s{so} offen offset:16")
                    a(f"buffer_load_dword v{base+18*j+16+row}, v6, {srd(sr)}, s{so} offen offset:32")
                if j < 4:
                    a(f"s_add_u32 s94, s94, {64*18432}")
                    a(f"s_add_u32 s95, s95, {64*18432}")
        for mt in range(2):
            base = 64 + 96 * mt
            for j in range(5):
                a(f"s_waitcnt vmcnt({6*(4-j) + 30*(1-mt)})")
                if j == 4: a("s_mov_b32 exec_hi, 0")
                b = base + 18 * j
                for d in range(9):
                    ra = b + d if d < 8 else b + 16
                    rb = b + 8 + d if d < 8 else b + 17
                    a(f"v_perm_b32 v{10+(d&1)}, v{rb}, v{ra}, s92")
                    a(f"v_perm_b32 v{rb}, v{rb}, v{ra}, s93")
                    for e, reg in ((0, 10 + (d & 1)), (1, rb)):
                        c = 2 * d + e
                        slot = 12 * (c // 6) + 6 * mt + (c % 6)
                        a(f"ds_write_b32 v7, v{reg} offset:{slot*GU_PITCH + 256*j}")
                if j == 4: a("s_mov_b64 exec, -1")
        self.stamp(6)
        G = 64
        for m in range(4):
            a(f"s_mov_b32 s{92+m}, {WS_P1 + 2304*(2+m)}")
        a(f"s_mov_b32 s30, {WS_HELLO}")
        self.poll_begin("L_p3poll")
        self.quad_loads(G, 92, 4)
        a(f"buffer_load_dwordx4 v[112:115], v5, {srd(S_WS)}, s30 offen sc1")
        a("s_waitcnt vmcnt(0)")
        self.tagcheck([G + 4 * k + 1 for k in range(12)] + [G + 4 * k + 3 for k in range(12)] + [112, 113, 114, 115], 10, 11)
        self.poll_end("L_p3poll")
        for m, off in ((0, GA_LDS), (1, SB_LDS), (2, CB_LDS), (3, GB_LDS)):
            for j in range(3):
                g = G + 12 * m + 4 * j
                t = 16 + 4 * (j & 1)
                a(f"v_lshlrev_b32 v{t}, 16, v{g}")
                a(f"v_and_b32 v{t+1}, 0xffff0000, v{g}")
                a(f"v_lshlrev_b32 v{t+2}, 16, v{g+2}")
                a(f"v_and_b32 v{t+3}, 0xffff0000, v{g+2}")
                if m == 2:
                    for r in range(4):
                        a(f"v_add_f32 v{t+r}, 1.0, v{t+r}")
                    for r in range(4): self.rnd(t + r, t + r)
                a(f"ds_write_b128 v5, {vr(t,4)} offset:{off+1024*j}")
        self.stamp(7)

    def tail_service(self):
        a = self.a
        a(f"""
        s_setprio 3
        v_lshrrev_b32 v1, 5, v0
        v_lshlrev_b32 v1, 5, v1
        s_lshl_b32 s92, s2, 10
        s_add_u32 s92, s92, {WS_T1O}
        s_lshl_b32 s93, s2, 4
        s_add_u32 s93, s93, {WS_T1ML}
        v_lshrrev_b32 v2, 5, v0
        v_lshlrev_b32 v2, 3, v2
        v_mul_u32_u24 v3, 2304, v0
        s_lshl_b32 s94, s{sI18}, 4
        s_add_u32 s94, s94, {WS_T3}
        v_lshrrev_b32 v4, 4, v0
        s_lshl_b32 s30, s{sI18}, 2
        v_add_u32 v4, s30, v4
        v_lshlrev_b32 v6, 1, v4
        v_lshlrev_b32 v4, 2, v4
        s_waitcnt lgkmcnt(0)
        s_barrier
        ds_read_b128 v[16:19], v1 offset:{ML_LDS}
        ds_read_b128 v[20:23], v1 offset:{ML_LDS+16}
        ds_read_b128 v[24:27], v1 offset:{ML_LDS+64}
        ds_read_b128 v[28:31], v1 offset:{ML_LDS+80}
        """)
        for w in range(7):
            a(f"ds_read_b128 {vr(64+4*w,4)}, v5 offset:{PART_LDS+1024*w}")
        a("s_waitcnt lgkmcnt(9)")
        a("v_max3_f32 v32, v16, v17, v18")
        a("v_max3_f32 v32, v32, v19, v20")
        a("v_max3_f32 v32, v32, v21, v22")
        for w in range(7):
            a(f"v_sub_f32 v{16+w}, v{16+w}, v32")
        for w in range(7):
            a(f"v_exp_f32 v{16+w}, v{16+w}")
        a("s_waitcnt lgkmcnt(7)")
        a("v_mul_f32 v33, v16, v24")
        for w in range(1, 7):
            a(f"v_fmac_f32 v33, v{16+w}, v{24+w}")
        for w in range(7):
            a(f"s_waitcnt lgkmcnt({6-w})")
            for r in range(4):
                if w == 0:
                    a(f"v_mul_f32 v{36+r}, v16, v{64+r}")
                else:
                    a(f"v_fmac_f32 v{36+r}, v{16+w}, v{64+4*w+r}")
        a(f"buffer_store_dwordx4 v[36:39], v5, {srd(S_WS)}, s92 offen sc1")
        a(f"""
        s_mov_b32 s30, 1
        s_mov_b32 s31, 1
        s_mov_b64 exec, s[30:31]
        buffer_store_dwordx2 v[32:33], v2, {srd(S_WS)}, s93 offen sc1
        s_mov_b64 exec, -1
        """)
        a("s_barrier")
        a("s_barrier")
        a("s_barrier")
        a("s_barrier")
        a(f"s_cmp_lt_u32 s{sHI}, 18")
        a("s_cbranch_scc0 L_sv_done")
        a(f"ds_read_b32 v40, v4 offset:{X1_LDS}")
        a(f"ds_read_b32 v41, v4 offset:{GB_LDS}")
        for j in range(4):
            a(f"s_add_u32 s{96+j}, s94, {64*2304*j}") if j else a("s_mov_b32 s96, s94")
        self.poll_begin("L_t3poll")
        for j in range(4):
            a(f"buffer_load_dwordx4 {vr(16+4*j,4)}, v3, {srd(S_WS)}, s{96+j} offen sc1")
        a("s_waitcnt vmcnt(2)")
        a("v_pk_add_f32 v[16:17], v[16:17], v[20:21]")
        a("v_pk_add_f32 v[18:19], v[18:19], v[22:23]")
        a("s_waitcnt vmcnt(0)")
        a("v_pk_add_f32 v[24:25], v[24:25], v[28:29]")
        a("v_pk_add_f32 v[26:27], v[26:27], v[30:31]")
        a("v_pk_add_f32 v[16:17], v[16:17], v[24:25]")
        a("v_pk_add_f32 v[18:19], v[18:19], v[26:27]")
        a("v_permlane32_swap_b32 v16, v18")
        a("v_permlane32_swap_b32 v17, v19")
        a("v_add_f32 v16, v16, v18")
        a("v_add_f32 v17, v17, v19")
        a("v_permlane16_swap_b32 v16, v17")
        a("v_add_f32 v16, v16, v17")
        self.row_allreduce("add", [16])
        a("v_cmp_u_f32 vcc, v16, v16")
        self.poll_end("L_t3poll")
        self.rnd(16, 16)
        a("s_waitcnt lgkmcnt(0)")
        a("v_mul_f32 v16, v16, v41")
        self.rnd(16, 16)
        a("v_add_f32 v16, v16, v40")
        a("v_cvt_pk_bf16_f32 v16, v16, v16")
        a(f"""
        s_mov_b32 s30, 0x00010001
        s_mov_b32 s31, 0x00010001
        s_mov_b64 exec, s[30:31]
        buffer_store_short v16, v6, {srd(S_OUT)}, 0 offen
        s_mov_b64 exec, -1
        """)
        a.label("L_sv_done")
        a("s_cmp_eq_u32 s2, 0")
        a("s_cbranch_scc0 L_sv_end")
        a(f"""
        s_load_dword s30, s[28:29], {WS_EPOCH}
        s_waitcnt lgkmcnt(0)
        s_add_u32 s30, s30, 1
        v_mov_b32 v16, s30
        v_mov_b32 v17, {WS_EPOCH}
        s_mov_b64 exec, 1
        buffer_store_dword v16, v17, {srd(S_WS)}, 0 offen sc1
        s_mov_b64 exec, -1
        """)
        a.label("L_sv_end")
        self.stamp_flush()
        a("s_endpgm")

    def build(self):
        a = self.a
        self.prologue()
        self.streaming()
        a(f"s_cmp_lt_u32 s{sWAVE}, 4")
        a.branch("s_cbranch_scc0 L_tail_compute")
        self.tail_gather()
        a.label("L_tail_compute")
        self.tail_compute()
        self.service()
        self.tail_service()
        a.label("L_end")
        a("s_endpgm")
        return a.text()


def main():
    ap = argparse.ArgumentParser()
    ap.add_argument("-o", default="main.s")
    ap.add_argument("--R", type=int, default=6)
    ap.add_argument("--pace", type=int, default=4)
    ap.add_argument("--pacepro", type=int, default=4)
    ap.add_argument("--stamps", action="store_true")
    ap.add_argument("--dbg", action="store_true")
    args = ap.parse_args()
    g = Gen(R=args.R, pace=args.pace, pace_pro=args.pacepro, stamps=args.stamps, dbg=args.dbg)
    body = g.build()
    nv = 64 + 32 * args.R
    txt = wrap_single(body, 256, 512, LDS_SIZE, max(nv, 256))
    open(args.o, "w").write(txt)
    print(f"wrote {args.o}: {len(txt)} bytes, lds {LDS_SIZE}, nops {g.a.nops_inserted}")

if __name__ == "__main__":
    main()
```

```python
import sys, argparse, struct
from asmlib import *

WS_EPOCH = 0x0
WS_HELLO = 0x400
WS_P1 = 0x1000
P1S = 3456 * 8
WS_P3 = 0x1C000
WS_T1ML = 0x1F000
WS_T2 = 0x20000
WS_P2 = 0x30000
WS_T1O = 0x50000
WS_T3 = 0x90000
WS_POOL = 0xC0000
WS_DBG = 0x100000
WS_SIZE = 0x200000
WS_STAMP = 0x10000000

Q_LDS = 0x0000
O_LDS = 0x0200
ST_LDS = 0x0A00
CTR_LDS = 0x0A20
ML_LDS = 0x0A40
HD_LDS = 0x0D00
HD_P = 80
X1_LDS = 0x1700
PART_LDS = 0x2400
IMG_LDS = 0x4000
HD2_LDS = 0x4000
PX_LDS = 0x5000
LDS_SIZE = 0xC000

LOG2E = 0x3FB8AA3B
SCALE = 0x3DB504F3
SPIN = 50000

S_K, S_V, S_WS, S_X, S_C, S_WMOD, S_WQ, S_WO, S_WG, S_WU, S_WD, S_OUT = [32 + 4 * i for i in range(12)]
sTAG, sWAVE, sOFF, sCNT = 80, 81, 82, 83
sSCALE, sLOG2E, sG, sJ, sCLS, sIDX, sPA = 84, 86, 87, 88, 89, 90, 91
sP = 3
sST, sPEND, sQ, sPOOL, sGUB, sWDB, sOOB, sHOME, sLIM = 48, 49, 50, 51, 52, 53, 54, 55, 56
V_ST = 62


def srd(s):
    return f"s[{s}:{s+3}]"

def vr(b, n):
    return f"v[{b}:{b+n-1}]"

def f32(x):
    return hex(struct.unpack("<I", struct.pack("<f", x))[0])


class Gen:
    def __init__(self, R=6, pace=4, pro_wait=2, pro_grp=4, stamps=False, dbg=False,
                 NS=96, QF=340, look=12, wpace=8, dma_wait=32):
        self.a = Asm()
        self.R = R; self.pace = pace; self.pro_wait = pro_wait; self.pro_grp = pro_grp
        self.stamps = stamps; self.dbg = dbg
        self.NS = NS; self.QF = QF; self.look = look; self.wpace = wpace; self.dma_wait = dma_wait
        self.T = 128 - NS; assert self.T % 4 == 0
        self.P = 16 * self.T

    def mk_srd(self, s, plo, size, add=None):
        a = self.a
        if add is None:
            a(f"s_mov_b32 s{s}, s{plo}")
            a(f"s_and_b32 s{s+1}, s{plo+1}, 0xffff")
        else:
            a(f"s_add_u32 s{s}, s{plo}, {add}")
            a(f"s_addc_u32 s{s+1}, s{plo+1}, 0")
            a(f"s_and_b32 s{s+1}, s{s+1}, 0xffff")
        a(f"s_mov_b32 s{s+2}, {size}")
        a(f"s_mov_b32 s{s+3}, 0x20000")

    def rnd(self, d, s):
        self.a(f"v_cvt_pk_bf16_f32 v{d}, 0, v{s}")

    def stamp(self, k):
        if not self.stamps: return
        a = self.a
        a("s_memrealtime s[100:101]")
        a("s_waitcnt lgkmcnt(0)")
        a(f"v_writelane_b32 v{V_ST}, s100, {k}")

    def stamp_flush(self):
        if not self.stamps: return
        a = self.a
        a(f"""
        s_mov_b64 exec, 0xffff
        s_lshl_b32 s92, s2, 3
        s_add_u32 s92, s92, s{sWAVE}
        s_lshl_b32 s92, s92, 7
        s_add_u32 s92, s92, {WS_STAMP}
        s_add_u32 s92, s28, s92
        s_addc_u32 s93, s29, 0
        v_lshlrev_b32 v60, 3, v0
        v_mov_b32 v{V_ST+1}, 0
        global_store_dwordx2 v60, v[{V_ST}:{V_ST+1}], s[92:93]
        s_mov_b64 exec, -1
        """)

    def row_allreduce(self, op, regs, shifts=(8, 4, 2, 1)):
        a = self.a
        for sh in shifts:
            for r in regs:
                a(f"v_{op}_f32_dpp v{r}, v{r}, v{r} row_ror:{sh} row_mask:0xf bank_mask:0xf")

    def cross_rows(self, op, regs, tmps):
        a = self.a
        for sw in ("16", "32"):
            for r, t in zip(regs, tmps):
                a(f"v_mov_b32 v{t}, v{r}")
            for r, t in zip(regs, tmps):
                a(f"v_permlane{sw}_swap_b32 v{r}, v{t}")
            for r, t in zip(regs, tmps):
                a(f"v_{op}_f32 v{r}, v{r}, v{t}")

    def poll_begin(self, name):
        a = self.a
        a(f"s_mov_b32 s{sCNT}, {SPIN}")
        a.label(name)

    def poll_end(self, name):
        a = self.a
        ok = name + "_ok"
        a(f"s_cbranch_vccz {ok}")
        a(f"s_sub_u32 s{sCNT}, s{sCNT}, 1")
        a(f"s_cmp_lg_u32 s{sCNT}, 0")
        a.branch(f"s_cbranch_scc1 {name}")
        a.label(ok)

    def tagcheck(self, regs, t0, t1):
        a = self.a
        assert len(regs) % 2 == 0
        a(f"v_max_u32 v{t0}, v{regs[0]}, v{regs[1]}")
        a(f"v_min_u32 v{t1}, v{regs[0]}, v{regs[1]}")
        for k in range(2, len(regs), 2):
            a(f"v_max3_u32 v{t0}, v{t0}, v{regs[k]}, v{regs[k+1]}")
            a(f"v_min3_u32 v{t1}, v{t1}, v{regs[k]}, v{regs[k+1]}")
        a(f"v_xor_b32 v{t0}, s{sTAG}, v{t0}")
        a(f"v_xor_b32 v{t1}, s{sTAG}, v{t1}")
        a(f"v_or_b32 v{t0}, v{t0}, v{t1}")
        a(f"v_cmp_ne_u32 vcc, 0, v{t0}")

    def ln_finish(self, mean, var):
        a = self.a
        self.rnd(mean, mean)
        self.rnd(var, var)
        a(f"v_add_f32 v{var}, {f32(1e-5)}, v{var}")
        self.rnd(var, var)
        a(f"v_sqrt_f32 v{var}, v{var}")
        self.rnd(var, var)
        a(f"v_rcp_f32 v{var}, v{var}")

    vMK = 4

    def mk_masks(self, t0, t1, t2):
        a = self.a
        a(f"""
        v_and_b32 v{t2}, 1, v0
        v_mov_b32 v{t0}, 0xffff
        v_mov_b32 v{t1}, 0xffff0000
        v_cmp_eq_u32 vcc, 1, v{t2}
        v_cndmask_b32 v{t0}, v{t0}, v{t1}, vcc
        v_bfe_u32 v{t2}, v0, 1, 2
        """)
        for d in range(4):
            a(f"v_cmp_eq_u32 vcc, {d}, v{t2}")
            a(f"v_cndmask_b32 v{self.vMK+d}, 0, v{t0}, vcc")

    def mk_sub(self, d, t):
        a = self.a
        a(f"v_bfe_u32 v{d}, v0, 3, 1")
        a(f"v_lshrrev_b32 v{t}, 4, v0")
        a(f"v_lshl_add_u32 v{d}, v{d}, 2, v{t}")

    def gemv(self, W, n, AV, ASET, ACC, first, waits=None):
        a = self.a
        def build(t):
            s = ASET + 4 * (t & 1)
            for d in range(4):
                a(f"v_and_b32 v{s+d}, v{AV[t]}, v{self.vMK+d}")
        build(0)
        for t in range(n):
            if t + 1 < n: build(t + 1)
            if waits and t in waits: a(waits[t])
            s = ASET + 4 * (t & 1)
            c = "0" if (first and t == 0) else vr(ACC, 4)
            a(f"v_mfma_f32_16x16x32_bf16 {vr(ACC,4)}, {vr(s,4)}, {vr(W+4*t,4)}, {c}")

    def halfsum(self, ACC, T):
        a = self.a
        for r in range(4): a(f"v_mov_b32 v{T+r}, v{ACC+r}")
        for r in range(4): a(f"v_permlane32_swap_b32 v{ACC+r}, v{T+r}")
        for r in range(4): a(f"v_add_f32_dpp v{ACC+r}, v{T+r}, v{ACC+r} row_ror:8 row_mask:0xf bank_mask:0xf")

    def silu(self, c, o, t0, t1):
        a = self.a
        a(f"v_mul_f32 v{o}, s{sLOG2E}, v{c}")
        a(f"v_exp_f32 v{o}, -v{o}")
        a(f"v_add_f32 v{o}, 1.0, v{o}")
        a(f"v_rcp_f32 v{t0}, v{o}")
        a(f"v_mul_f32 v{t1}, v{t0}, v{c}")
        a(f"v_fma_f32 v{o}, -v{t1}, v{o}, v{c}")
        a(f"v_fma_f32 v{o}, v{o}, v{t0}, v{t1}")
        a(f"v_cvt_pk_bf16_f32 v{o}, v{o}, v{o}")

    def prologue(self):
        a = self.a
        a(f"""
        s_cmp_ge_u32 s2, 256
        s_cbranch_scc1 L_end
        s_load_dwordx16 s[4:19], s[0:1], 0
        s_load_dwordx8 s[20:27], s[0:1], 64
        s_load_dwordx2 s[28:29], s[0:1], 104
        v_lshrrev_b32 v1, 6, v0
        v_and_b32 v0, 63, v0
        v_readfirstlane_b32 s{sWAVE}, v1
        s_lshr_b32 s{sG}, s2, 4
        s_and_b32 s{sJ}, s2, 15
        s_and_b32 s{sP}, s{sG}, 1
        s_sub_u32 s92, 5, s{sP}
        s_sub_i32 s93, s{sJ}, 7
        s_max_i32 s93, s93, 0
        s_mov_b32 s{sLOG2E}, {LOG2E:#x}
        """)
        a(f"""
        s_mul_i32 s94, s{sG}, 14
        s_add_u32 s94, s94, s{sJ}
        s_sub_u32 s94, s94, 2
        s_cmp_lt_u32 s{sJ}, 2
        s_cselect_b32 s94, -1, s94
        s_cmp_lt_u32 s94, 216
        s_cselect_b32 s{sPA}, s94, -1
        s_mov_b32 s{sCLS}, 2
        s_mov_b32 s{sIDX}, s93
        s_cmp_lt_u32 s{sJ}, 7
        s_cbranch_scc0 L_cls_done
        s_lshr_b32 s95, s{sG}, 1
        s_cmp_lt_u32 s{sJ}, s92
        s_cbranch_scc0 L_cls_mid
        s_mov_b32 s{sCLS}, 0
        s_lshl_b32 s{sIDX}, s{sG}, 2
        s_add_u32 s{sIDX}, s{sIDX}, s{sJ}
        s_add_u32 s95, s95, 64
        s_cmp_eq_u32 s{sJ}, 4
        s_cselect_b32 s{sIDX}, s95, s{sIDX}
        s_branch L_cls_done
        """)
        a.label("L_cls_mid", fence=False)
        a(f"""
        s_mov_b32 s{sCLS}, 1
        s_mul_i32 s96, s95, 3
        s_add_u32 s96, s96, s{sJ}
        s_sub_u32 s96, s96, 4
        s_lshl_b32 s97, s95, 1
        s_add_u32 s97, s97, s{sJ}
        s_add_u32 s97, s97, 19
        s_cmp_eq_u32 s{sP}, 1
        s_cselect_b32 s{sIDX}, s96, s97
        """)
        a.label("L_cls_done", fence=False)
        if self.stamps:
            a(f"v_mov_b32 v{V_ST}, 0")
        a(f"""
        s_cmp_eq_u32 s{sWAVE}, 7
        s_cbranch_scc1 L_service
        """)

    vK, vV = 1, 2
    vL = 8
    vM = 10
    vA = 12
    vS = 16
    vO = 20
    vB = 24
    vP = 32
    vT = 36
    vQ = 44
    RING = 64

    def kreg(self, slot): return self.RING + 32 * slot
    def vreg(self, slot): return self.RING + 32 * slot + 16

    def issue(self, slot, grp=8, wait=None, step=True):
        a = self.a
        k = self.kreg(slot); v = self.vreg(slot)
        n = 0
        for i in range(4):
            if wait is not None and n % grp == 0: a(f"s_waitcnt vmcnt({wait})")
            a(f"buffer_load_dwordx4 {vr(k+4*i,4)}, v{self.vK}, {srd(S_K)}, s{sOFF} offen offset:{64*i} nt")
            n += 1
        for i in range(4):
            if wait is not None and n % grp == 0: a(f"s_waitcnt vmcnt({wait})")
            a(f"buffer_load_dwordx4 {vr(v+4*i,4)}, v{self.vV}, {srd(S_V)}, s{sOFF} offen offset:{256*i} nt")
            n += 1
        if step: a(f"s_add_u32 s{sOFF}, s{sOFF}, {7*4096}")

    def block(self, slot, wk, wv):
        a = self.a
        k = self.kreg(slot); v = self.vreg(slot)
        S = self.vS; O = self.vO; P = self.vP; T = self.vT; M = self.vM; A = self.vA; L = self.vL
        a("s_mov_b64 exec, 1")
        a(f"ds_add_rtn_u32 v{self.vTK}, v{self.vZ}, v{self.vOne} offset:{CTR_LDS}")
        a("s_mov_b64 exec, -1")
        a(f"s_waitcnt vmcnt({wk})")
        if self.strip:
            for i in range(4):
                a(f"v_mfma_f32_16x16x32_bf16 {vr(S,4)}, {vr(k+4*i,4)}, {vr(self.vQ+4*i,4)}, {vr(S,4)}")
            a(f"s_waitcnt vmcnt({wv})")
            for r in range(4):
                a(f"v_mfma_f32_16x16x32_bf16 {vr(O,4)}, {vr(v+4*r,4)}, {vr(self.vB,4)}, {vr(O,4)}")
        else:
            self.block_compute(slot, wk, wv)
        self.block_end(slot)

    strip = False
    pstride = 256
    atom_flags = 'sc0'
    def block_compute(self, slot, wk, wv):
        a = self.a
        k = self.kreg(slot); v = self.vreg(slot)
        S = self.vS; O = self.vO; P = self.vP; T = self.vT; M = self.vM; A = self.vA; L = self.vL
        a(f"v_mfma_f32_16x16x32_bf16 {vr(S,4)}, {vr(k,4)}, {vr(self.vQ,4)}, 0")
        for i in range(1, 4):
            a(f"v_mfma_f32_16x16x32_bf16 {vr(S,4)}, {vr(k+4*i,4)}, {vr(self.vQ+4*i,4)}, {vr(S,4)}")
        for r in range(4):
            self.rnd(S + r, S + r)
        a(f"v_pk_mul_f32 {vr(S,2)}, {vr(S,2)}, s[{sSCALE}:{sSCALE+1}]")
        a(f"v_pk_mul_f32 {vr(S+2,2)}, {vr(S+2,2)}, s[{sSCALE}:{sSCALE+1}]")
        for r in range(4):
            self.rnd(S + r, S + r)
        a(f"v_max3_f32 v{T}, v{S}, v{S+1}, v{S+2}")
        a(f"v_max_f32 v{T}, v{T}, v{S+3}")
        self.cross_rows("max", [T], [T + 1])
        a(f"v_mul_f32 v{T}, s{sLOG2E}, v{T}")
        a(f"v_max_f32 v{T}, v{M}, v{T}")
        a(f"v_sub_f32 v{A}, v{M}, v{T}")
        a(f"v_exp_f32 v{A}, v{A}")
        a(f"v_mov_b32 v{M}, v{T}")
        for r in range(4):
            a(f"v_fma_f32 v{P+r}, v{S+r}, s{sLOG2E}, -v{T}")
        for r in range(4):
            a(f"v_exp_f32 v{P+r}, v{P+r}")
        a(f"v_pk_mul_f32 {vr(L,2)}, {vr(L,2)}, {vr(A,2)} op_sel_hi:[1,0]")
        a(f"v_pk_mul_f32 {vr(O,2)}, {vr(O,2)}, {vr(A,2)} op_sel_hi:[1,0]")
        a(f"v_pk_mul_f32 {vr(O+2,2)}, {vr(O+2,2)}, {vr(A,2)} op_sel_hi:[1,0]")
        a(f"v_pk_add_f32 {vr(L,2)}, {vr(L,2)}, {vr(P,2)}")
        a(f"v_pk_add_f32 {vr(L,2)}, {vr(L,2)}, {vr(P+2,2)}")
        for r in range(4):
            Bs = self.vB + 4 * (r & 1)
            a(f"v_cvt_pk_bf16_f32 v{T+2+r}, v{P+r}, v{P+r}")
            for d in range(4):
                a(f"v_and_b32 v{Bs+d}, v{T+2+r}, v{self.vMK+d}")
            if r == 0:
                a(f"s_waitcnt vmcnt({wv})")
            a(f"v_mfma_f32_16x16x32_bf16 {vr(O,4)}, {vr(v+4*r,4)}, {vr(Bs,4)}, {vr(O,4)}")

    def block_end(self, slot):
        a = self.a
        a("s_waitcnt lgkmcnt(0)")
        a(f"v_readfirstlane_b32 s30, v{self.vTK}")
        a(f"s_cmp_ge_u32 s30, s{sLIM}")
        a.branch(f"s_cbranch_scc1 L_slow_{slot}")
        a(f"s_lshl_b32 s{sOFF}, s30, 12")
        a(f"s_add_u32 s{sOFF}, s{sOFF}, s{sHOME}")
        a(f"s_waitcnt vmcnt({self.pace})")
        a.label(f"L_kv_{slot}", fence=False)
        a(f"s_add_u32 s{sCNT}, s{sCNT}, 1")
        k = self.kreg(slot); v = self.vreg(slot)
        for i in range(4):
            a(f"buffer_load_dwordx4 {vr(k+4*i,4)}, v{self.vK}, {srd(S_K)}, s{sOFF} offen offset:{64*i} nt")
        if self.loop_grp == 4: a(f"s_waitcnt vmcnt({self.pace})")
        for i in range(4):
            a(f"buffer_load_dwordx4 {vr(v+4*i,4)}, v{self.vV}, {srd(S_V)}, s{sOFF} offen offset:{256*i} nt")
        a.label(f"L_back_{slot}", fence=False)

    def atomic_req(self):
        a = self.a
        a("s_mov_b64 exec, 1")
        a(f"v_mov_b32 v{self.vPL}, 1")
        a(f"buffer_atomic_add v{self.vPL}, v{self.vZ}, {srd(S_WS)}, s{sPOOL} offen {self.atom_flags}")
        a("s_mov_b64 exec, -1")

    def slow(self, slot):
        a = self.a
        a.label(f"L_slow_{slot}")
        a(f"s_cmp_lg_u32 s{sST}, 0")
        a(f"s_cbranch_scc1 L_alt_{slot}")
        a(f"s_waitcnt vmcnt({min(self.pace, 8)})")
        a(f"s_cmp_lt_u32 s30, {self.NS}")
        a(f"s_cbranch_scc0 L_pool_{slot}")
        a(f"s_lshl_b32 s{sOFF}, s30, 12")
        a(f"s_add_u32 s{sOFF}, s{sOFF}, s{sHOME}")
        if self.stamps:
            a(f"s_cmp_lg_u32 s{sPEND}, 0")
            a(f"s_cbranch_scc1 L_pref_{slot}")
            self.stamp(10)
        a(f"s_branch L_pref_{slot}")
        a.label(f"L_pool_{slot}", fence=False)
        a(f"s_cmp_lg_u32 s{sPEND}, 0")
        a(f"s_cbranch_scc1 L_have_{slot}")
        self.atomic_req()
        a("s_waitcnt vmcnt(0)")
        a.label(f"L_have_{slot}")
        self.stamp(11)
        a(f"v_readfirstlane_b32 s92, v{self.vPL}")
        a(f"s_mov_b32 s{sPEND}, 0")
        a(f"s_cmp_ge_u32 s92, s{sQ}")
        a(f"s_cselect_b32 s{sST}, 1, 0")
        a(f"s_cselect_b32 s{sLIM}, 0, s{sLIM}")
        a(f"s_cmp_lt_u32 s92, {self.P}")
        a(f"s_cbranch_scc0 L_alt_{slot}")
        a(f"""
        s_bfe_u32 s93, s92, 0x40002
        s_lshl_b32 s93, s93, 19
        s_lshr_b32 s94, s92, 6
        s_lshl_b32 s94, s94, 2
        s_and_b32 s92, s92, 3
        s_or_b32 s92, s92, s94
        s_add_u32 s92, s92, {self.NS}
        s_lshl_b32 s92, s92, 12
        s_add_u32 s{sOFF}, s93, s92
        """)
        a.label(f"L_pref_{slot}", fence=False)
        a(f"s_or_b32 s92, s{sST}, s{sPEND}")
        a(f"s_cmp_lg_u32 s92, 0")
        a(f"s_cbranch_scc1 L_kv_{slot}")
        self.atomic_req()
        a(f"s_mov_b32 s{sPEND}, 1")
        a.branch(f"s_branch L_kv_{slot}")
        a.label(f"L_alt_{slot}")
        nq = [q for q in range(8 * slot, 8 * slot + 8)]
        if any(q < 26 for q in nq):
            a(f"s_cmp_eq_u32 s{sCLS}, 0")
            a(f"s_cbranch_scc1 L_wblk_{slot}")
        for i in range(8):
            a(f"buffer_load_dword v{self.vDUM}, v{self.vZ}, {srd(S_K)}, s{sOOB} offen")
        a.branch(f"s_branch L_back_{slot}")
        if any(q < 26 for q in nq):
            a.label(f"L_wblk_{slot}")
            for n, q in enumerate(nq):
                if n % 4 == 0: a(f"s_waitcnt vmcnt({self.wpace})")
                r = self.RING + 4 * q
                if q < 18:
                    a(f"s_add_u32 s92, s{sGUB}, {q * 8 * 9216}")
                    a(f"buffer_load_dwordx4 {vr(r,4)}, v{self.vGU}, {srd(S_WG)}, s92 offen nt")
                elif q < 26:
                    a(f"s_add_u32 s92, s{sWDB}, {(q - 18) * 8 * 1152}")
                    a(f"buffer_load_dwordx4 {vr(r,4)}, v{self.vWDA}, {srd(S_WD)}, s92 offen nt")
                else:
                    a(f"buffer_load_dword v{self.vDUM}, v{self.vZ}, {srd(S_K)}, s{sOOB} offen")
            a.branch(f"s_branch L_back_{slot}")

    loop_grp = 8
    vTK, vZ, vOne = 13, 14, 15
    vPL, vDUM, vGU, vWDA = 3, 63, 60, 61

    def streaming(self):
        a = self.a; R = self.R
        a(f"""
        v_and_b32 v3, 15, v0
        v_lshlrev_b32 v{self.vK}, 8, v3
        v_lshlrev_b32 v{self.vV}, 4, v3
        v_lshrrev_b32 v3, 4, v0
        v_lshl_add_u32 v{self.vK}, v3, 4, v{self.vK}
        v_lshl_add_u32 v{self.vV}, v3, 10, v{self.vV}
        s_lshl_b32 s30, s{sG}, 23
        s_lshl_b32 s{sHOME}, s{sJ}, 19
        s_lshl_b32 s{sOFF}, s{sWAVE}, 12
        s_add_u32 s{sOFF}, s{sOFF}, s{sHOME}
        v_mov_b32 v{self.vZ}, 0
        v_mov_b32 v{self.vOne}, 1
        s_mov_b32 s{sSCALE}, {SCALE:#x}
        s_mov_b32 s{sSCALE+1}, {SCALE:#x}
        """)
        self.mk_masks(self.vT, self.vT + 1, 3)
        a(f"""
        v_mov_b32 v{self.vL}, 0
        v_mov_b32 v{self.vL+1}, 0
        v_mov_b32 v{self.vM}, 0xff7fffff
        """)
        for r in range(4):
            a(f"v_mov_b32 v{self.vO+r}, 0")
        a(f"""
        v_bfe_u32 v3, v0, 3, 1
        v_lshlrev_b32 v3, 8, v3
        v_lshrrev_b32 v{self.vT}, 4, v0
        v_lshl_add_u32 v3, v{self.vT}, 4, v3
        s_waitcnt lgkmcnt(0)
        """)
        self.mk_srd(S_K, 6, 0x800000, add="s30")
        self.mk_srd(S_V, 8, 0x800000, add="s30")
        a("s_barrier")
        for s in range(R):
            self.issue(s, grp=self.pro_grp, wait=(self.pro_wait if s > 0 or self.pro_grp < 8 else None))
            if s == 0:
                self.stamp(0)
                a(f"s_load_dword s{sTAG}, s[28:29], {WS_EPOCH}")
                self.mk_srd(S_WS, 28, WS_SIZE)
                self.mk_srd(S_WD, 20, 4608 * 576 * 2)
                self.mk_srd(S_X, 4, 1152)
                self.mk_srd(S_OUT, 26, 1152)
                a(f"s_cmp_lt_u32 s{sWAVE}, 4")
                a("s_cbranch_scc0 L_gu_up")
                self.mk_srd(S_WG, 16, 576 * 4608 * 2)
                a("s_branch L_gu_done")
                a.label("L_gu_up", fence=False)
                self.mk_srd(S_WG, 18, 576 * 4608 * 2)
                a.label("L_gu_done", fence=False)
                self.mk_sub(self.vT, self.vT + 1)
                a(f"""
                v_and_b32 v{self.vT+1}, 7, v0
                v_lshlrev_b32 v{self.vT+1}, 4, v{self.vT+1}
                v_mul_u32_u24 v{self.vGU}, 9216, v{self.vT}
                v_add_u32 v{self.vGU}, v{self.vGU}, v{self.vT+1}
                v_mul_u32_u24 v{self.vWDA}, 1152, v{self.vT}
                v_add_u32 v{self.vWDA}, v{self.vWDA}, v{self.vT+1}
                s_and_b32 s92, s{sWAVE}, 3
                s_mul_i32 s{sGUB}, s92, {144 * 9216}
                s_lshl_b32 s92, s{sIDX}, 7
                s_add_u32 s{sGUB}, s{sGUB}, s92
                s_mul_i32 s{sWDB}, s{sIDX}, {64 * 1152}
                s_lshl_b32 s92, s{sWAVE}, 7
                s_add_u32 s{sWDB}, s{sWDB}, s92
                s_mov_b32 s{sOOB}, 0x800000
                s_mov_b32 s{sST}, 0
                s_mov_b32 s{sPEND}, 0
                s_mov_b32 s{sLIM}, {self.NS - self.look}
                s_mov_b32 s{sQ}, {self.P}
                s_cmp_eq_u32 s{sCLS}, 0
                s_cselect_b32 s{sQ}, {min(self.QF, self.P)}, s{sQ}
                s_mul_i32 s{sPOOL}, s{sG}, {self.pstride}
                s_add_u32 s{sPOOL}, s{sPOOL}, {WS_POOL}
                """)
                a("s_waitcnt lgkmcnt(0)")
                a(f"s_mul_i32 s{sTAG}, s{sTAG}, 0x9E3779B1")
                a(f"s_add_u32 s{sTAG}, s{sTAG}, 0x7F4A7C15")
        self.stamp(1)
        a("s_barrier")
        for i in range(4):
            a(f"ds_read_b128 {vr(self.vQ+4*i,4)}, v3 offset:{Q_LDS+64*i}")
        a(f"s_mov_b32 s{sCNT}, {R}")
        a("s_waitcnt lgkmcnt(0)")
        self.stamp(2)
        a.label("L_loop")
        for s in range(R):
            self.block(s, 4 + 8 * (R - 1), 8 * (R - 1))
            a(f"s_sub_u32 s{sCNT}, s{sCNT}, 1")
            a(f"s_cmp_eq_u32 s{sCNT}, 0")
            if s < R - 1:
                a.branch("s_cbranch_scc1 L_epi")
            else:
                a.branch("s_cbranch_scc0 L_loop")
        a.label("L_epi")
        self.stamp(3)
        L = self.vL; T = self.vT
        a(f"v_add_f32 v{L}, v{L}, v{L+1}")
        self.cross_rows("add", [L], [T])
        a(f"""
        v_bfe_u32 v3, v0, 3, 1
        v_lshlrev_b32 v3, 9, v3
        v_lshrrev_b32 v{T+1}, 4, v0
        v_lshl_add_u32 v3, v{T+1}, 7, v3
        v_and_b32 v{T+1}, 7, v0
        v_lshl_add_u32 v3, v{T+1}, 2, v3
        s_lshl_b32 s30, s{sWAVE}, 10
        v_add_u32 v3, s30, v3
        """)
        for r in range(4):
            a(f"ds_write_b32 v3, v{self.vO+r} offset:{PART_LDS+32*r}")
        a(f"""
        v_bfe_u32 v{T+1}, v0, 3, 1
        v_lshlrev_b32 v{T+1}, 5, v{T+1}
        s_lshl_b32 s30, s{sWAVE}, 2
        v_add_u32 v{T+1}, s30, v{T+1}
        s_mov_b64 exec, 0x101
        ds_write_b32 v{T+1}, v{self.vM} offset:{ML_LDS}
        ds_write_b32 v{T+1}, v{L} offset:{ML_LDS+64}
        s_mov_b64 exec, -1
        s_cmp_eq_u32 s{sCLS}, 0
        """)
        a.branch("s_cbranch_scc1 L_ffn_tail")
        a(f"s_cmp_eq_u32 s{sCLS}, 2")
        a.branch("s_cbranch_scc1 L_wo_tail")
        a("""
        s_waitcnt lgkmcnt(0)
        s_barrier
        """)
        self.stamp(4)
        self.stamp_flush()
        a("s_endpgm")
        for s in range(R):
            self.slow(s)

    def wo_tail(self):
        a = self.a
        a.label("L_wo_tail")
        a(f"s_cmp_lt_u32 s{sWAVE}, 4")
        a.branch("s_cbranch_scc0 L_wo_c")
        a(f"""
        s_lshl_b32 s30, s{sWAVE}, 6
        v_add_u32 v1, s30, v0
        v_lshlrev_b32 v2, 2, v1
        v_lshrrev_b32 v8, 5, v1
        v_lshlrev_b32 v8, 6, v8
        v_bfe_u32 v9, v1, 2, 2
        v_lshl_add_u32 v8, v9, 4, v8
        v_bfe_u32 v9, v1, 4, 1
        v_lshl_add_u32 v8, v9, 3, v8
        v_and_b32 v9, 3, v1
        v_lshl_add_u32 v8, v9, 1, v8
        v_and_b32 v3, 15, v0
        v_lshlrev_b32 v3, 4, v3
        s_lshr_b32 s30, s{sWAVE}, 1
        s_lshl_b32 s30, s30, 3
        v_add_u32 v3, s30, v3
        s_lshl_b32 s30, s{sG}, 14
        s_add_u32 s92, s30, {WS_T1O}
        s_add_u32 s93, s92, 4096
        s_add_u32 s94, s92, 8192
        s_add_u32 s95, s92, 12288
        s_lshl_b32 s30, s{sG}, 8
        s_add_u32 s96, s30, {WS_T1ML}
        s_waitcnt lgkmcnt(0)
        s_barrier
        """)
        self.stamp(4)
        D = 16
        self.poll_begin("L_t1poll")
        a(f"buffer_load_dwordx2 v[32:33], v3, {srd(S_WS)}, s96 offen sc1")
        for s in range(16):
            a(f"buffer_load_dword v{D+s}, v2, {srd(S_WS)}, s{92 + s//4} offen offset:{1024*(s%4)} sc1")
        a("s_waitcnt vmcnt(16)")
        a("v_mov_b32 v34, v32")
        self.row_allreduce("max", [34])
        a("v_sub_f32 v35, v32, v34")
        a("v_exp_f32 v35, v35")
        a("v_mul_f32 v36, v35, v33")
        self.row_allreduce("add", [36])
        a("v_rcp_f32 v36, v36")
        a("v_mul_f32 v35, v35, v36")
        a("v_mov_b32 v37, 0")
        for s in range(16):
            if s % 4 == 0:
                a(f"s_waitcnt vmcnt({12 - s})")
            a(f"v_fmac_f32_dpp v37, v35, v{D+s} row_newbcast:{s} row_mask:0xf bank_mask:0xf")
        a("v_cmp_u_f32 vcc, v37, v37")
        self.poll_end("L_t1poll")
        a(f"v_cvt_pk_bf16_f32 v37, v37, v37")
        a(f"ds_write_b16 v8, v37 offset:{O_LDS}")
        a("s_waitcnt lgkmcnt(0)")
        self.stamp(5)
        a("s_barrier")
        self.stamp_flush()
        a("s_endpgm")
        a.label("L_wo_c")
        a("""
        s_waitcnt lgkmcnt(0)
        s_barrier
        """)
        self.stamp(4)
        a.label("L_wo_mm")
        WOF = 64; OF = 96
        a(f"""
        s_sub_u32 s30, s{sWAVE}, 4
        v_bfe_u32 v1, v0, 4, 1
        v_bfe_u32 v2, v0, 2, 2
        v_lshl_add_u32 v1, v1, 2, v2
        v_bfe_u32 v2, v0, 1, 1
        s_lshl_b32 s31, s30, 1
        v_add_u32 v2, s31, v2
        v_and_b32 v3, 6, v1
        v_xor_b32 v2, v2, v3
        v_lshlrev_b32 v2, 4, v2
        v_lshl_add_u32 v2, v1, 7, v2
        v_and_b32 v3, 1, v0
        v_lshl_add_u32 v2, v3, 3, v2
        v_lshrrev_b32 v3, 5, v0
        v_lshl_add_u32 v2, v3, 10, v2
        v_add_u32 v2, {IMG_LDS}, v2
        v_lshrrev_b32 v3, 4, v0
        v_lshlrev_b32 v3, 4, v3
        """)
        for ks in range(8):
            a(f"ds_read_b64_tr_b16 {vr(WOF+4*ks,2)}, v2 offset:{4096*ks}")
            a(f"ds_read_b64_tr_b16 {vr(WOF+4*ks+2,2)}, v2 offset:{4096*ks+2048}")
        a(f"""
        s_mul_i32 s31, s{sG}, 2304
        s_lshl_b32 s93, s{sIDX}, 8
        s_add_u32 s93, s93, s31
        s_lshl_b32 s31, s30, 6
        s_add_u32 s93, s93, s31
        s_add_u32 s93, s93, {WS_T2}
        s_mov_b32 s30, 0x00010001
        s_mov_b32 s31, 0x00010001
        s_waitcnt lgkmcnt(0)
        s_barrier
        """)
        for s in range(8):
            a(f"ds_read_b128 {vr(OF+4*s,4)}, v3 offset:{O_LDS+64*s}")
        for s in range(8):
            a(f"s_waitcnt lgkmcnt({7-s})")
            c = "0" if s == 0 else vr(12, 4)
            a(f"v_mfma_f32_16x16x32_bf16 {vr(12,4)}, {vr(WOF+4*s,4)}, {vr(OF+4*s,4)}, {c}")
        a(f"""
        s_mov_b64 exec, s[30:31]
        buffer_store_dwordx4 v[12:15], v3, {srd(S_WS)}, s93 offen sc1
        s_mov_b64 exec, -1
        """)
        self.stamp(6)
        a.branch("s_branch L_fin")

    GU = 64
    WD = 136
    WDX = 168
    def TD(self, s): return 16 + 4 * s if s < 9 else 200 + 4 * (s - 9)
    CX, CGA, CCB, CSB = 228, 230, 234, 238
    ACC4 = 244
    UX = 168
    GBQ = 184
    FINW = 6

    def ffn_addr(self):
        a = self.a
        self.mk_sub(1, 2)
        a(f"""
        v_mul_u32_u24 v8, {HD_P}, v1
        s_and_b32 s30, s{sWAVE}, 3
        s_mul_i32 s30, s30, {8 * HD_P}
        s_add_u32 s30, s30, {HD2_LDS}
        v_add_u32 v8, s30, v8
        v_lshlrev_b32 v11, 2, v1
        v_lshrrev_b32 v12, 4, v0
        v_lshlrev_b32 v12, 4, v12
        v_and_b32 v9, 7, v0
        v_lshl_add_u32 v12, v9, 5, v12
        s_lshl_b32 s30, s{sWAVE}, 8
        s_add_u32 s30, s30, {PX_LDS}
        v_add_u32 v9, s30, v12
        v_lshlrev_b32 v10, 2, v0
        v_add_u32 v10, {PX_LDS}, v10
        """)

    def ffn_tail(self):
        a = self.a
        GU = self.GU; WD = self.WD
        a.label("L_ffn_tail")
        self.ffn_addr()
        a(f"s_cmp_lt_u32 s{sWAVE}, 3")
        a("s_cbranch_scc0 L_ffn_nog")
        a(f"""
        s_lshl_b32 s30, s{sWAVE}, 6
        v_add_u32 v52, s30, v0
        v_lshlrev_b32 v53, 4, v52
        v_lshlrev_b32 v54, 3, v52
        v_cmp_gt_u32 vcc, 144, v52
        v_mov_b32 v55, 0x7ffffff0
        v_cndmask_b32 v55, v55, v53, vcc
        v_min_u32 v56, 143, v52
        v_lshlrev_b32 v56, 4, v56
        v_mul_u32_u24 v57, 57, v52
        v_lshrrev_b32 v57, 11, v57
        v_mul_u32_u24 v58, 36, v57
        v_sub_u32 v58, v52, v58
        v_mul_u32_u24 v57, {8 * HD_P}, v57
        v_lshrrev_b32 v59, 1, v58
        v_lshl_add_u32 v57, v59, 2, v57
        v_and_b32 v58, 1, v58
        v_mul_u32_u24 v58, {4 * HD_P}, v58
        v_add_u32 v57, v57, v58
        v_add_u32 v57, {HD2_LDS}, v57
        buffer_load_dwordx2 {vr(self.CX,2)}, v54, {srd(S_X)}, 0 offen
        """)
        a.label("L_ffn_nog")
        a("""
        s_waitcnt lgkmcnt(0)
        s_barrier
        """)
        self.stamp(4)
        a.label("L_ffn_post")
        a(f"s_cmp_lt_u32 s{sWAVE}, 3")
        a.branch("s_cbranch_scc0 L_ffn_w3")
        a(f"""
        s_mov_b32 s92, {WS_P3}
        s_mov_b32 s93, {WS_P3 + 2304}
        s_mov_b32 s94, {WS_P3 + 4608}
        """)
        self.poll_begin("L_p3poll")
        a(f"buffer_load_dwordx4 {vr(self.CGA,4)}, v56, {srd(S_WS)}, s92 offen sc1")
        a(f"buffer_load_dwordx4 {vr(self.CSB,4)}, v56, {srd(S_WS)}, s93 offen sc1")
        a(f"buffer_load_dwordx4 {vr(self.CCB,4)}, v56, {srd(S_WS)}, s94 offen sc1")
        a("s_waitcnt vmcnt(0)")
        regs = []
        for q in (self.CGA, self.CSB, self.CCB): regs += [q + 1, q + 3]
        self.tagcheck(regs, 58, 59)
        self.poll_end("L_p3poll")
        X, GA, CB, SB = self.UX, self.UX + 4, self.UX + 8, self.UX + 12
        for dst, lo, hi in ((X, self.CX, self.CX + 1), (GA, self.CGA, self.CGA + 2), (CB, self.CCB, self.CCB + 2), (SB, self.CSB, self.CSB + 2)):
            a(f"v_lshlrev_b32 v{dst}, 16, v{lo}")
            a(f"v_and_b32 v{dst+1}, 0xffff0000, v{lo}")
            a(f"v_lshlrev_b32 v{dst+2}, 16, v{hi}")
            a(f"v_and_b32 v{dst+3}, 0xffff0000, v{hi}")
        for r in range(4):
            a(f"v_add_f32 v{CB+r}, 1.0, v{CB+r}")
        for r in range(4): self.rnd(CB + r, CB + r)
        self.stamp(8)
        for k in range(8):
            a(f"s_mov_b32 s{92+k}, {WS_T2 + 4608*k}")
        self.poll_begin("L_t2poll")
        for s in range(16):
            a(f"buffer_load_dwordx4 {vr(self.TD(s),4)}, v55, {srd(S_WS)}, s{92 + s//2} offen offset:{2304*(s%2)} sc1")
        AC = self.ACC4
        for s in range(1, 16):
            a(f"s_waitcnt vmcnt({15 - s})")
            src = self.TD(0) if s == 1 else AC
            a(f"v_pk_add_f32 {vr(AC,2)}, {vr(src,2)}, {vr(self.TD(s),2)}")
            a(f"v_pk_add_f32 {vr(AC+2,2)}, {vr(src+2,2)}, {vr(self.TD(s)+2,2)}")
        a(f"v_add_f32 v248, v{AC}, v{AC+1}")
        a(f"v_add_f32 v249, v{AC+2}, v{AC+3}")
        a("v_add_f32 v248, v248, v249")
        a("v_cmp_u_f32 vcc, v248, v248")
        self.poll_end("L_t2poll")
        self.stamp(5)
        for r in range(4): self.rnd(AC + r, AC + r)
        a(f"v_pk_mul_f32 {vr(AC,2)}, {vr(AC,2)}, {vr(GA,2)}")
        a(f"v_pk_mul_f32 {vr(AC+2,2)}, {vr(AC+2,2)}, {vr(GA+2,2)}")
        for r in range(4): self.rnd(AC + r, AC + r)
        a(f"v_pk_add_f32 {vr(AC,2)}, {vr(AC,2)}, {vr(X,2)}")
        a(f"v_pk_add_f32 {vr(AC+2,2)}, {vr(AC+2,2)}, {vr(X+2,2)}")
        for r in range(4): self.rnd(AC + r, AC + r)
        a(f"ds_write_b128 v53, {vr(AC,4)} offset:{X1_LDS}")
        a(f"v_add_f32 v248, v{AC}, v{AC+1}")
        a(f"v_mul_f32 v249, v{AC}, v{AC}")
        a(f"v_add_f32 v250, v{AC+2}, v{AC+3}")
        a(f"v_fmac_f32 v249, v{AC+1}, v{AC+1}")
        a(f"v_add_f32 v248, v248, v250")
        a(f"v_fmac_f32 v249, v{AC+2}, v{AC+2}")
        a(f"v_fmac_f32 v249, v{AC+3}, v{AC+3}")
        self.row_allreduce("add", [248, 249])
        self.cross_rows("add", [248, 249], [250, 251])
        a(f"""
        s_lshl_b32 s30, s{sWAVE}, 3
        v_mov_b32 v250, s30
        s_mov_b64 exec, 1
        ds_write_b64 v250, v[248:249] offset:{ST_LDS}
        s_mov_b64 exec, -1
        s_waitcnt lgkmcnt(0)
        s_barrier
        v_mov_b32 v250, 0
        ds_read_b128 v[20:23], v250 offset:{ST_LDS}
        ds_read_b64 v[24:25], v250 offset:{ST_LDS+16}
        s_waitcnt lgkmcnt(0)
        v_add_f32 v248, v20, v22
        v_add_f32 v249, v21, v23
        v_add_f32 v248, v248, v24
        v_add_f32 v249, v249, v25
        v_mul_f32 v248, {f32(1.0/576.0)}, v248
        v_mul_f32 v249, {f32(1.0/576.0)}, v249
        v_fma_f32 v249, -v248, v248, v249
        v_max_f32 v249, 0, v249
        """)
        self.ln_finish(248, 249)
        for r in range(4):
            a(f"v_sub_f32 v{AC+r}, v{AC+r}, v248")
        for r in range(4): self.rnd(AC + r, AC + r)
        for r in range(4):
            a(f"v_mul_f32 v{AC+r}, v{AC+r}, v249")
        for r in range(4): self.rnd(AC + r, AC + r)
        a(f"v_pk_mul_f32 {vr(AC,2)}, {vr(AC,2)}, {vr(CB,2)}")
        a(f"v_pk_mul_f32 {vr(AC+2,2)}, {vr(AC+2,2)}, {vr(CB+2,2)}")
        for r in range(4): self.rnd(AC + r, AC + r)
        a(f"v_pk_add_f32 {vr(AC,2)}, {vr(AC,2)}, {vr(SB,2)}")
        a(f"v_pk_add_f32 {vr(AC+2,2)}, {vr(AC+2,2)}, {vr(SB+2,2)}")
        if self.dbg:
            a(f"v_cvt_pk_bf16_f32 v250, v{AC}, v{AC+1}")
            a(f"v_cvt_pk_bf16_f32 v251, v{AC+2}, v{AC+3}")
            a(f"s_lshl_b32 s92, s{sIDX}, 11")
            a(f"s_add_u32 s92, s92, {WS_DBG}")
            a(f"buffer_store_dwordx2 v[250:251], v54, {srd(S_WS)}, s92 offen")
        for r in range(4):
            a(f"v_cvt_pk_bf16_f32 v{AC+r}, v{AC+r}, v{AC+r}")
        a(f"ds_write2_b32 v57, v{AC}, v{AC+1} offset0:0 offset1:{HD_P//4}")
        a(f"ds_write2_b32 v57, v{AC+2}, v{AC+3} offset0:{2*HD_P//4} offset1:{3*HD_P//4}")
        a("s_waitcnt lgkmcnt(0)")
        self.stamp(6)
        a.branch("s_branch L_ffn_b4")
        a.label("L_ffn_w3")
        a(f"s_cmp_eq_u32 s{sWAVE}, {self.FINW}")
        a("s_cbranch_scc0 L_ffn_nogb")
        a(f"""
        v_and_b32 v56, 3, v0
        v_lshlrev_b32 v56, 4, v56
        s_min_u32 s92, s{sIDX}, 35
        s_lshl_b32 s92, s92, 6
        s_add_u32 s92, s92, {WS_P3 + 1728*4}
        """)
        self.poll_begin("L_gbpoll")
        a(f"buffer_load_dwordx4 {vr(self.GBQ,4)}, v56, {srd(S_WS)}, s92 offen sc1")
        a("s_waitcnt vmcnt(0)")
        self.tagcheck([self.GBQ + 1, self.GBQ + 3], 58, 59)
        self.poll_end("L_gbpoll")
        a.label("L_ffn_nogb")
        a("s_barrier")
        a.label("L_ffn_b4")
        a("s_barrier")
        AV = 16
        for q in range(5):
            a(f"ds_read_b128 {vr(AV+4*q,4)}, v8 offset:{16*q}")
        kb = 0.7978845608028654; kk = 0.044715
        c1 = -2.0 * kb * 1.4426950408889634
        a(f"""
        s_mov_b32 s92, {f32(kk)}
        s_mov_b32 s30, 0x00ff00ff
        s_mov_b32 s31, 0
        s_mul_i32 s93, s{sIDX}, 2304
        s_lshl_b32 s94, s{sWAVE}, 8
        s_add_u32 s93, s93, s94
        s_add_u32 s93, s93, {WS_T3}
        s_waitcnt vmcnt(0) lgkmcnt(0)
        """)
        self.stamp(9)
        self.gemv(GU, 18, [AV + t for t in range(18)], 40, 48, True)
        self.halfsum(48, 52)
        a(f"""
        s_mov_b64 exec, s[30:31]
        ds_write_b128 v9, v[48:51]
        s_mov_b64 exec, -1
        s_waitcnt lgkmcnt(0)
        s_barrier
        """)
        for w in range(8):
            a(f"ds_read_b32 v{16+w}, v10 offset:{256*w}")
        a(f"""
        s_waitcnt lgkmcnt(4)
        v_add_f32 v16, v16, v17
        v_add_f32 v18, v18, v19
        v_add_f32 v24, v16, v18
        s_waitcnt lgkmcnt(0)
        v_add_f32 v20, v20, v21
        v_add_f32 v22, v22, v23
        v_add_f32 v25, v20, v22
        """)
        self.rnd(24, 24)
        self.rnd(25, 25)
        a(f"""
        v_mul_f32 v26, v24, v24
        v_fma_f32 v26, v26, s92, 1.0
        v_mul_f32 v26, v26, v24
        v_mul_f32 v26, {f32(c1)}, v26
        v_exp_f32 v26, v26
        v_add_f32 v26, 1.0, v26
        v_rcp_f32 v26, v26
        v_mul_f32 v26, v26, v24
        """)
        self.rnd(26, 26)
        a("v_mul_f32 v26, v26, v25")
        a("v_cvt_pk_bf16_f32 v26, v26, v26")
        if self.dbg:
            a(f"""
            v_lshlrev_b32 v54, 1, v0
            s_lshl_b32 s92, s{sIDX}, 7
            s_add_u32 s92, s92, {WS_DBG + 0x40000}
            buffer_store_short v26, v54, {srd(S_WS)}, s92 offen
            s_add_u32 s92, s92, 0x4000
            buffer_store_short_d16_hi v24, v54, {srd(S_WS)}, s92 offen
            s_add_u32 s92, s92, 0x4000
            buffer_store_short_d16_hi v25, v54, {srd(S_WS)}, s92 offen
            """)
        for t in range(8):
            a(f"ds_bpermute_b32 v{16+t}, v11, v26 offset:{32*t}")
        a("s_waitcnt lgkmcnt(0)")
        AVd = [16 + t for t in range(8)]
        self.gemv(WD, 8, AVd, 40, 48, True)
        self.halfsum(48, 52)
        a(f"""
        s_mov_b64 exec, s[30:31]
        buffer_store_dwordx4 v[48:51], v12, {srd(S_WS)}, s93 offen sc1
        s_mov_b64 exec, -1
        """)
        a(f"s_cmp_eq_u32 s{sWAVE}, 7")
        a("s_cbranch_scc0 L_ffn_nod3")
        self.gemv(self.WDX, 8, AVd, 40, 36, True)
        self.halfsum(36, 32)
        a(f"""
        s_mul_i32 s93, s{sIDX}, 2304
        s_add_u32 s93, s93, {WS_T3 + 8*256}
        s_mov_b64 exec, s[30:31]
        buffer_store_dwordx4 v[36:39], v12, {srd(S_WS)}, s93 offen sc1
        s_mov_b64 exec, -1
        """)
        a.label("L_ffn_nod3")
        self.stamp(7)
        a(f"s_cmp_eq_u32 s{sWAVE}, {self.FINW}")
        a.branch("s_cbranch_scc0 L_fin")
        a(f"s_cmp_lt_u32 s{sIDX}, 36")
        a.branch("s_cbranch_scc0 L_fin")
        a(f"""
        v_lshrrev_b32 v1, 2, v0
        v_mul_u32_u24 v2, 2304, v1
        v_and_b32 v3, 3, v0
        v_lshl_add_u32 v2, v3, 4, v2
        v_cmp_gt_u32 vcc, 8, v1
        v_mov_b32 v8, 0x7ffffff0
        v_cndmask_b32 v8, v8, v2, vcc
        v_lshlrev_b32 v9, 4, v3
        s_lshl_b32 s30, s{sIDX}, 6
        v_add_u32 v9, s30, v9
        v_lshrrev_b32 v10, 1, v9
        ds_read_b128 v[40:43], v9 offset:{X1_LDS}
        s_add_u32 s92, s30, {WS_T3}
        s_add_u32 s93, s92, {16*2304}
        s_add_u32 s94, s92, {32*2304}
        s_add_u32 s95, s92, {48*2304}
        s_add_u32 s96, s92, {64*2304}
        """)
        self.poll_begin("L_t3poll")
        for t in range(5):
            a(f"buffer_load_dwordx4 {vr(16+4*t,4)}, v{2 if t < 4 else 8}, {srd(S_WS)}, s{92+t} offen sc1")
        for t in range(1, 5):
            a(f"s_waitcnt vmcnt({4-t})")
            a(f"v_pk_add_f32 v[16:17], v[16:17], {vr(16+4*t,2)}")
            a(f"v_pk_add_f32 v[18:19], v[18:19], {vr(18+4*t,2)}")
        self.row_allreduce("add", [16, 17, 18, 19], shifts=(8, 4))
        self.cross_rows("add", [16, 17, 18, 19], [20, 21, 22, 23])
        a("v_add_f32 v24, v16, v17")
        a("v_add_f32 v25, v18, v19")
        a("v_add_f32 v24, v24, v25")
        a("v_cmp_u_f32 vcc, v24, v24")
        self.poll_end("L_t3poll")
        for r in range(4): self.rnd(16 + r, 16 + r)
        a(f"""
        v_lshlrev_b32 v20, 16, v{self.GBQ}
        v_and_b32 v21, 0xffff0000, v{self.GBQ}
        v_lshlrev_b32 v22, 16, v{self.GBQ+2}
        v_and_b32 v23, 0xffff0000, v{self.GBQ+2}
        s_waitcnt lgkmcnt(0)
        v_pk_mul_f32 v[16:17], v[16:17], v[20:21]
        v_pk_mul_f32 v[18:19], v[18:19], v[22:23]
        """)
        for r in range(4): self.rnd(16 + r, 16 + r)
        a(f"""
        v_pk_add_f32 v[16:17], v[16:17], v[40:41]
        v_pk_add_f32 v[18:19], v[18:19], v[42:43]
        v_cvt_pk_bf16_f32 v16, v16, v17
        v_cvt_pk_bf16_f32 v17, v18, v19
        s_mov_b64 exec, 0xf
        buffer_store_dwordx2 v[16:17], v10, {srd(S_OUT)}, 0 offen
        s_mov_b64 exec, -1
        """)
        a.label("L_fin")
        a("s_cmp_eq_u32 s2, 0")
        a("s_cbranch_scc0 L_fin2")
        a(f"s_cmp_eq_u32 s{sWAVE}, 7")
        a("s_cbranch_scc0 L_fin2")
        a(f"""
        s_load_dword s30, s[28:29], {WS_EPOCH}
        s_waitcnt lgkmcnt(0)
        s_add_u32 s30, s30, 1
        v_mov_b32 v16, s30
        v_mov_b32 v17, {WS_EPOCH}
        s_mov_b64 exec, 1
        buffer_store_dword v16, v17, {srd(S_WS)}, 0 offen sc1
        s_mov_b64 exec, -1
        """)
        a.label("L_fin2")
        self.stamp_flush()
        a("s_endpgm")

    def service(self):
        a = self.a
        a.label("L_service")
        AV = 16
        ASET = 40
        ACC = 48
        T4 = 52
        WA = 64
        WQ = 136
        XR = 208
        XP = 214
        CR = 216
        XV = 220
        NP = 232
        G = 64
        PROD = f"s_cmp_lt_i32 s{sPA}, 0"
        a(f"""
        s_setprio 3
        v_lshlrev_b32 v1, 1, v0
        v_lshlrev_b32 v3, 3, v0
        v_lshlrev_b32 v2, 2, v0
        v_lshlrev_b32 v8, 4, v0
        """)
        self.mk_sub(9, 10)
        a(f"""
        v_and_b32 v10, 7, v0
        v_lshlrev_b32 v10, 4, v10
        v_mul_u32_u24 v11, 6912, v9
        v_add_u32 v11, v11, v10
        v_lshl_add_u32 v12, v9, 13, v10
        v_mul_u32_u24 v13, {HD_P}, v9
        s_and_b32 s92, s{sPA}, 3
        s_lshr_b32 s93, s{sPA}, 2
        s_mul_i32 s94, s92, 288
        s_mul_i32 s95, s92, {144*6912}
        s_lshl_b32 s96, s93, 7
        s_add_u32 s95, s95, s96
        s_waitcnt lgkmcnt(0)
        s_load_dword s{sTAG}, s[28:29], {WS_EPOCH}
        """)
        self.mk_srd(S_C, 22, 1152)
        self.mk_srd(S_WMOD, 24, 576 * 3456 * 2)
        a(PROD)
        a("s_cbranch_scc1 L_sv_nop1a")
        for i in range(3):
            a(f"buffer_load_ushort v{CR+i}, v1, {srd(S_C)}, s94 offen offset:{128*i}")
        for t in range(18):
            a(f"buffer_load_dwordx4 {vr(WA+4*t,4)}, v11, {srd(S_WMOD)}, s95 offen nt")
            if t < 17: a(f"s_add_u32 s95, s95, {8*6912}")
        a.label("L_sv_nop1a")
        a("s_barrier")
        a(f"v_mov_b32 v56, {7*self.R}")
        a("v_mov_b32 v57, 0")
        a(f"ds_write_b32 v57, v56 offset:{CTR_LDS}")
        self.mk_srd(S_X, 4, 1152)
        self.mk_srd(S_WQ, 10, 576 * 4096 * 2)
        for j in range(3):
            a(f"buffer_load_dwordx2 {vr(XR+2*j,2)}, v3, {srd(S_X)}, 0 offen offset:{512*j}")
        a(f"""
        s_lshr_b32 s96, s{sJ}, 2
        s_mul_i32 s97, s96, 288
        buffer_load_dword v{XP}, v2, {srd(S_X)}, s97 offen
        buffer_load_dword v{XP+1}, v2, {srd(S_X)}, s97 offen offset:256
        s_mul_i32 s98, s96, {144*8192}
        s_lshl_b32 s99, s{sG}, 9
        s_add_u32 s98, s98, s99
        s_and_b32 s99, s{sJ}, 3
        s_lshl_b32 s99, s99, 7
        s_add_u32 s98, s98, s99
        """)
        for t in range(18):
            a(f"buffer_load_dwordx4 {vr(WQ+4*t,4)}, v12, {srd(S_WQ)}, s98 offen nt")
            if t < 17: a(f"s_add_u32 s98, s98, {8*8192}")
        self.mk_srd(S_WS, 28, WS_SIZE)
        self.mk_masks(56, 57, 58)
        a("s_waitcnt lgkmcnt(0)")
        a(f"s_mul_i32 s{sTAG}, s{sTAG}, 0x9E3779B1")
        a(f"s_add_u32 s{sTAG}, s{sTAG}, 0x7F4A7C15")
        self.stamp(0)
        a(f"""
        v_and_b32 v15, 7, v0
        v_lshlrev_b32 v15, 6, v15
        v_lshrrev_b32 v56, 4, v0
        v_lshl_add_u32 v15, v56, 5, v15
        v_and_b32 v56, 7, v0
        v_mul_u32_u24 v56, {HD_P}, v56
        v_lshrrev_b32 v57, 3, v0
        v_lshl_add_u32 v56, v57, 2, v56
        """)
        a(PROD)
        a.branch("s_cbranch_scc1 L_sv_nop1b")
        a("s_waitcnt vmcnt(41)")
        for i in range(3):
            a(f"v_lshlrev_b32 v{CR+i}, 16, v{CR+i}")
            self.silu(CR + i, T4 + i, 58, 59)
        a(f"ds_write_b32 v56, v{T4} offset:{HD_LDS}")
        a(f"ds_write_b32 v56, v{T4+1} offset:{HD_LDS+32}")
        a("s_mov_b64 exec, 0xffff")
        a(f"ds_write_b32 v56, v{T4+2} offset:{HD_LDS+64}")
        a("s_mov_b64 exec, -1")
        a("s_waitcnt lgkmcnt(0)")
        for q in range(5):
            a(f"ds_read_b128 {vr(AV+4*q,4)}, v13 offset:{HD_LDS+16*q}")
        a("s_waitcnt lgkmcnt(0)")
        waits = {t: f"s_waitcnt vmcnt({23 + 15 - t})" for t in range(0, 18, 3)}
        self.gemv(WA, 18, [AV + t for t in range(18)], ASET, ACC, True, waits)
        self.halfsum(ACC, T4)
        self.publish_f32(ACC, 15, None)
        a(f"""
        s_and_b32 s92, s{sPA}, 3
        s_mul_i32 s92, s92, {P1S}
        s_lshr_b32 s93, s{sPA}, 2
        s_lshl_b32 s93, s93, 9
        s_add_u32 s92, s92, s93
        s_add_u32 s92, s92, {WS_P1}
        """)
        self.publish_store(15, "s92")
        a.label("L_sv_nop1b")
        self.stamp(1)
        a("s_waitcnt vmcnt(18)")
        for j in range(3):
            for d in range(2):
                a(f"v_lshlrev_b32 v{XV+4*j+2*d}, 16, v{XR+2*j+d}")
                a(f"v_and_b32 v{XV+4*j+2*d+1}, 0xffff0000, v{XR+2*j+d}")
        a(f"v_add_f32 v56, v{XV}, v{XV+1}")
        for k in range(2, 12):
            a(f"v_add_f32 v56, v56, v{XV+k}")
        self.row_allreduce("add", [56])
        self.cross_rows("add", [56], [57])
        a(f"v_mul_f32 v56, {f32(1.0/576.0)}, v56")
        a("v_mov_b32 v57, 0")
        for k in range(8):
            a(f"v_sub_f32 v58, v{XV+k}, v56")
            a("v_fmac_f32 v57, v58, v58")
        a("s_mov_b64 exec, 0xffff")
        for k in range(8, 12):
            a(f"v_sub_f32 v58, v{XV+k}, v56")
            a("v_fmac_f32 v57, v58, v58")
        a("s_mov_b64 exec, -1")
        self.row_allreduce("add", [57])
        self.cross_rows("add", [57], [58])
        a(f"v_mul_f32 v57, {f32(1.0/576.0)}, v57")
        self.ln_finish(56, 57)
        a(f"v_lshlrev_b32 v{NP}, 16, v{XP}")
        a(f"v_and_b32 v{NP+1}, 0xffff0000, v{XP}")
        a(f"v_lshlrev_b32 v{NP+2}, 16, v{XP+1}")
        a(f"v_and_b32 v{NP+3}, 0xffff0000, v{XP+1}")
        for k in range(4): a(f"v_sub_f32 v{NP+k}, v{NP+k}, v56")
        for k in range(4): self.rnd(NP + k, NP + k)
        for k in range(4): a(f"v_mul_f32 v{NP+k}, v{NP+k}, v57")
        for k in range(4): self.rnd(NP + k, NP + k)
        a(f"""
        v_min_u32 v58, 7, v0
        v_lshlrev_b32 v58, 4, v58
        v_add_u32 v58, 1024, v58
        s_lshr_b32 s96, s{sJ}, 2
        s_mul_i32 s96, s96, 1152
        s_add_u32 s92, s96, {WS_P1}
        s_add_u32 s93, s92, {P1S}
        s_add_u32 s94, s92, {2*P1S}
        s_add_u32 s95, s92, {3*P1S}
        s_add_u32 s96, s92, 4608
        s_add_u32 s97, s93, 4608
        s_add_u32 s98, s94, 4608
        s_add_u32 s99, s95, 4608
        v_and_b32 v59, 3, v0
        v_mul_u32_u24 v59, {2*HD_P}, v59
        v_lshrrev_b32 v57, 2, v0
        v_lshl_add_u32 v59, v57, 2, v59
        """)
        a(f"s_cmp_eq_u32 s{sJ}, 0")
        a("s_cbranch_scc0 L_sv_noinit")
        a(f"""
        s_mul_i32 s30, s{sG}, {self.pstride}
        s_add_u32 s30, s30, {WS_POOL}
        v_mov_b32 v56, 0
        s_mov_b64 exec, 1
        buffer_store_dword v56, v56, {srd(S_WS)}, s30 offen sc1
        s_mov_b64 exec, -1
        """)
        a.label("L_sv_noinit")
        self.stamp(2)
        self.poll_begin("L_p1poll")
        for s in range(4):
            a(f"buffer_load_dwordx4 {vr(G+16*s,4)}, v8, {srd(S_WS)}, s{92+s} offen sc1")
            a(f"buffer_load_dwordx4 {vr(G+16*s+8,4)}, v8, {srd(S_WS)}, s{96+s} offen sc1")
        for s in range(4):
            a(f"buffer_load_dwordx4 {vr(G+16*s+4,4)}, v58, {srd(S_WS)}, s{92+s} offen sc1")
            a(f"buffer_load_dwordx4 {vr(G+16*s+12,4)}, v58, {srd(S_WS)}, s{96+s} offen sc1")
        a("s_waitcnt vmcnt(0)")
        self.tagcheck([G + 2 * k + 1 for k in range(32)], 56, 57)
        self.poll_end("L_p1poll")
        self.stamp(3)
        for o in (0, 2, 4, 6, 8, 10, 12, 14):
            a(f"v_add_f32 v{G+o}, v{G+o}, v{G+16+o}")
            a(f"v_add_f32 v{G+32+o}, v{G+32+o}, v{G+48+o}")
        for o in (0, 2, 4, 6, 8, 10, 12, 14):
            a(f"v_add_f32 v{G+o}, v{G+o}, v{G+32+o}")
        for o in (0, 2, 4, 6, 8, 10, 12, 14):
            self.rnd(G + o, G + o)
        pairs = [(0, 0, 8), (1, 2, 10), (2, 4, 12), (3, 6, 14)]
        for k, so, co in pairs: a(f"v_add_f32 v{G+co}, 1.0, v{G+co}")
        for k, so, co in pairs: self.rnd(G + co, G + co)
        for k, so, co in pairs: a(f"v_mul_f32 v{G+co}, v{G+co}, v{NP+k}")
        for k, so, co in pairs: self.rnd(G + co, G + co)
        for k, so, co in pairs: a(f"v_add_f32 v{G+co}, v{G+co}, v{G+so}")
        for k, so, co in pairs: a(f"v_cvt_pk_bf16_f32 v{G+co}, v{G+co}, v{G+co}")
        a(f"v_add_u32 v59, {HD_LDS}, v59")
        a(f"ds_write2_b32 v59, v{G+8}, v{G+10} offset0:0 offset1:{HD_P//4}")
        a("s_mov_b64 exec, 0xff")
        a(f"ds_write2_b32 v59, v{G+12}, v{G+14} offset0:16 offset1:{16 + HD_P//4}")
        a("s_mov_b64 exec, -1")
        a("s_waitcnt lgkmcnt(0)")
        for q in range(5):
            a(f"ds_read_b128 {vr(AV+4*q,4)}, v13 offset:{HD_LDS+16*q}")
        a(f"""
        s_lshl_b32 s92, s{sG}, 2
        s_lshr_b32 s93, s{sJ}, 2
        s_add_u32 s92, s92, s93
        s_lshl_b32 s92, s92, 11
        s_and_b32 s93, s{sJ}, 3
        s_lshl_b32 s93, s93, 9
        s_add_u32 s92, s92, s93
        s_add_u32 s92, s92, {WS_P2}
        s_lshl_b32 s93, s{sG}, 13
        s_add_u32 s93, s93, {WS_P2}
        s_add_u32 s94, s93, 2048
        s_add_u32 s95, s93, 4096
        s_add_u32 s96, s93, 6144
        s_waitcnt lgkmcnt(0)
        """)
        self.gemv(WQ, 18, [AV + t for t in range(18)], ASET, ACC, True)
        self.halfsum(ACC, T4)
        self.publish_f32(ACC, 15, None)
        self.publish_store(15, "s92")
        self.stamp(4)
        self.poll_begin("L_p2poll")
        for kp in range(4):
            for hf in range(2):
                a(f"buffer_load_dwordx4 {vr(G+8*kp+4*hf,4)}, v8, {srd(S_WS)}, s{93+kp} offen offset:{1024*hf} sc1")
        a("s_waitcnt vmcnt(0)")
        self.tagcheck([G + 2 * k + 1 for k in range(16)], 56, 57)
        self.poll_end("L_p2poll")
        for o in (0, 2, 4, 6):
            a(f"v_add_f32 v{G+o}, v{G+o}, v{G+8+o}")
            a(f"v_add_f32 v{G+16+o}, v{G+16+o}, v{G+24+o}")
        for o in (0, 2, 4, 6):
            a(f"v_add_f32 v{G+o}, v{G+o}, v{G+16+o}")
        a(f"v_cvt_pk_bf16_f32 v{G}, v{G}, v{G+2}")
        a(f"v_cvt_pk_bf16_f32 v{G+4}, v{G+4}, v{G+6}")
        a(f"ds_write_b32 v2, v{G} offset:{Q_LDS}")
        a(f"ds_write_b32 v2, v{G+4} offset:{Q_LDS+256}")
        if self.dbg:
            a(f"s_lshl_b32 s92, s2, 9")
            a(f"s_add_u32 s92, s92, {WS_DBG + 0x80000}")
            a(f"buffer_store_dword v{G}, v2, {srd(S_WS)}, s92 offen")
            a(f"buffer_store_dword v{G+4}, v2, {srd(S_WS)}, s92 offen offset:256")
        a("s_waitcnt lgkmcnt(0)")
        self.stamp(5)
        a("s_barrier")
        a("s_setprio 1")
        a(f"""
        v_mov_b32 v44, -1
        v_mov_b32 v45, -1
        v_mov_b32 v46, -1
        v_mov_b32 v47, -1
        s_lshl_b32 s30, s2, 10
        s_add_u32 s30, s30, {WS_T1O}
        buffer_store_dwordx4 v[44:47], v8, {srd(S_WS)}, s30 offen sc1
        s_mov_b64 exec, 1
        s_lshl_b32 s30, s2, 4
        s_add_u32 s30, s30, {WS_T1ML}
        buffer_store_dwordx4 v[44:47], v8, {srd(S_WS)}, s30 offen sc1
        s_mov_b64 exec, -1
        s_cmp_eq_u32 s{sCLS}, 1
        s_cbranch_scc1 L_sv_clr_done
        s_cmp_eq_u32 s{sCLS}, 0
        s_cbranch_scc1 L_sv_clr_ffn
        s_mul_i32 s30, s{sG}, 2304
        s_lshl_b32 s92, s{sIDX}, 8
        s_add_u32 s30, s30, s92
        s_add_u32 s30, s30, {WS_T2}
        s_mov_b64 exec, 0xffff
        buffer_store_dwordx4 v[44:47], v8, {srd(S_WS)}, s30 offen sc1
        s_mov_b64 exec, -1
        s_branch L_sv_clr_done
        """)
        a.label("L_sv_clr_ffn")
        a(f"""
        s_mul_i32 s30, s{sIDX}, 2304
        s_add_u32 s30, s30, {WS_T3}
        buffer_store_dwordx4 v[44:47], v8, {srd(S_WS)}, s30 offen sc1
        buffer_store_dwordx4 v[44:47], v8, {srd(S_WS)}, s30 offen offset:1024 sc1
        s_mov_b64 exec, 0xffff
        buffer_store_dwordx4 v[44:47], v8, {srd(S_WS)}, s30 offen offset:2048 sc1
        s_mov_b64 exec, -1
        """)
        a.label("L_sv_clr_done")
        a(f"""
        s_waitcnt vmcnt(0)
        v_mov_b32 v44, s{sTAG}
        s_lshl_b32 s30, s2, 2
        s_add_u32 s30, s30, {WS_HELLO}
        v_mov_b32 v45, 0
        s_mov_b64 exec, 1
        buffer_store_dword v44, v45, {srd(S_WS)}, s30 offen sc1
        s_mov_b64 exec, -1
        """)
        self.mk_srd(S_WD, 20, 4608 * 576 * 2)
        self.mk_srd(S_OUT, 26, 1152)
        self.stamp(8)
        a(f"s_cmp_eq_u32 s{sCLS}, 0")
        a.branch("s_cbranch_scc1 L_sv_ffn")
        a(f"s_cmp_eq_u32 s{sCLS}, 2")
        a.branch("s_cbranch_scc1 L_sv_wo")
        a(f"s_cmp_lt_u32 s{sIDX}, 36")
        a.branch("s_cbranch_scc0 L_sv_b1")
        a(f"""
        v_and_b32 v56, 31, v0
        v_lshlrev_b32 v57, 3, v56
        v_lshlrev_b32 v56, 4, v56
        s_lshl_b32 s92, s{sIDX}, 9
        s_add_u32 s92, s92, {WS_P1 + 1152 * 8}
        s_add_u32 s93, s92, {P1S}
        s_add_u32 s94, s92, {2 * P1S}
        s_add_u32 s95, s92, {3 * P1S}
        """)
        self.poll_begin("L_p3bpoll")
        for k in range(4):
            a(f"buffer_load_dwordx4 {vr(64+4*k,4)}, v56, {srd(S_WS)}, s{92+k} offen sc1")
        a("s_waitcnt vmcnt(0)")
        self.tagcheck([64 + 2 * k + 1 for k in range(8)], 58, 59)
        self.poll_end("L_p3bpoll")
        a(f"""
        v_add_f32 v64, v64, v68
        v_add_f32 v72, v72, v76
        v_add_f32 v66, v66, v70
        v_add_f32 v74, v74, v78
        v_add_f32 v64, v64, v72
        v_add_f32 v66, v66, v74
        v_cvt_pk_bf16_f32 v64, v64, v66
        v_mov_b32 v65, s{sTAG}
        s_lshl_b32 s30, s{sIDX}, 8
        s_add_u32 s30, s30, {WS_P3}
        s_mov_b64 exec, 0xffffffff
        buffer_store_dwordx2 v[64:65], v57, {srd(S_WS)}, s30 offen sc1
        s_mov_b64 exec, -1
        """)
        self.stamp(12)
        a.branch("s_branch L_sv_b1")
        a.label("L_sv_wo")
        self.mk_srd(S_WO, 12, 4096 * 576 * 2)
        a(f"""
        v_lshrrev_b32 v56, 3, v0
        v_and_b32 v57, 6, v56
        v_and_b32 v58, 7, v0
        v_xor_b32 v57, v57, v58
        v_mul_u32_u24 v56, 1152, v56
        v_lshl_add_u32 v56, v57, 4, v56
        s_mul_i32 s92, s{sG}, {256*1152}
        s_lshl_b32 s30, s{sIDX}, 7
        s_add_u32 s92, s92, s30
        s_mov_b32 m0, {IMG_LDS}
        s_mov_b32 s{sCNT}, 4
        """)
        a.label("L_dma_wo")
        for p in range(8):
            a(f"buffer_load_dwordx4 v56, {srd(S_WO)}, s92 offen nt lds")
            a("s_add_u32 m0, m0, 1024")
            a(f"s_add_u32 s92, s92, {8*1152}")
        a(f"""
        s_waitcnt vmcnt({self.dma_wait})
        s_sub_u32 s{sCNT}, s{sCNT}, 1
        s_cmp_lg_u32 s{sCNT}, 0
        """)
        a.branch("s_cbranch_scc1 L_dma_wo")
        self.stamp(9)
        a.branch("s_branch L_sv_hello")
        a.label("L_sv_ffn")
        self.mk_srd(S_WU, 18, 576 * 4608 * 2)
        a(f"""
        v_mul_u32_u24 v56, 9216, v9
        v_add_u32 v56, v56, v10
        v_mul_u32_u24 v57, 1152, v9
        v_add_u32 v57, v57, v10
        s_lshl_b32 s92, s{sIDX}, 7
        s_add_u32 s92, s92, {3 * 144 * 9216}
        """)
        for t in range(18):
            a(f"buffer_load_dwordx4 {vr(self.GU+4*t,4)}, v56, {srd(S_WU)}, s92 offen nt")
            if t < 17: a(f"s_add_u32 s92, s92, {8*9216}")
        a(f"s_mul_i32 s92, s{sIDX}, {64*1152}")
        a(f"s_add_u32 s92, s92, {7*128}")
        a(f"s_add_u32 s93, s92, 128")
        for t in range(8):
            a(f"buffer_load_dwordx4 {vr(self.WD+4*t,4)}, v57, {srd(S_WD)}, s92 offen nt")
            a(f"buffer_load_dwordx4 {vr(self.WDX+4*t,4)}, v57, {srd(S_WD)}, s93 offen nt")
            if t < 7:
                a(f"s_add_u32 s92, s92, {8*1152}")
                a(f"s_add_u32 s93, s93, {8*1152}")
        self.stamp(9)
        a.label("L_sv_hello")
        a(f"s_mov_b32 s30, {WS_HELLO}")
        self.poll_begin("L_hpoll")
        a(f"buffer_load_dwordx4 v[48:51], v8, {srd(S_WS)}, s30 offen sc1")
        a("s_waitcnt vmcnt(0)")
        self.tagcheck([48, 49, 50, 51], 58, 59)
        self.poll_end("L_hpoll")
        a.label("L_sv_b1")
        self.stamp(14)

    def publish_f32(self, ACC, vaddr, _):
        a = self.a
        for r in range(4):
            a(f"v_mov_b32 v{240+2*r}, v{ACC+r}")
            a(f"v_mov_b32 v{241+2*r}, s{sTAG}")

    def publish_store(self, vaddr, soff):
        a = self.a
        a(f"""
        s_mov_b32 s30, 0x00ff00ff
        s_mov_b32 s31, 0
        s_mov_b64 exec, s[30:31]
        buffer_store_dwordx4 v[240:243], v{vaddr}, {srd(S_WS)}, {soff} offen sc1
        buffer_store_dwordx4 v[244:247], v{vaddr}, {srd(S_WS)}, {soff} offen offset:16 sc1
        s_mov_b64 exec, -1
        """)

    def tail_service(self):
        a = self.a
        PR = 200
        a(f"""
        s_setprio 3
        v_lshrrev_b32 v1, 5, v0
        v_lshlrev_b32 v1, 5, v1
        s_lshl_b32 s92, s2, 10
        s_add_u32 s92, s92, {WS_T1O}
        s_lshl_b32 s93, s2, 4
        s_add_u32 s93, s93, {WS_T1ML}
        v_lshrrev_b32 v2, 5, v0
        v_lshlrev_b32 v2, 3, v2
        s_waitcnt vmcnt(0) lgkmcnt(0)
        s_barrier
        ds_read_b128 v[16:19], v1 offset:{ML_LDS}
        ds_read_b128 v[20:23], v1 offset:{ML_LDS+16}
        ds_read_b128 v[24:27], v1 offset:{ML_LDS+64}
        ds_read_b128 v[28:31], v1 offset:{ML_LDS+80}
        """)
        for w in range(7):
            a(f"ds_read_b128 {vr(PR+4*w,4)}, v8 offset:{PART_LDS+1024*w}")
        self.stamp(7)
        a("s_waitcnt lgkmcnt(9)")
        a("v_max3_f32 v32, v16, v17, v18")
        a("v_max3_f32 v32, v32, v19, v20")
        a("v_max3_f32 v32, v32, v21, v22")
        for w in range(7):
            a(f"v_sub_f32 v{16+w}, v{16+w}, v32")
        for w in range(7):
            a(f"v_exp_f32 v{16+w}, v{16+w}")
        a("s_waitcnt lgkmcnt(7)")
        a("v_mul_f32 v33, v16, v24")
        for w in range(1, 7):
            a(f"v_fmac_f32 v33, v{16+w}, v{24+w}")
        for w in range(7):
            a(f"s_waitcnt lgkmcnt({6-w})")
            for r in range(4):
                if w == 0:
                    a(f"v_mul_f32 v{36+r}, v16, v{PR+r}")
                else:
                    a(f"v_fmac_f32 v{36+r}, v{16+w}, v{PR+4*w+r}")
        a(f"buffer_store_dwordx4 v[36:39], v8, {srd(S_WS)}, s92 offen sc1")
        a(f"""
        s_mov_b32 s30, 1
        s_mov_b32 s31, 1
        s_mov_b64 exec, s[30:31]
        buffer_store_dwordx2 v[32:33], v2, {srd(S_WS)}, s93 offen sc1
        s_mov_b64 exec, -1
        """)
        self.stamp(15)
        a(f"s_cmp_eq_u32 s{sCLS}, 2")
        a.branch("s_cbranch_scc1 L_wo_mm")
        a(f"s_cmp_eq_u32 s{sCLS}, 1")
        a.branch("s_cbranch_scc1 L_fin")
        self.ffn_addr()
        a.branch("s_branch L_ffn_post")

    def build(self):
        a = self.a
        self.prologue()
        self.streaming()
        self.wo_tail()
        self.ffn_tail()
        self.service()
        self.tail_service()
        a.label("L_end")
        a("s_endpgm")
        return a.text()


def main():
    ap = argparse.ArgumentParser()
    ap.add_argument("-o", default="main3.s")
    ap.add_argument("--R", type=int, default=6)
    ap.add_argument("--pace", type=int, default=4)
    ap.add_argument("--loopgrp", type=int, default=8)
    ap.add_argument("--prowait", type=int, default=2)
    ap.add_argument("--progrp", type=int, default=4)
    ap.add_argument("--dmawait", type=int, default=32)
    ap.add_argument("--NS", type=int, default=96)
    ap.add_argument("--QF", type=int, default=340)
    ap.add_argument("--look", type=int, default=12)
    ap.add_argument("--wpace", type=int, default=8)
    ap.add_argument("--strip", action="store_true")
    ap.add_argument("--pstride", type=int, default=256)
    ap.add_argument("--aflags", type=str, default="sc0")
    ap.add_argument("--stamps", action="store_true")
    ap.add_argument("--dbg", action="store_true")
    args = ap.parse_args()
    assert args.NS - args.look > 7 * args.R
    g = Gen(R=args.R, pace=args.pace, pro_wait=args.prowait, pro_grp=args.progrp, stamps=args.stamps, dbg=args.dbg,
            NS=args.NS, QF=args.QF, look=args.look, wpace=args.wpace, dma_wait=args.dmawait)
    g.loop_grp = args.loopgrp
    g.strip = args.strip
    g.pstride = args.pstride
    g.atom_flags = args.aflags
    body = g.build()
    nv = 64 + 32 * args.R
    txt = wrap_single(body, 256, 512, LDS_SIZE, max(nv, 256))
    open(args.o, "w").write(txt)
    print(f"wrote {args.o}: {len(txt)} bytes, lds {LDS_SIZE}, nops {g.a.nops_inserted}")

if __name__ == "__main__":
    main()
```

```python
import sys, argparse, struct
from asmlib import *

WS_EPOCH = 0x0
WS_HELLO = 0x400
WS_P1 = 0x1000
P1S = 3456 * 8
WS_P3 = 0x1C000
WS_T1ML = 0x1F000
WS_T2 = 0x20000
WS_P2 = 0x30000
WS_T1O = 0x50000
WS_T3 = 0x90000
WS_POOL = 0xC0000
WS_DBG = 0x100000
WS_SIZE = 0x200000
WS_STAMP = 0x10000000

Q_LDS = 0x0000
O_LDS = 0x0200
ST_LDS = 0x0A00
CTR_LDS = 0x0A20
ARR_LDS = 0x0A24
HFL_LDS = 0x0A28
QFL_LDS = 0x0A2C
ML_LDS = 0x0A40
HD_LDS = 0x0D00
HD_P = 80
X1_LDS = 0x1700
PART_LDS = 0x2400
IMG_LDS = 0x4000
HD2_LDS = 0x4000
PX_LDS = 0x5000
TAB_LDS = 0xC000
LDS_SIZE = 0xD000
STOP = 0x80000000

LOG2E = 0x3FB8AA3B
SCALE = 0x3DB504F3
SPIN = 50000

S_K, S_V, S_WS, S_X, S_C, S_WMOD, S_WQ, S_WO, S_WG, S_WU, S_WD, S_OUT = [32 + 4 * i for i in range(12)]
sTAG, sWAVE, sOFF, sCNT = 80, 81, 82, 83
sSCALE, sLOG2E, sG, sJ, sCLS, sIDX, sPA = 84, 86, 87, 88, 89, 90, 91
sP = 3
sST, sPEND, sQ, sPOOL, sGUB, sWDB, sOOB, sHOME, sLIM, sSPIN = 48, 49, 50, 51, 52, 53, 54, 55, 56, 57
sLANE = 58
sREQ, sFILL, sBC, sQ2 = 48, 49, 50, 52
V_ST = 62


def srd(s):
    return f"s[{s}:{s+3}]"

def vr(b, n):
    return f"v[{b}:{b+n-1}]"

def f32(x):
    return hex(struct.unpack("<I", struct.pack("<f", x))[0])


class Gen:
    def __init__(self, R=6, pace=4, pro_wait=2, pro_grp=4, stamps=False, dbg=False,
                 NS=112, QF=200, S=1, BN=4, BD=4, BX=16, dma_wait=32):
        self.a = Asm()
        self.R = R; self.pace = pace; self.pro_wait = pro_wait; self.pro_grp = pro_grp
        self.stamps = stamps; self.dbg = dbg
        self.NS = NS; self.QF = QF; self.S = S; self.BN = BN; self.BD = BD; self.BX = BX; self.dma_wait = dma_wait
        self.T = 128 - NS; assert self.T % 4 == 0
        self.P = 16 * self.T
        assert BX >= (BD - 1) * BN and self.P + 64 <= 1024 and BD <= 8

    def mk_srd(self, s, plo, size, add=None):
        a = self.a
        if add is None:
            a(f"s_mov_b32 s{s}, s{plo}")
            a(f"s_and_b32 s{s+1}, s{plo+1}, 0xffff")
        else:
            a(f"s_add_u32 s{s}, s{plo}, {add}")
            a(f"s_addc_u32 s{s+1}, s{plo+1}, 0")
            a(f"s_and_b32 s{s+1}, s{s+1}, 0xffff")
        a(f"s_mov_b32 s{s+2}, {size}")
        a(f"s_mov_b32 s{s+3}, 0x20000")

    def rnd(self, d, s):
        self.a(f"v_cvt_pk_bf16_f32 v{d}, 0, v{s}")

    def stamp(self, k):
        if not self.stamps: return
        a = self.a
        a("s_memrealtime s[100:101]")
        a("s_waitcnt lgkmcnt(0)")
        a(f"v_writelane_b32 v{V_ST}, s100, {k}")

    def stamp_flush(self):
        if not self.stamps: return
        a = self.a
        a(f"""
        s_mov_b64 exec, {-1 if self.trace else 0xffff}
        s_lshl_b32 s92, s2, 3
        s_add_u32 s92, s92, s{sWAVE}
        s_lshl_b32 s92, s92, {9 if self.trace else 7}
        s_add_u32 s92, s92, {WS_STAMP}
        s_add_u32 s92, s28, s92
        s_addc_u32 s93, s29, 0
        v_lshlrev_b32 v60, 3, v0
        v_mov_b32 v{V_ST+1}, 0
        global_store_dwordx2 v60, v[{V_ST}:{V_ST+1}], s[92:93]
        s_mov_b64 exec, -1
        """)

    def row_allreduce(self, op, regs, shifts=(8, 4, 2, 1)):
        a = self.a
        for sh in shifts:
            for r in regs:
                a(f"v_{op}_f32_dpp v{r}, v{r}, v{r} row_ror:{sh} row_mask:0xf bank_mask:0xf")

    def cross_rows(self, op, regs, tmps):
        a = self.a
        for sw in ("16", "32"):
            for r, t in zip(regs, tmps):
                a(f"v_mov_b32 v{t}, v{r}")
            for r, t in zip(regs, tmps):
                a(f"v_permlane{sw}_swap_b32 v{r}, v{t}")
            for r, t in zip(regs, tmps):
                a(f"v_{op}_f32 v{r}, v{r}, v{t}")

    def poll_begin(self, name):
        a = self.a
        a(f"s_mov_b32 s{sCNT}, {SPIN}")
        a.label(name)

    def poll_end(self, name):
        a = self.a
        ok = name + "_ok"
        a(f"s_cbranch_vccz {ok}")
        a(f"s_sub_u32 s{sCNT}, s{sCNT}, 1")
        a(f"s_cmp_lg_u32 s{sCNT}, 0")
        a.branch(f"s_cbranch_scc1 {name}")
        a.label(ok)

    def inc_poll(self, name, units, sm):
        a = self.a
        n = len(units)
        a(f"s_mov_b32 s{sm}, {(1 << n) - 1}")
        a(f"s_mov_b32 s{sCNT}, {SPIN}")
        a.label(name)
        for u, (ld, ck, ov) in enumerate(units):
            a(f"s_bitcmp1_b32 s{sm}, {u}")
            a(f"s_cbranch_scc0 {name}_l{u}")
            ld()
            a.label(f"{name}_l{u}", fence=False)
        a("s_waitcnt vmcnt(0)")
        for u, (ld, ck, ov) in enumerate(units):
            a(f"s_bitcmp1_b32 s{sm}, {u}")
            a(f"s_cbranch_scc0 {name}_c{u}")
            ck()
            a.branch(f"s_cbranch_vccnz {name}_c{u}")
            a(f"s_bitset0_b32 s{sm}, {u}")
            if ov: ov()
            a.label(f"{name}_c{u}")
        a(f"s_cmp_eq_u32 s{sm}, 0")
        a(f"s_cbranch_scc1 {name}_ok")
        a(f"s_sub_u32 s{sCNT}, s{sCNT}, 1")
        a(f"s_cmp_lg_u32 s{sCNT}, 0")
        a.branch(f"s_cbranch_scc1 {name}")
        a.label(name + "_ok")

    def lds_spin(self, name, off, val, vaddr, vt, st):
        a = self.a
        a(f"s_mov_b32 s{sCNT}, {SPIN * 4}")
        a.label(name)
        a(f"ds_read_b32 v{vt}, v{vaddr} offset:{off}")
        a("s_waitcnt lgkmcnt(0)")
        a(f"v_readfirstlane_b32 s{st}, v{vt}")
        a(f"s_cmp_eq_u32 s{st}, {val}")
        a(f"s_cbranch_scc1 {name}_ok")
        a(f"s_sub_u32 s{sCNT}, s{sCNT}, 1")
        a(f"s_cmp_lg_u32 s{sCNT}, 0")
        a.branch(f"s_cbranch_scc1 {name}")
        a.label(name + "_ok")

    def tagcheck(self, regs, t0, t1):
        a = self.a
        assert len(regs) % 2 == 0
        a(f"v_max_u32 v{t0}, v{regs[0]}, v{regs[1]}")
        a(f"v_min_u32 v{t1}, v{regs[0]}, v{regs[1]}")
        for k in range(2, len(regs), 2):
            a(f"v_max3_u32 v{t0}, v{t0}, v{regs[k]}, v{regs[k+1]}")
            a(f"v_min3_u32 v{t1}, v{t1}, v{regs[k]}, v{regs[k+1]}")
        a(f"v_xor_b32 v{t0}, s{sTAG}, v{t0}")
        a(f"v_xor_b32 v{t1}, s{sTAG}, v{t1}")
        a(f"v_or_b32 v{t0}, v{t0}, v{t1}")
        a(f"v_cmp_ne_u32 vcc, 0, v{t0}")

    def ln_finish(self, mean, var):
        a = self.a
        self.rnd(mean, mean)
        self.rnd(var, var)
        a(f"v_add_f32 v{var}, {f32(1e-5)}, v{var}")
        self.rnd(var, var)
        a(f"v_sqrt_f32 v{var}, v{var}")
        self.rnd(var, var)
        a(f"v_rcp_f32 v{var}, v{var}")

    vMK = 4

    def mk_masks(self, t0, t1, t2):
        a = self.a
        a(f"""
        v_and_b32 v{t2}, 1, v0
        v_mov_b32 v{t0}, 0xffff
        v_mov_b32 v{t1}, 0xffff0000
        v_cmp_eq_u32 vcc, 1, v{t2}
        v_cndmask_b32 v{t0}, v{t0}, v{t1}, vcc
        v_bfe_u32 v{t2}, v0, 1, 2
        """)
        for d in range(4):
            a(f"v_cmp_eq_u32 vcc, {d}, v{t2}")
            a(f"v_cndmask_b32 v{self.vMK+d}, 0, v{t0}, vcc")

    def mk_sub(self, d, t):
        a = self.a
        a(f"v_bfe_u32 v{d}, v0, 3, 1")
        a(f"v_lshrrev_b32 v{t}, 4, v0")
        a(f"v_lshl_add_u32 v{d}, v{d}, 2, v{t}")

    def gemv(self, W, n, AV, ASET, ACC, first, waits=None):
        a = self.a
        def build(t):
            s = ASET + 4 * (t & 1)
            for d in range(4):
                a(f"v_and_b32 v{s+d}, v{AV[t]}, v{self.vMK+d}")
        build(0)
        for t in range(n):
            if t + 1 < n: build(t + 1)
            if waits and t in waits: a(waits[t])
            s = ASET + 4 * (t & 1)
            c = "0" if (first and t == 0) else vr(ACC, 4)
            a(f"v_mfma_f32_16x16x32_bf16 {vr(ACC,4)}, {vr(s,4)}, {vr(W+4*t,4)}, {c}")

    def halfsum(self, ACC, T):
        a = self.a
        for r in range(4): a(f"v_mov_b32 v{T+r}, v{ACC+r}")
        for r in range(4): a(f"v_permlane32_swap_b32 v{ACC+r}, v{T+r}")
        for r in range(4): a(f"v_add_f32_dpp v{ACC+r}, v{T+r}, v{ACC+r} row_ror:8 row_mask:0xf bank_mask:0xf")

    def silu(self, c, o, t0, t1):
        a = self.a
        a(f"v_mul_f32 v{o}, s{sLOG2E}, v{c}")
        a(f"v_exp_f32 v{o}, -v{o}")
        a(f"v_add_f32 v{o}, 1.0, v{o}")
        a(f"v_rcp_f32 v{t0}, v{o}")
        a(f"v_mul_f32 v{t1}, v{t0}, v{c}")
        a(f"v_fma_f32 v{o}, -v{t1}, v{o}, v{c}")
        a(f"v_fma_f32 v{o}, v{o}, v{t0}, v{t1}")
        a(f"v_cvt_pk_bf16_f32 v{o}, v{o}, v{o}")

    def prologue(self):
        a = self.a
        if self.stamps: a("s_memrealtime s[98:99]")
        a(f"""
        s_cmp_ge_u32 s2, 256
        s_cbranch_scc1 L_end
        s_load_dwordx16 s[4:19], s[0:1], 0
        s_load_dwordx8 s[20:27], s[0:1], 64
        s_load_dwordx2 s[28:29], s[0:1], 104
        v_lshrrev_b32 v1, 6, v0
        v_and_b32 v0, 63, v0
        v_readfirstlane_b32 s{sWAVE}, v1
        """)
        if self.S == 1:
            a("""
            s_and_b32 s92, s2, 7
            s_lshr_b32 s93, s2, 3
            s_lshl_b32 s92, s92, 5
            s_or_b32 s2, s92, s93
            """)
        elif self.S == 2:
            a("""
            s_bfe_u32 s92, s2, 0x20001
            s_lshl_b32 s92, s92, 6
            s_bfe_u32 s93, s2, 0x20006
            s_lshl_b32 s93, s93, 4
            s_or_b32 s92, s92, s93
            s_and_b32 s93, s2, 1
            s_lshl_b32 s93, s93, 3
            s_or_b32 s92, s92, s93
            s_bfe_u32 s93, s2, 0x30003
            s_or_b32 s2, s92, s93
            """)
        elif self.S == 4:
            a("""
            s_bfe_u32 s92, s2, 0x10002
            s_lshl_b32 s92, s92, 7
            s_bfe_u32 s93, s2, 0x30005
            s_lshl_b32 s93, s93, 4
            s_or_b32 s92, s92, s93
            s_and_b32 s93, s2, 3
            s_lshl_b32 s93, s93, 2
            s_or_b32 s92, s92, s93
            s_bfe_u32 s93, s2, 0x20003
            s_or_b32 s2, s92, s93
            """)
        if self.rot:
            a("""
            s_lshr_b32 s92, s2, 4
            s_add_u32 s92, s92, s2
            s_and_b32 s92, s92, 15
            s_and_b32 s2, s2, 0xf0
            s_or_b32 s2, s2, s92
            """)
        a(f"""
        s_lshr_b32 s{sG}, s2, 4
        s_and_b32 s{sJ}, s2, 15
        s_and_b32 s{sP}, s{sG}, 1
        s_sub_u32 s92, 5, s{sP}
        s_sub_i32 s93, s{sJ}, 7
        s_max_i32 s93, s93, 0
        s_mov_b32 s{sLOG2E}, {LOG2E:#x}
        """)
        a(f"""
        s_mul_i32 s94, s{sG}, 14
        s_add_u32 s94, s94, s{sJ}
        s_sub_u32 s94, s94, 2
        s_cmp_lt_u32 s{sJ}, 2
        s_cselect_b32 s94, -1, s94
        s_cmp_lt_u32 s94, 216
        s_cselect_b32 s{sPA}, s94, -1
        s_mov_b32 s{sCLS}, 2
        s_mov_b32 s{sIDX}, s93
        s_cmp_lt_u32 s{sJ}, 7
        s_cbranch_scc0 L_cls_done
        s_lshr_b32 s95, s{sG}, 1
        s_cmp_lt_u32 s{sJ}, s92
        s_cbranch_scc0 L_cls_mid
        s_mov_b32 s{sCLS}, 0
        s_lshl_b32 s{sIDX}, s{sG}, 2
        s_add_u32 s{sIDX}, s{sIDX}, s{sJ}
        s_add_u32 s95, s95, 64
        s_cmp_eq_u32 s{sJ}, 4
        s_cselect_b32 s{sIDX}, s95, s{sIDX}
        s_branch L_cls_done
        """)
        a.label("L_cls_mid", fence=False)
        a(f"""
        s_mov_b32 s{sCLS}, 1
        s_mul_i32 s96, s95, 3
        s_add_u32 s96, s96, s{sJ}
        s_sub_u32 s96, s96, 4
        s_lshl_b32 s97, s95, 1
        s_add_u32 s97, s97, s{sJ}
        s_add_u32 s97, s97, 19
        s_cmp_eq_u32 s{sP}, 1
        s_cselect_b32 s{sIDX}, s96, s97
        """)
        a.label("L_cls_done", fence=False)
        if self.stamps:
            a(f"v_mov_b32 v{V_ST}, 0")
            a("s_waitcnt lgkmcnt(0)")
            a(f"v_writelane_b32 v{V_ST}, s98, 13")
            self.stamp(6) if False else None
        a(f"""
        s_cmp_eq_u32 s{sWAVE}, 7
        s_cbranch_scc1 L_service
        """)

    vK, vV = 1, 2
    vL = 8
    vM = 10
    vA = 12
    vS = 16
    vO = 20
    vB = 24
    vP = 32
    vT = 36
    vQ = 44
    RING = 64

    def kreg(self, slot): return self.RING + 32 * slot
    def vreg(self, slot): return self.RING + 32 * slot + 16

    def issue(self, slot, grp=8, wait=None, step=True):
        a = self.a
        k = self.kreg(slot); v = self.vreg(slot)
        n = 0
        for i in range(4):
            if wait is not None and n % grp == 0: a(f"s_waitcnt vmcnt({wait})")
            a(f"buffer_load_dwordx4 {vr(k+4*i,4)}, v{self.vK}, {srd(S_K)}, s{sOFF} offen offset:{64*i} nt")
            n += 1
        for i in range(4):
            if wait is not None and n % grp == 0: a(f"s_waitcnt vmcnt({wait})")
            a(f"buffer_load_dwordx4 {vr(v+4*i,4)}, v{self.vV}, {srd(S_V)}, s{sOFF} offen offset:{256*i} nt")
            n += 1
        if step: a(f"s_add_u32 s{sOFF}, s{sOFF}, {7*4096}")

    def block(self, slot, wk, wv):
        a = self.a
        k = self.kreg(slot); v = self.vreg(slot)
        S = self.vS; O = self.vO; P = self.vP; T = self.vT; M = self.vM; A = self.vA; L = self.vL
        a("s_mov_b64 exec, 1")
        a(f"ds_add_rtn_u32 v{self.vTK}, v{self.vZ}, v{self.vOne} offset:{CTR_LDS}")
        a("s_mov_b64 exec, -1")
        a(f"s_cmp_le_u32 s{sCNT}, 2")
        a.branch(f"s_cbranch_scc1 L_dw_{slot}")
        a.label(f"L_dwb_{slot}", fence=False)
        a(f"s_waitcnt vmcnt({wk})")
        if self.strip:
            for i in range(4):
                a(f"v_mfma_f32_16x16x32_bf16 {vr(S,4)}, {vr(k+4*i,4)}, {vr(self.vQ+4*i,4)}, {vr(S,4)}")
            a(f"s_waitcnt vmcnt({wv})")
            for r in range(4):
                a(f"v_mfma_f32_16x16x32_bf16 {vr(O,4)}, {vr(v+4*r,4)}, {vr(self.vB,4)}, {vr(O,4)}")
        else:
            self.block_compute(slot, wk, wv)
        self.block_end(slot)

    strip = False
    qflag = True
    rot = False
    t2gate = True
    trace = False
    binit = True
    pstride = 256
    atom_flags = 'sc0'
    def block_compute(self, slot, wk, wv):
        a = self.a
        k = self.kreg(slot); v = self.vreg(slot)
        S = self.vS; O = self.vO; P = self.vP; T = self.vT; M = self.vM; A = self.vA; L = self.vL
        a(f"v_mfma_f32_16x16x32_bf16 {vr(S,4)}, {vr(k,4)}, {vr(self.vQ,4)}, 0")
        for i in range(1, 4):
            a(f"v_mfma_f32_16x16x32_bf16 {vr(S,4)}, {vr(k+4*i,4)}, {vr(self.vQ+4*i,4)}, {vr(S,4)}")
        for r in range(4):
            self.rnd(S + r, S + r)
        a(f"v_pk_mul_f32 {vr(S,2)}, {vr(S,2)}, s[{sSCALE}:{sSCALE+1}]")
        a(f"v_pk_mul_f32 {vr(S+2,2)}, {vr(S+2,2)}, s[{sSCALE}:{sSCALE+1}]")
        for r in range(4):
            self.rnd(S + r, S + r)
        a(f"v_max3_f32 v{T}, v{S}, v{S+1}, v{S+2}")
        a(f"v_max_f32 v{T}, v{T}, v{S+3}")
        self.cross_rows("max", [T], [T + 1])
        a(f"v_mul_f32 v{T}, s{sLOG2E}, v{T}")
        a(f"v_max_f32 v{T}, v{M}, v{T}")
        a(f"v_sub_f32 v{A}, v{M}, v{T}")
        a(f"v_exp_f32 v{A}, v{A}")
        a(f"v_mov_b32 v{M}, v{T}")
        for r in range(4):
            a(f"v_fma_f32 v{P+r}, v{S+r}, s{sLOG2E}, -v{T}")
        for r in range(4):
            a(f"v_exp_f32 v{P+r}, v{P+r}")
        a(f"v_pk_mul_f32 {vr(L,2)}, {vr(L,2)}, {vr(A,2)} op_sel_hi:[1,0]")
        a(f"v_pk_mul_f32 {vr(O,2)}, {vr(O,2)}, {vr(A,2)} op_sel_hi:[1,0]")
        a(f"v_pk_mul_f32 {vr(O+2,2)}, {vr(O+2,2)}, {vr(A,2)} op_sel_hi:[1,0]")
        a(f"v_pk_add_f32 {vr(L,2)}, {vr(L,2)}, {vr(P,2)}")
        a(f"v_pk_add_f32 {vr(L,2)}, {vr(L,2)}, {vr(P+2,2)}")
        for r in range(4):
            Bs = self.vB + 4 * (r & 1)
            a(f"v_cvt_pk_bf16_f32 v{T+2+r}, v{P+r}, v{P+r}")
            for d in range(4):
                a(f"v_and_b32 v{Bs+d}, v{T+2+r}, v{self.vMK+d}")
            if r == 0:
                a(f"s_waitcnt vmcnt({wv})")
            a(f"v_mfma_f32_16x16x32_bf16 {vr(O,4)}, {vr(v+4*r,4)}, {vr(Bs,4)}, {vr(O,4)}")

    def block_end(self, slot):
        a = self.a
        a("s_waitcnt lgkmcnt(0)")
        a(f"v_readfirstlane_b32 s30, v{self.vTK}")
        a(f"s_cmp_ge_u32 s30, s{sLIM}")
        a.branch(f"s_cbranch_scc1 L_slow_{slot}")
        a(f"s_lshl_b32 s{sOFF}, s30, 12")
        a(f"s_add_u32 s{sOFF}, s{sOFF}, s{sHOME}")
        a(f"s_waitcnt vmcnt({self.pace})")
        a.label(f"L_kv_{slot}", fence=False)
        a(f"s_add_u32 s{sCNT}, s{sCNT}, 1")
        if self.trace:
            a(f"""
            s_memrealtime s[100:101]
            s_waitcnt lgkmcnt(0)
            s_lshl_b32 s100, s100, 8
            s_and_b32 s101, s30, 0xff
            s_or_b32 s100, s100, s101
            s_add_u32 s{sLANE}, s{sLANE}, 1
            s_lshl_b64 exec, 1, s{sLANE}
            v_mov_b32 v{V_ST}, s100
            s_mov_b64 exec, -1
            """)
        k = self.kreg(slot); v = self.vreg(slot)
        for i in range(4):
            a(f"buffer_load_dwordx4 {vr(k+4*i,4)}, v{self.vK}, {srd(S_K)}, s{sOFF} offen offset:{64*i} nt")
        if self.loop_grp == 4: a(f"s_waitcnt vmcnt({self.pace})")
        for i in range(4):
            a(f"buffer_load_dwordx4 {vr(v+4*i,4)}, v{self.vV}, {srd(S_V)}, s{sOFF} offen offset:{256*i} nt")
        a.label(f"L_back_{slot}", fence=False)

    def slow(self, slot):
        a = self.a
        a.label(f"L_slow_{slot}")
        a(f"s_cmp_lg_u32 s{sST}, 0")
        a(f"s_cbranch_scc1 L_alt_{slot}")
        a(f"s_lshl_b32 s92, s30, 2")
        a(f"v_mov_b32 v{self.vPL}, s92")
        a(f"s_mov_b32 s93, {SPIN}")
        if self.stamps:
            a(f"s_cmp_lg_u32 s{sPEND}, 0")
            a(f"s_cbranch_scc1 L_spin_{slot}")
            a(f"s_mov_b32 s{sPEND}, 1")
            self.stamp(10)
        a.label(f"L_spin_{slot}")
        a(f"ds_read_b32 v{self.vT}, v{self.vPL} offset:{TAB_LDS - 4 * self.NS}")
        a("s_waitcnt lgkmcnt(0)")
        a(f"v_readfirstlane_b32 s92, v{self.vT}")
        a(f"s_cmp_lg_u32 s92, 0")
        a(f"s_cbranch_scc1 L_got_{slot}")
        if self.stamps: a(f"s_add_u32 s{sSPIN}, s{sSPIN}, 1")
        a(f"s_sub_u32 s93, s93, 1")
        a(f"s_cmp_lg_u32 s93, 0")
        a.branch(f"s_cbranch_scc1 L_spin_{slot}")
        a(f"s_mov_b32 s92, {STOP:#x}")
        a.label(f"L_got_{slot}")
        a(f"s_cmp_lt_i32 s92, 0")
        a(f"s_cbranch_scc1 L_stop_{slot}")
        a(f"s_and_b32 s{sOFF}, s92, 0x7ff000")
        a(f"s_waitcnt vmcnt({self.pace})")
        a.branch(f"s_branch L_kv_{slot}")
        a.label(f"L_stop_{slot}")
        a(f"s_mov_b32 s{sST}, 1")
        a(f"s_mov_b32 s{sLIM}, 0")
        self.stamp(11)
        a.label(f"L_alt_{slot}")
        a.branch(f"s_branch L_back_{slot}")
        a.label(f"L_dw_{slot}")
        a(f"s_cmp_eq_u32 s{sCNT}, 2")
        a(f"s_cbranch_scc1 L_dw2_{slot}")
        a("s_waitcnt vmcnt(0)")
        a.label(f"L_dw2_{slot}", fence=False)
        a("s_waitcnt vmcnt(8)")
        a.branch(f"s_branch L_dwb_{slot}")

    loop_grp = 8
    vTK, vZ, vOne = 13, 14, 15
    vPL, vDUM, vGU, vWDA = 3, 63, 60, 61

    def wo_dma(self):
        a = self.a
        a(f"s_cmp_eq_u32 s{sCLS}, 2")
        a("s_cbranch_scc0 L_nodma")
        a(f"s_cmp_lt_u32 s{sWAVE}, 4")
        a("s_cbranch_scc0 L_nodma")
        self.mk_srd(S_WO, 12, 4096 * 576 * 2)
        T = self.vT
        a(f"""
        v_lshrrev_b32 v{T}, 3, v0
        v_and_b32 v{T+1}, 6, v{T}
        v_and_b32 v{T+2}, 7, v0
        v_xor_b32 v{T+1}, v{T+1}, v{T+2}
        v_mul_u32_u24 v{T}, 1152, v{T}
        v_lshl_add_u32 v{T}, v{T+1}, 4, v{T}
        s_mul_i32 s92, s{sG}, {256*1152}
        s_lshl_b32 s30, s{sIDX}, 7
        s_add_u32 s92, s92, s30
        s_mul_i32 s30, s{sWAVE}, {8*8*1152}
        s_add_u32 s92, s92, s30
        s_lshl_b32 s30, s{sWAVE}, 13
        s_add_u32 m0, s30, {IMG_LDS}
        """)
        for p in range(8):
            if p % self.pro_grp == 0: a(f"s_waitcnt vmcnt({self.pro_wait})")
            a(f"buffer_load_dwordx4 v{T}, {srd(S_WO)}, s92 offen nt lds")
            if p < 7:
                a("s_add_u32 m0, m0, 1024")
                a(f"s_add_u32 s92, s92, {8*1152}")
        a.label("L_nodma")

    def streaming(self):
        a = self.a; R = self.R
        a(f"""
        v_and_b32 v3, 15, v0
        v_lshlrev_b32 v{self.vK}, 8, v3
        v_lshlrev_b32 v{self.vV}, 4, v3
        v_lshrrev_b32 v3, 4, v0
        v_lshl_add_u32 v{self.vK}, v3, 4, v{self.vK}
        v_lshl_add_u32 v{self.vV}, v3, 10, v{self.vV}
        s_lshl_b32 s30, s{sG}, 23
        s_lshl_b32 s{sHOME}, s{sJ}, 19
        s_lshl_b32 s{sOFF}, s{sWAVE}, 12
        s_add_u32 s{sOFF}, s{sOFF}, s{sHOME}
        v_mov_b32 v{self.vZ}, 0
        v_mov_b32 v{self.vOne}, 1
        s_mov_b32 s{sSCALE}, {SCALE:#x}
        s_mov_b32 s{sSCALE+1}, {SCALE:#x}
        """)
        self.mk_masks(self.vT, self.vT + 1, 3)
        a(f"""
        v_mov_b32 v{self.vL}, 0
        v_mov_b32 v{self.vL+1}, 0
        v_mov_b32 v{self.vM}, 0xff7fffff
        """)
        for r in range(4):
            a(f"v_mov_b32 v{self.vO+r}, 0")
        a(f"""
        v_bfe_u32 v3, v0, 3, 1
        v_lshlrev_b32 v3, 8, v3
        v_lshrrev_b32 v{self.vT}, 4, v0
        v_lshl_add_u32 v3, v{self.vT}, 4, v3
        s_waitcnt lgkmcnt(0)
        """)
        self.mk_srd(S_K, 6, 0x800000, add="s30")
        self.mk_srd(S_V, 8, 0x800000, add="s30")
        if self.binit: a("s_barrier")
        for s in range(R):
            if s == R - 1: self.wo_dma()
            self.issue(s, grp=self.pro_grp, wait=(self.pro_wait if s > 0 or self.pro_grp < 8 else None))
            if s == 0:
                self.stamp(0)
                a(f"s_load_dword s{sTAG}, s[28:29], {WS_EPOCH}")
                self.mk_srd(S_WS, 28, WS_SIZE)
                self.mk_srd(S_WD, 20, 4608 * 576 * 2)
                self.mk_srd(S_X, 4, 1152)
                self.mk_srd(S_OUT, 26, 1152)
                a(f"s_cmp_lt_u32 s{sWAVE}, 4")
                a("s_cbranch_scc0 L_gu_up")
                self.mk_srd(S_WG, 16, 576 * 4608 * 2)
                a("s_branch L_gu_done")
                a.label("L_gu_up", fence=False)
                self.mk_srd(S_WG, 18, 576 * 4608 * 2)
                a.label("L_gu_done", fence=False)
                self.mk_sub(self.vT, self.vT + 1)
                a(f"""
                v_and_b32 v{self.vT+1}, 7, v0
                v_lshlrev_b32 v{self.vT+1}, 4, v{self.vT+1}
                v_mul_u32_u24 v{self.vGU}, 9216, v{self.vT}
                v_add_u32 v{self.vGU}, v{self.vGU}, v{self.vT+1}
                v_mul_u32_u24 v{self.vWDA}, 1152, v{self.vT}
                v_add_u32 v{self.vWDA}, v{self.vWDA}, v{self.vT+1}
                s_and_b32 s92, s{sWAVE}, 3
                s_mul_i32 s{sGUB}, s92, {144 * 9216}
                s_lshl_b32 s92, s{sIDX}, 7
                s_add_u32 s{sGUB}, s{sGUB}, s92
                s_mul_i32 s{sWDB}, s{sIDX}, {64 * 1152}
                s_lshl_b32 s92, s{sWAVE}, 7
                s_add_u32 s{sWDB}, s{sWDB}, s92
                s_mov_b32 s{sOOB}, 0x800000
                s_mov_b32 s{sST}, 0
                s_mov_b32 s{sPEND}, 0
                s_mov_b32 s{sSPIN}, 0
                s_mov_b32 s{sLANE}, 15
                s_mov_b32 s{sLIM}, {self.NS}
                """)
                a("s_waitcnt lgkmcnt(0)")
                a(f"s_mul_i32 s{sTAG}, s{sTAG}, 0x9E3779B1")
                a(f"s_add_u32 s{sTAG}, s{sTAG}, 0x7F4A7C15")
        self.stamp(1)
        if self.qflag:
            self.lds_spin("L_qfl", QFL_LDS, 1, self.vZ, self.vT, 30)
        else:
            a("s_barrier")
        for i in range(4):
            a(f"ds_read_b128 {vr(self.vQ+4*i,4)}, v3 offset:{Q_LDS+64*i}")
        a(f"s_mov_b32 s{sCNT}, {R}")
        a("s_waitcnt lgkmcnt(0)")
        self.stamp(2)
        a.label("L_loop")
        for s in range(R):
            self.block(s, 4 + 8 * (R - 1), 8 * (R - 1))
            a(f"s_sub_u32 s{sCNT}, s{sCNT}, 1")
            a(f"s_cmp_eq_u32 s{sCNT}, 0")
            if s < R - 1:
                a.branch("s_cbranch_scc1 L_epi")
            else:
                a.branch("s_cbranch_scc0 L_loop")
        a.label("L_epi")
        self.stamp(3)
        if self.stamps: a(f"v_writelane_b32 v{V_ST}, s{sSPIN}, 12")
        L = self.vL; T = self.vT
        a(f"v_add_f32 v{L}, v{L}, v{L+1}")
        self.cross_rows("add", [L], [T])
        a(f"""
        v_bfe_u32 v3, v0, 3, 1
        v_lshlrev_b32 v3, 9, v3
        v_lshrrev_b32 v{T+1}, 4, v0
        v_lshl_add_u32 v3, v{T+1}, 7, v3
        v_and_b32 v{T+1}, 7, v0
        v_lshl_add_u32 v3, v{T+1}, 2, v3
        s_lshl_b32 s30, s{sWAVE}, 10
        v_add_u32 v3, s30, v3
        """)
        for r in range(4):
            a(f"ds_write_b32 v3, v{self.vO+r} offset:{PART_LDS+32*r}")
        a(f"""
        v_bfe_u32 v{T+1}, v0, 3, 1
        v_lshlrev_b32 v{T+1}, 5, v{T+1}
        s_lshl_b32 s30, s{sWAVE}, 2
        v_add_u32 v{T+1}, s30, v{T+1}
        s_mov_b64 exec, 0x101
        ds_write_b32 v{T+1}, v{self.vM} offset:{ML_LDS}
        ds_write_b32 v{T+1}, v{L} offset:{ML_LDS+64}
        s_mov_b64 exec, -1
        s_cmp_eq_u32 s{sCLS}, 0
        """)
        a.branch("s_cbranch_scc1 L_ffn_tail")
        a(f"s_cmp_eq_u32 s{sCLS}, 2")
        a.branch("s_cbranch_scc1 L_wo_tail")
        a("""
        s_waitcnt lgkmcnt(0)
        s_barrier
        """)
        self.stamp(4)
        self.stamp_flush()
        a("s_endpgm")
        for s in range(R):
            self.slow(s)

    def wo_tail(self):
        a = self.a
        a.label("L_wo_tail")
        a(f"s_cmp_lt_u32 s{sWAVE}, 4")
        a.branch("s_cbranch_scc0 L_wo_c")
        a(f"""
        s_lshl_b32 s30, s{sWAVE}, 6
        v_add_u32 v1, s30, v0
        v_lshlrev_b32 v2, 2, v1
        v_lshrrev_b32 v8, 5, v1
        v_lshlrev_b32 v8, 6, v8
        v_bfe_u32 v9, v1, 2, 2
        v_lshl_add_u32 v8, v9, 4, v8
        v_bfe_u32 v9, v1, 4, 1
        v_lshl_add_u32 v8, v9, 3, v8
        v_and_b32 v9, 3, v1
        v_lshl_add_u32 v8, v9, 1, v8
        v_and_b32 v3, 15, v0
        v_lshlrev_b32 v3, 4, v3
        s_lshr_b32 s30, s{sWAVE}, 1
        s_lshl_b32 s30, s30, 3
        v_add_u32 v3, s30, v3
        s_lshl_b32 s30, s{sG}, 14
        s_add_u32 s92, s30, {WS_T1O}
        s_add_u32 s93, s92, 4096
        s_add_u32 s94, s92, 8192
        s_add_u32 s95, s92, 12288
        s_lshl_b32 s30, s{sG}, 8
        s_add_u32 s96, s30, {WS_T1ML}
        s_waitcnt lgkmcnt(0)
        s_barrier
        """)
        self.stamp(4)
        D = 16
        def ml_ld(): a(f"buffer_load_dwordx2 v[32:33], v3, {srd(S_WS)}, s96 offen sc1")
        def ml_ck():
            a("v_add_f32 v34, v32, v33")
            a("v_cmp_u_f32 vcc, v34, v34")
        def ml_ov():
            a("v_mov_b32 v34, v32")
            self.row_allreduce("max", [34])
            a("v_sub_f32 v35, v32, v34")
            a("v_exp_f32 v35, v35")
            a("v_mul_f32 v36, v35, v33")
            self.row_allreduce("add", [36])
            a("v_rcp_f32 v36, v36")
            a("v_mul_f32 v35, v35, v36")
        units = [(ml_ld, ml_ck, ml_ov)]
        for q in range(4):
            def ld(q=q):
                for s_ in range(4 * q, 4 * q + 4):
                    a(f"buffer_load_dword v{D+s_}, v2, {srd(S_WS)}, s{92 + q} offen offset:{1024*(s_%4)} sc1")
            def ck(q=q):
                a(f"v_add_f32 v38, v{D+4*q}, v{D+4*q+1}")
                a(f"v_add_f32 v39, v{D+4*q+2}, v{D+4*q+3}")
                a("v_add_f32 v38, v38, v39")
                a("v_cmp_u_f32 vcc, v38, v38")
            units.append((ld, ck, None))
        self.inc_poll("L_t1poll", units, 97)
        a("v_mov_b32 v37, 0")
        for s_ in range(16):
            a(f"v_fmac_f32_dpp v37, v35, v{D+s_} row_newbcast:{s_} row_mask:0xf bank_mask:0xf")
        a(f"v_cvt_pk_bf16_f32 v37, v37, v37")
        a(f"ds_write_b16 v8, v37 offset:{O_LDS}")
        a("s_waitcnt lgkmcnt(0)")
        self.stamp(5)
        a("s_barrier")
        self.stamp_flush()
        a("s_endpgm")
        a.label("L_wo_c")
        a("""
        s_waitcnt lgkmcnt(0)
        s_barrier
        """)
        self.stamp(4)
        a.label("L_wo_mm")
        WOF = 64; OF = 96
        a(f"""
        s_sub_u32 s30, s{sWAVE}, 4
        v_bfe_u32 v1, v0, 4, 1
        v_bfe_u32 v2, v0, 2, 2
        v_lshl_add_u32 v1, v1, 2, v2
        v_bfe_u32 v2, v0, 1, 1
        s_lshl_b32 s31, s30, 1
        v_add_u32 v2, s31, v2
        v_and_b32 v3, 6, v1
        v_xor_b32 v2, v2, v3
        v_lshlrev_b32 v2, 4, v2
        v_lshl_add_u32 v2, v1, 7, v2
        v_and_b32 v3, 1, v0
        v_lshl_add_u32 v2, v3, 3, v2
        v_lshrrev_b32 v3, 5, v0
        v_lshl_add_u32 v2, v3, 10, v2
        v_add_u32 v2, {IMG_LDS}, v2
        v_lshrrev_b32 v3, 4, v0
        v_lshlrev_b32 v3, 4, v3
        """)
        for ks in range(8):
            a(f"ds_read_b64_tr_b16 {vr(WOF+4*ks,2)}, v2 offset:{4096*ks}")
            a(f"ds_read_b64_tr_b16 {vr(WOF+4*ks+2,2)}, v2 offset:{4096*ks+2048}")
        a(f"""
        s_mul_i32 s31, s{sG}, 2304
        s_lshl_b32 s93, s{sIDX}, 8
        s_add_u32 s93, s93, s31
        s_lshl_b32 s31, s30, 6
        s_add_u32 s93, s93, s31
        s_add_u32 s93, s93, {WS_T2}
        s_mov_b32 s30, 0x00010001
        s_mov_b32 s31, 0x00010001
        s_waitcnt lgkmcnt(0)
        s_barrier
        """)
        for s in range(8):
            a(f"ds_read_b128 {vr(OF+4*s,4)}, v3 offset:{O_LDS+64*s}")
        for s in range(8):
            a(f"s_waitcnt lgkmcnt({7-s})")
            c = "0" if s == 0 else vr(12, 4)
            a(f"v_mfma_f32_16x16x32_bf16 {vr(12,4)}, {vr(WOF+4*s,4)}, {vr(OF+4*s,4)}, {c}")
        a(f"""
        s_mov_b64 exec, s[30:31]
        buffer_store_dwordx4 v[12:15], v3, {srd(S_WS)}, s93 offen sc1
        s_mov_b64 exec, -1
        """)
        self.stamp(6)
        a.branch("s_branch L_fin")

    GU = 64
    WD = 136
    WDX = 168
    def TD(self, s): return 16 + 4 * s if s < 9 else 200 + 4 * (s - 9)
    CX, CGA, CCB, CSB = 228, 230, 234, 238
    ACC4 = 244
    UX = 168
    GBQ = 184
    FINW = 6

    def ffn_addr(self):
        a = self.a
        self.mk_sub(1, 2)
        a(f"""
        v_mul_u32_u24 v8, {HD_P}, v1
        s_and_b32 s30, s{sWAVE}, 3
        s_mul_i32 s30, s30, {8 * HD_P}
        s_add_u32 s30, s30, {HD2_LDS}
        v_add_u32 v8, s30, v8
        v_lshlrev_b32 v11, 2, v1
        v_lshrrev_b32 v12, 4, v0
        v_lshlrev_b32 v12, 4, v12
        v_and_b32 v9, 7, v0
        v_lshl_add_u32 v12, v9, 5, v12
        s_lshl_b32 s30, s{sWAVE}, 8
        s_add_u32 s30, s30, {PX_LDS}
        v_add_u32 v9, s30, v12
        v_lshlrev_b32 v10, 2, v0
        v_add_u32 v10, {PX_LDS}, v10
        """)

    def ffn_tail(self):
        a = self.a
        GU = self.GU; WD = self.WD
        a.label("L_ffn_tail")
        a("s_mov_b64 exec, 1")
        a(f"ds_add_u32 v{self.vZ}, v{self.vOne} offset:{ARR_LDS}")
        a("s_mov_b64 exec, -1")
        self.ffn_addr()
        a(f"s_cmp_lt_u32 s{sWAVE}, 3")
        a("s_cbranch_scc0 L_ffn_nog")
        a(f"""
        s_lshl_b32 s30, s{sWAVE}, 6
        v_add_u32 v52, s30, v0
        v_lshlrev_b32 v53, 4, v52
        v_lshlrev_b32 v54, 3, v52
        v_cmp_gt_u32 vcc, 144, v52
        v_mov_b32 v55, 0x7ffffff0
        v_cndmask_b32 v55, v55, v53, vcc
        v_min_u32 v56, 143, v52
        v_lshlrev_b32 v56, 4, v56
        v_mul_u32_u24 v57, 57, v52
        v_lshrrev_b32 v57, 11, v57
        v_mul_u32_u24 v58, 36, v57
        v_sub_u32 v58, v52, v58
        v_mul_u32_u24 v57, {8 * HD_P}, v57
        v_lshrrev_b32 v59, 1, v58
        v_lshl_add_u32 v57, v59, 2, v57
        v_and_b32 v58, 1, v58
        v_mul_u32_u24 v58, {4 * HD_P}, v58
        v_add_u32 v57, v57, v58
        v_add_u32 v57, {HD2_LDS}, v57
        buffer_load_dwordx2 {vr(self.CX,2)}, v54, {srd(S_X)}, 0 offen
        s_mov_b32 s92, {WS_P3}
        s_mov_b32 s93, {WS_P3 + 2304}
        s_mov_b32 s94, {WS_P3 + 4608}
        """)
        a(f"buffer_load_dwordx4 {vr(self.CGA,4)}, v56, {srd(S_WS)}, s92 offen sc1")
        a(f"buffer_load_dwordx4 {vr(self.CSB,4)}, v56, {srd(S_WS)}, s93 offen sc1")
        a(f"buffer_load_dwordx4 {vr(self.CCB,4)}, v56, {srd(S_WS)}, s94 offen sc1")
        a.label("L_ffn_nog")
        for q in range(18):
            a(f"buffer_load_dwordx4 {vr(GU+4*q,4)}, v{self.vGU}, {srd(S_WG)}, s{sGUB} offen nt")
            if q < 17: a(f"s_add_u32 s{sGUB}, s{sGUB}, {8*9216}")
        for q in range(8):
            a(f"buffer_load_dwordx4 {vr(WD+4*q,4)}, v{self.vWDA}, {srd(S_WD)}, s{sWDB} offen nt")
            if q < 7: a(f"s_add_u32 s{sWDB}, s{sWDB}, {8*1152}")
        self.stamp(14)
        self.stamp(4)
        a.label("L_ffn_post")
        a(f"s_cmp_lt_u32 s{sWAVE}, 3")
        a.branch("s_cbranch_scc0 L_ffn_w3")
        a(f"""
        s_mov_b32 s92, {WS_P3}
        s_mov_b32 s93, {WS_P3 + 2304}
        s_mov_b32 s94, {WS_P3 + 4608}
        """)
        regs = []
        for q in (self.CGA, self.CSB, self.CCB): regs += [q + 1, q + 3]
        a("s_waitcnt vmcnt(26)")
        self.tagcheck(regs, 58, 59)
        a.branch("s_cbranch_vccz L_p3poll_ok")
        self.poll_begin("L_p3poll")
        a(f"buffer_load_dwordx4 {vr(self.CGA,4)}, v56, {srd(S_WS)}, s92 offen sc1")
        a(f"buffer_load_dwordx4 {vr(self.CSB,4)}, v56, {srd(S_WS)}, s93 offen sc1")
        a(f"buffer_load_dwordx4 {vr(self.CCB,4)}, v56, {srd(S_WS)}, s94 offen sc1")
        a("s_waitcnt vmcnt(0)")
        self.tagcheck(regs, 58, 59)
        self.poll_end("L_p3poll")
        X, GA, CB, SB = self.UX, self.UX + 4, self.UX + 8, self.UX + 12
        for dst, lo, hi in ((X, self.CX, self.CX + 1), (GA, self.CGA, self.CGA + 2), (CB, self.CCB, self.CCB + 2), (SB, self.CSB, self.CSB + 2)):
            a(f"v_lshlrev_b32 v{dst}, 16, v{lo}")
            a(f"v_and_b32 v{dst+1}, 0xffff0000, v{lo}")
            a(f"v_lshlrev_b32 v{dst+2}, 16, v{hi}")
            a(f"v_and_b32 v{dst+3}, 0xffff0000, v{hi}")
        for r in range(4):
            a(f"v_add_f32 v{CB+r}, 1.0, v{CB+r}")
        for r in range(4): self.rnd(CB + r, CB + r)
        self.stamp(8)
        for k in range(8):
            a(f"s_mov_b32 s{92+k}, {WS_T2 + 4608*k}")
        AC = self.ACC4
        a("v_mov_b32 v58, 0")
        self.lds_spin("L_hfl", HFL_LDS, 1, 58, 59, 30)
        if self.t2gate:
            a(f"""
            v_mul_u32_u24 v58, 2304, v0
            s_lshl_b32 s30, s{sWAVE}, 10
            s_add_u32 s30, s30, {WS_T2}
            s_mov_b64 exec, 0xffff
            """)
            self.poll_begin("L_t2gate")
            a(f"buffer_load_dword v59, v58, {srd(S_WS)}, s30 offen sc1")
            a("s_waitcnt vmcnt(0)")
            a("v_cmp_o_f32 vcc, v59, v59")
            a(f"s_cbranch_vccnz L_t2gate_ok")
            a(f"s_sub_u32 s{sCNT}, s{sCNT}, 1")
            a(f"s_cmp_lg_u32 s{sCNT}, 0")
            a.branch("s_cbranch_scc1 L_t2gate")
            a.label("L_t2gate_ok")
            a("s_mov_b64 exec, -1")
        units = []
        for q in range(4):
            def ld(q=q):
                for s_ in range(4 * q, 4 * q + 4):
                    a(f"buffer_load_dwordx4 {vr(self.TD(s_),4)}, v55, {srd(S_WS)}, s{92 + s_//2} offen offset:{2304*(s_%2)} sc1")
            def ck(q=q):
                t = [self.TD(4 * q + k) for k in range(4)]
                for h in (0, 2):
                    a(f"v_pk_add_f32 {vr(t[0]+h,2)}, {vr(t[0]+h,2)}, {vr(t[1]+h,2)}")
                    a(f"v_pk_add_f32 {vr(t[2]+h,2)}, {vr(t[2]+h,2)}, {vr(t[3]+h,2)}")
                for h in (0, 2):
                    a(f"v_pk_add_f32 {vr(t[0]+h,2)}, {vr(t[0]+h,2)}, {vr(t[2]+h,2)}")
                a(f"v_add_f32 v248, v{t[0]}, v{t[0]+1}")
                a(f"v_add_f32 v249, v{t[0]+2}, v{t[0]+3}")
                a("v_add_f32 v248, v248, v249")
                a("v_cmp_u_f32 vcc, v248, v248")
            units.append((ld, ck, None))
        self.inc_poll("L_t2poll", units, 31)
        q0, q1, q2, q3 = [self.TD(4 * q) for q in range(4)]
        for h in (0, 2):
            a(f"v_pk_add_f32 {vr(q0+h,2)}, {vr(q0+h,2)}, {vr(q1+h,2)}")
            a(f"v_pk_add_f32 {vr(q2+h,2)}, {vr(q2+h,2)}, {vr(q3+h,2)}")
        for h in (0, 2):
            a(f"v_pk_add_f32 {vr(AC+h,2)}, {vr(q0+h,2)}, {vr(q2+h,2)}")
        self.stamp(5)
        for r in range(4): self.rnd(AC + r, AC + r)
        a(f"v_pk_mul_f32 {vr(AC,2)}, {vr(AC,2)}, {vr(GA,2)}")
        a(f"v_pk_mul_f32 {vr(AC+2,2)}, {vr(AC+2,2)}, {vr(GA+2,2)}")
        for r in range(4): self.rnd(AC + r, AC + r)
        a(f"v_pk_add_f32 {vr(AC,2)}, {vr(AC,2)}, {vr(X,2)}")
        a(f"v_pk_add_f32 {vr(AC+2,2)}, {vr(AC+2,2)}, {vr(X+2,2)}")
        for r in range(4): self.rnd(AC + r, AC + r)
        a(f"ds_write_b128 v53, {vr(AC,4)} offset:{X1_LDS}")
        a(f"v_add_f32 v248, v{AC}, v{AC+1}")
        a(f"v_mul_f32 v249, v{AC}, v{AC}")
        a(f"v_add_f32 v250, v{AC+2}, v{AC+3}")
        a(f"v_fmac_f32 v249, v{AC+1}, v{AC+1}")
        a(f"v_add_f32 v248, v248, v250")
        a(f"v_fmac_f32 v249, v{AC+2}, v{AC+2}")
        a(f"v_fmac_f32 v249, v{AC+3}, v{AC+3}")
        self.row_allreduce("add", [248, 249])
        self.cross_rows("add", [248, 249], [250, 251])
        a(f"""
        s_lshl_b32 s30, s{sWAVE}, 3
        v_mov_b32 v250, s30
        s_mov_b64 exec, 1
        ds_write_b64 v250, v[248:249] offset:{ST_LDS}
        s_mov_b64 exec, -1
        s_waitcnt lgkmcnt(0)
        s_barrier
        v_mov_b32 v250, 0
        ds_read_b128 v[20:23], v250 offset:{ST_LDS}
        ds_read_b64 v[24:25], v250 offset:{ST_LDS+16}
        s_waitcnt lgkmcnt(0)
        v_add_f32 v248, v20, v22
        v_add_f32 v249, v21, v23
        v_add_f32 v248, v248, v24
        v_add_f32 v249, v249, v25
        v_mul_f32 v248, {f32(1.0/576.0)}, v248
        v_mul_f32 v249, {f32(1.0/576.0)}, v249
        v_fma_f32 v249, -v248, v248, v249
        v_max_f32 v249, 0, v249
        """)
        self.ln_finish(248, 249)
        for r in range(4):
            a(f"v_sub_f32 v{AC+r}, v{AC+r}, v248")
        for r in range(4): self.rnd(AC + r, AC + r)
        for r in range(4):
            a(f"v_mul_f32 v{AC+r}, v{AC+r}, v249")
        for r in range(4): self.rnd(AC + r, AC + r)
        a(f"v_pk_mul_f32 {vr(AC,2)}, {vr(AC,2)}, {vr(CB,2)}")
        a(f"v_pk_mul_f32 {vr(AC+2,2)}, {vr(AC+2,2)}, {vr(CB+2,2)}")
        for r in range(4): self.rnd(AC + r, AC + r)
        a(f"v_pk_add_f32 {vr(AC,2)}, {vr(AC,2)}, {vr(SB,2)}")
        a(f"v_pk_add_f32 {vr(AC+2,2)}, {vr(AC+2,2)}, {vr(SB+2,2)}")
        if self.dbg:
            a(f"v_cvt_pk_bf16_f32 v250, v{AC}, v{AC+1}")
            a(f"v_cvt_pk_bf16_f32 v251, v{AC+2}, v{AC+3}")
            a(f"s_lshl_b32 s92, s{sIDX}, 11")
            a(f"s_add_u32 s92, s92, {WS_DBG}")
            a(f"buffer_store_dwordx2 v[250:251], v54, {srd(S_WS)}, s92 offen")
        for r in range(4):
            a(f"v_cvt_pk_bf16_f32 v{AC+r}, v{AC+r}, v{AC+r}")
        a(f"ds_write2_b32 v57, v{AC}, v{AC+1} offset0:0 offset1:{HD_P//4}")
        a(f"ds_write2_b32 v57, v{AC+2}, v{AC+3} offset0:{2*HD_P//4} offset1:{3*HD_P//4}")
        a("s_waitcnt lgkmcnt(0)")
        self.stamp(6)
        a.branch("s_branch L_ffn_b4")
        a.label("L_ffn_w3")
        a(f"s_cmp_eq_u32 s{sWAVE}, {self.FINW}")
        a("s_cbranch_scc0 L_ffn_nogb")
        a(f"""
        v_and_b32 v56, 3, v0
        v_lshlrev_b32 v56, 4, v56
        s_min_u32 s92, s{sIDX}, 35
        s_lshl_b32 s92, s92, 6
        s_add_u32 s92, s92, {WS_P3 + 1728*4}
        """)
        self.poll_begin("L_gbpoll")
        a(f"buffer_load_dwordx4 {vr(self.GBQ,4)}, v56, {srd(S_WS)}, s92 offen sc1")
        a("s_waitcnt vmcnt(0)")
        self.tagcheck([self.GBQ + 1, self.GBQ + 3], 58, 59)
        self.poll_end("L_gbpoll")
        a.label("L_ffn_nogb")
        a("s_barrier")
        a.label("L_ffn_b4")
        a("s_barrier")
        AV = 16
        for q in range(5):
            a(f"ds_read_b128 {vr(AV+4*q,4)}, v8 offset:{16*q}")
        kb = 0.7978845608028654; kk = 0.044715
        c1 = -2.0 * kb * 1.4426950408889634
        a(f"""
        s_mov_b32 s92, {f32(kk)}
        s_mov_b32 s30, 0x00ff00ff
        s_mov_b32 s31, 0
        s_mul_i32 s93, s{sIDX}, 2304
        s_lshl_b32 s94, s{sWAVE}, 8
        s_add_u32 s93, s93, s94
        s_add_u32 s93, s93, {WS_T3}
        s_waitcnt vmcnt(0) lgkmcnt(0)
        """)
        self.stamp(9)
        self.gemv(GU, 18, [AV + t for t in range(18)], 40, 48, True)
        self.halfsum(48, 52)
        a(f"""
        s_mov_b64 exec, s[30:31]
        ds_write_b128 v9, v[48:51]
        s_mov_b64 exec, -1
        s_waitcnt lgkmcnt(0)
        s_barrier
        """)
        for w in range(8):
            a(f"ds_read_b32 v{16+w}, v10 offset:{256*w}")
        a(f"""
        s_waitcnt lgkmcnt(4)
        v_add_f32 v16, v16, v17
        v_add_f32 v18, v18, v19
        v_add_f32 v24, v16, v18
        s_waitcnt lgkmcnt(0)
        v_add_f32 v20, v20, v21
        v_add_f32 v22, v22, v23
        v_add_f32 v25, v20, v22
        """)
        self.rnd(24, 24)
        self.rnd(25, 25)
        a(f"""
        v_mul_f32 v26, v24, v24
        v_fma_f32 v26, v26, s92, 1.0
        v_mul_f32 v26, v26, v24
        v_mul_f32 v26, {f32(c1)}, v26
        v_exp_f32 v26, v26
        v_add_f32 v26, 1.0, v26
        v_rcp_f32 v26, v26
        v_mul_f32 v26, v26, v24
        """)
        self.rnd(26, 26)
        a("v_mul_f32 v26, v26, v25")
        a("v_cvt_pk_bf16_f32 v26, v26, v26")
        if self.dbg:
            a(f"""
            v_lshlrev_b32 v54, 1, v0
            s_lshl_b32 s92, s{sIDX}, 7
            s_add_u32 s92, s92, {WS_DBG + 0x40000}
            buffer_store_short v26, v54, {srd(S_WS)}, s92 offen
            s_add_u32 s92, s92, 0x4000
            buffer_store_short_d16_hi v24, v54, {srd(S_WS)}, s92 offen
            s_add_u32 s92, s92, 0x4000
            buffer_store_short_d16_hi v25, v54, {srd(S_WS)}, s92 offen
            """)
        for t in range(8):
            a(f"ds_bpermute_b32 v{16+t}, v11, v26 offset:{32*t}")
        a("s_waitcnt lgkmcnt(0)")
        AVd = [16 + t for t in range(8)]
        self.gemv(WD, 8, AVd, 40, 48, True)
        self.halfsum(48, 52)
        a(f"""
        s_mov_b64 exec, s[30:31]
        buffer_store_dwordx4 v[48:51], v12, {srd(S_WS)}, s93 offen sc1
        s_mov_b64 exec, -1
        """)
        a(f"s_cmp_eq_u32 s{sWAVE}, 7")
        a("s_cbranch_scc0 L_ffn_nod3")
        self.gemv(self.WDX, 8, AVd, 40, 36, True)
        self.halfsum(36, 32)
        a(f"""
        s_mul_i32 s93, s{sIDX}, 2304
        s_add_u32 s93, s93, {WS_T3 + 8*256}
        s_mov_b64 exec, s[30:31]
        buffer_store_dwordx4 v[36:39], v12, {srd(S_WS)}, s93 offen sc1
        s_mov_b64 exec, -1
        """)
        a.label("L_ffn_nod3")
        self.stamp(7)
        a(f"s_cmp_eq_u32 s{sWAVE}, {self.FINW}")
        a.branch("s_cbranch_scc0 L_fin")
        a(f"s_cmp_lt_u32 s{sIDX}, 36")
        a.branch("s_cbranch_scc0 L_fin")
        a(f"""
        v_lshrrev_b32 v1, 2, v0
        v_mul_u32_u24 v2, 2304, v1
        v_and_b32 v3, 3, v0
        v_lshl_add_u32 v2, v3, 4, v2
        v_cmp_gt_u32 vcc, 8, v1
        v_mov_b32 v8, 0x7ffffff0
        v_cndmask_b32 v8, v8, v2, vcc
        v_lshlrev_b32 v9, 4, v3
        s_lshl_b32 s30, s{sIDX}, 6
        v_add_u32 v9, s30, v9
        v_lshrrev_b32 v10, 1, v9
        ds_read_b128 v[40:43], v9 offset:{X1_LDS}
        s_add_u32 s92, s30, {WS_T3}
        s_add_u32 s93, s92, {16*2304}
        s_add_u32 s94, s92, {32*2304}
        s_add_u32 s95, s92, {48*2304}
        s_add_u32 s96, s92, {64*2304}
        """)
        self.poll_begin("L_t3poll")
        for t in range(5):
            a(f"buffer_load_dwordx4 {vr(16+4*t,4)}, v{2 if t < 4 else 8}, {srd(S_WS)}, s{92+t} offen sc1")
        for t in range(1, 5):
            a(f"s_waitcnt vmcnt({4-t})")
            a(f"v_pk_add_f32 v[16:17], v[16:17], {vr(16+4*t,2)}")
            a(f"v_pk_add_f32 v[18:19], v[18:19], {vr(18+4*t,2)}")
        self.row_allreduce("add", [16, 17, 18, 19], shifts=(8, 4))
        self.cross_rows("add", [16, 17, 18, 19], [20, 21, 22, 23])
        a("v_add_f32 v24, v16, v17")
        a("v_add_f32 v25, v18, v19")
        a("v_add_f32 v24, v24, v25")
        a("v_cmp_u_f32 vcc, v24, v24")
        self.poll_end("L_t3poll")
        for r in range(4): self.rnd(16 + r, 16 + r)
        a(f"""
        v_lshlrev_b32 v20, 16, v{self.GBQ}
        v_and_b32 v21, 0xffff0000, v{self.GBQ}
        v_lshlrev_b32 v22, 16, v{self.GBQ+2}
        v_and_b32 v23, 0xffff0000, v{self.GBQ+2}
        s_waitcnt lgkmcnt(0)
        v_pk_mul_f32 v[16:17], v[16:17], v[20:21]
        v_pk_mul_f32 v[18:19], v[18:19], v[22:23]
        """)
        for r in range(4): self.rnd(16 + r, 16 + r)
        a(f"""
        v_pk_add_f32 v[16:17], v[16:17], v[40:41]
        v_pk_add_f32 v[18:19], v[18:19], v[42:43]
        v_cvt_pk_bf16_f32 v16, v16, v17
        v_cvt_pk_bf16_f32 v17, v18, v19
        s_mov_b64 exec, 0xf
        buffer_store_dwordx2 v[16:17], v10, {srd(S_OUT)}, 0 offen
        s_mov_b64 exec, -1
        """)
        a.label("L_fin")
        a("s_cmp_eq_u32 s2, 0")
        a("s_cbranch_scc0 L_fin2")
        a(f"s_cmp_eq_u32 s{sWAVE}, 7")
        a("s_cbranch_scc0 L_fin2")
        a(f"""
        s_load_dword s30, s[28:29], {WS_EPOCH}
        s_waitcnt lgkmcnt(0)
        s_add_u32 s30, s30, 1
        v_mov_b32 v16, s30
        v_mov_b32 v17, {WS_EPOCH}
        s_mov_b64 exec, 1
        buffer_store_dword v16, v17, {srd(S_WS)}, 0 offen sc1
        s_mov_b64 exec, -1
        """)
        a.label("L_fin2")
        self.stamp_flush()
        a("s_endpgm")

    def service(self):
        a = self.a
        a.label("L_service")
        AV = 16
        ASET = 40
        ACC = 48
        T4 = 52
        WA = 64
        WQ = 136
        XR = 208
        XP = 214
        CR = 216
        XV = 220
        NP = 232
        G = 64
        PROD = f"s_cmp_lt_i32 s{sPA}, 0"
        a(f"""
        s_setprio 3
        v_lshlrev_b32 v1, 1, v0
        v_lshlrev_b32 v3, 3, v0
        v_lshlrev_b32 v2, 2, v0
        v_lshlrev_b32 v8, 4, v0
        """)
        self.mk_sub(9, 10)
        a(f"""
        v_and_b32 v10, 7, v0
        v_lshlrev_b32 v10, 4, v10
        v_mul_u32_u24 v11, 6912, v9
        v_add_u32 v11, v11, v10
        v_lshl_add_u32 v12, v9, 13, v10
        v_mul_u32_u24 v13, {HD_P}, v9
        s_and_b32 s92, s{sPA}, 3
        s_lshr_b32 s93, s{sPA}, 2
        s_mul_i32 s94, s92, 288
        s_mul_i32 s95, s92, {144*6912}
        s_lshl_b32 s96, s93, 7
        s_add_u32 s95, s95, s96
        s_waitcnt lgkmcnt(0)
        """)
        self.mk_srd(S_C, 22, 1152)
        self.mk_srd(S_WMOD, 24, 576 * 3456 * 2)
        a(PROD)
        a("s_cbranch_scc1 L_sv_nop1a")
        for i in range(3):
            a(f"buffer_load_ushort v{CR+i}, v1, {srd(S_C)}, s94 offen offset:{128*i}")
        for t in range(18):
            a(f"buffer_load_dwordx4 {vr(WA+4*t,4)}, v11, {srd(S_WMOD)}, s95 offen nt")
            if t < 17: a(f"s_add_u32 s95, s95, {8*6912}")
        a.label("L_sv_nop1a")
        a(f"v_mov_b32 v56, {7*self.R}")
        a("v_mov_b32 v57, 0")
        a("v_mov_b32 v58, 0")
        a("v_mov_b32 v59, 0")
        a(f"ds_write_b128 v57, v[56:59] offset:{CTR_LDS}")
        a("s_waitcnt lgkmcnt(0)")
        if self.binit: a("s_barrier")
        a(f"s_load_dword s{sTAG}, s[28:29], {WS_EPOCH}")
        self.tab_init()
        self.mk_srd(S_X, 4, 1152)
        self.mk_srd(S_WQ, 10, 576 * 4096 * 2)
        for j in range(3):
            a(f"buffer_load_dwordx2 {vr(XR+2*j,2)}, v3, {srd(S_X)}, 0 offen offset:{512*j}")
        a(f"""
        s_lshr_b32 s96, s{sJ}, 2
        s_mul_i32 s97, s96, 288
        buffer_load_dword v{XP}, v2, {srd(S_X)}, s97 offen
        buffer_load_dword v{XP+1}, v2, {srd(S_X)}, s97 offen offset:256
        s_mul_i32 s98, s96, {144*8192}
        s_lshl_b32 s99, s{sG}, 9
        s_add_u32 s98, s98, s99
        s_and_b32 s99, s{sJ}, 3
        s_lshl_b32 s99, s99, 7
        s_add_u32 s98, s98, s99
        """)
        for t in range(18):
            a(f"buffer_load_dwordx4 {vr(WQ+4*t,4)}, v12, {srd(S_WQ)}, s98 offen nt")
            if t < 17: a(f"s_add_u32 s98, s98, {8*8192}")
        self.mk_srd(S_WS, 28, WS_SIZE)
        self.mk_masks(56, 57, 58)
        a("s_waitcnt lgkmcnt(0)")
        a(f"s_mul_i32 s{sTAG}, s{sTAG}, 0x9E3779B1")
        a(f"s_add_u32 s{sTAG}, s{sTAG}, 0x7F4A7C15")
        self.stamp(0)
        a(f"""
        v_and_b32 v15, 7, v0
        v_lshlrev_b32 v15, 6, v15
        v_lshrrev_b32 v56, 4, v0
        v_lshl_add_u32 v15, v56, 5, v15
        v_and_b32 v56, 7, v0
        v_mul_u32_u24 v56, {HD_P}, v56
        v_lshrrev_b32 v57, 3, v0
        v_lshl_add_u32 v56, v57, 2, v56
        """)
        a(PROD)
        a.branch("s_cbranch_scc1 L_sv_nop1b")
        a("s_waitcnt vmcnt(41)")
        for i in range(3):
            a(f"v_lshlrev_b32 v{CR+i}, 16, v{CR+i}")
            self.silu(CR + i, T4 + i, 58, 59)
        a(f"ds_write_b32 v56, v{T4} offset:{HD_LDS}")
        a(f"ds_write_b32 v56, v{T4+1} offset:{HD_LDS+32}")
        a("s_mov_b64 exec, 0xffff")
        a(f"ds_write_b32 v56, v{T4+2} offset:{HD_LDS+64}")
        a("s_mov_b64 exec, -1")
        a("s_waitcnt lgkmcnt(0)")
        for q in range(5):
            a(f"ds_read_b128 {vr(AV+4*q,4)}, v13 offset:{HD_LDS+16*q}")
        a("s_waitcnt lgkmcnt(0)")
        waits = {t: f"s_waitcnt vmcnt({23 + 15 - t})" for t in range(0, 18, 3)}
        self.gemv(WA, 18, [AV + t for t in range(18)], ASET, ACC, True, waits)
        self.halfsum(ACC, T4)
        self.publish_f32(ACC, 15, None)
        a(f"""
        s_and_b32 s92, s{sPA}, 3
        s_mul_i32 s92, s92, {P1S}
        s_lshr_b32 s93, s{sPA}, 2
        s_lshl_b32 s93, s93, 9
        s_add_u32 s92, s92, s93
        s_add_u32 s92, s92, {WS_P1}
        """)
        self.publish_store(15, "s92")
        a.label("L_sv_nop1b")
        self.stamp(1)
        a("s_waitcnt vmcnt(18)")
        for j in range(3):
            for d in range(2):
                a(f"v_lshlrev_b32 v{XV+4*j+2*d}, 16, v{XR+2*j+d}")
                a(f"v_and_b32 v{XV+4*j+2*d+1}, 0xffff0000, v{XR+2*j+d}")
        a(f"v_add_f32 v56, v{XV}, v{XV+1}")
        for k in range(2, 12):
            a(f"v_add_f32 v56, v56, v{XV+k}")
        self.row_allreduce("add", [56])
        self.cross_rows("add", [56], [57])
        a(f"v_mul_f32 v56, {f32(1.0/576.0)}, v56")
        a("v_mov_b32 v57, 0")
        for k in range(8):
            a(f"v_sub_f32 v58, v{XV+k}, v56")
            a("v_fmac_f32 v57, v58, v58")
        a("s_mov_b64 exec, 0xffff")
        for k in range(8, 12):
            a(f"v_sub_f32 v58, v{XV+k}, v56")
            a("v_fmac_f32 v57, v58, v58")
        a("s_mov_b64 exec, -1")
        self.row_allreduce("add", [57])
        self.cross_rows("add", [57], [58])
        a(f"v_mul_f32 v57, {f32(1.0/576.0)}, v57")
        self.ln_finish(56, 57)
        a(f"v_lshlrev_b32 v{NP}, 16, v{XP}")
        a(f"v_and_b32 v{NP+1}, 0xffff0000, v{XP}")
        a(f"v_lshlrev_b32 v{NP+2}, 16, v{XP+1}")
        a(f"v_and_b32 v{NP+3}, 0xffff0000, v{XP+1}")
        for k in range(4): a(f"v_sub_f32 v{NP+k}, v{NP+k}, v56")
        for k in range(4): self.rnd(NP + k, NP + k)
        for k in range(4): a(f"v_mul_f32 v{NP+k}, v{NP+k}, v57")
        for k in range(4): self.rnd(NP + k, NP + k)
        a(f"""
        v_min_u32 v58, 7, v0
        v_lshlrev_b32 v58, 4, v58
        v_add_u32 v58, 1024, v58
        s_lshr_b32 s96, s{sJ}, 2
        s_mul_i32 s96, s96, 1152
        s_add_u32 s92, s96, {WS_P1}
        s_add_u32 s93, s92, {P1S}
        s_add_u32 s94, s92, {2*P1S}
        s_add_u32 s95, s92, {3*P1S}
        s_add_u32 s96, s92, 4608
        s_add_u32 s97, s93, 4608
        s_add_u32 s98, s94, 4608
        s_add_u32 s99, s95, 4608
        v_and_b32 v59, 3, v0
        v_mul_u32_u24 v59, {2*HD_P}, v59
        v_lshrrev_b32 v57, 2, v0
        v_lshl_add_u32 v59, v57, 2, v59
        """)
        a(f"s_cmp_eq_u32 s{sJ}, 0")
        a("s_cbranch_scc0 L_sv_noinit")
        a(f"""
        s_mul_i32 s30, s{sG}, {self.pstride}
        s_add_u32 s30, s30, {WS_POOL}
        v_mov_b32 v56, 0
        v_mov_b32 v57, 0
        s_mov_b64 exec, 1
        buffer_store_dword v56, v57, {srd(S_WS)}, s30 offen sc1
        s_mov_b64 exec, -1
        """)
        a.label("L_sv_noinit")
        self.stamp(2)
        self.poll_begin("L_p1poll")
        for s in range(4):
            a(f"buffer_load_dwordx4 {vr(G+16*s,4)}, v8, {srd(S_WS)}, s{92+s} offen sc1")
            a(f"buffer_load_dwordx4 {vr(G+16*s+8,4)}, v8, {srd(S_WS)}, s{96+s} offen sc1")
        for s in range(4):
            a(f"buffer_load_dwordx4 {vr(G+16*s+4,4)}, v58, {srd(S_WS)}, s{92+s} offen sc1")
            a(f"buffer_load_dwordx4 {vr(G+16*s+12,4)}, v58, {srd(S_WS)}, s{96+s} offen sc1")
        a("s_waitcnt vmcnt(0)")
        self.tagcheck([G + 2 * k + 1 for k in range(32)], 56, 57)
        self.poll_end("L_p1poll")
        self.stamp(3)
        for o in (0, 2, 4, 6, 8, 10, 12, 14):
            a(f"v_add_f32 v{G+o}, v{G+o}, v{G+16+o}")
            a(f"v_add_f32 v{G+32+o}, v{G+32+o}, v{G+48+o}")
        for o in (0, 2, 4, 6, 8, 10, 12, 14):
            a(f"v_add_f32 v{G+o}, v{G+o}, v{G+32+o}")
        for o in (0, 2, 4, 6, 8, 10, 12, 14):
            self.rnd(G + o, G + o)
        pairs = [(0, 0, 8), (1, 2, 10), (2, 4, 12), (3, 6, 14)]
        for k, so, co in pairs: a(f"v_add_f32 v{G+co}, 1.0, v{G+co}")
        for k, so, co in pairs: self.rnd(G + co, G + co)
        for k, so, co in pairs: a(f"v_mul_f32 v{G+co}, v{G+co}, v{NP+k}")
        for k, so, co in pairs: self.rnd(G + co, G + co)
        for k, so, co in pairs: a(f"v_add_f32 v{G+co}, v{G+co}, v{G+so}")
        for k, so, co in pairs: a(f"v_cvt_pk_bf16_f32 v{G+co}, v{G+co}, v{G+co}")
        a(f"v_add_u32 v59, {HD_LDS}, v59")
        a(f"ds_write2_b32 v59, v{G+8}, v{G+10} offset0:0 offset1:{HD_P//4}")
        a("s_mov_b64 exec, 0xff")
        a(f"ds_write2_b32 v59, v{G+12}, v{G+14} offset0:16 offset1:{16 + HD_P//4}")
        a("s_mov_b64 exec, -1")
        a("s_waitcnt lgkmcnt(0)")
        for q in range(5):
            a(f"ds_read_b128 {vr(AV+4*q,4)}, v13 offset:{HD_LDS+16*q}")
        a(f"""
        s_lshl_b32 s92, s{sG}, 2
        s_lshr_b32 s93, s{sJ}, 2
        s_add_u32 s92, s92, s93
        s_lshl_b32 s92, s92, 11
        s_and_b32 s93, s{sJ}, 3
        s_lshl_b32 s93, s93, 9
        s_add_u32 s92, s92, s93
        s_add_u32 s92, s92, {WS_P2}
        s_lshl_b32 s93, s{sG}, 13
        s_add_u32 s93, s93, {WS_P2}
        s_add_u32 s94, s93, 2048
        s_add_u32 s95, s93, 4096
        s_add_u32 s96, s93, 6144
        s_waitcnt lgkmcnt(0)
        """)
        self.gemv(WQ, 18, [AV + t for t in range(18)], ASET, ACC, True)
        self.halfsum(ACC, T4)
        self.publish_f32(ACC, 15, None)
        self.publish_store(15, "s92")
        self.stamp(4)
        self.poll_begin("L_p2poll")
        for kp in range(4):
            for hf in range(2):
                a(f"buffer_load_dwordx4 {vr(G+8*kp+4*hf,4)}, v8, {srd(S_WS)}, s{93+kp} offen offset:{1024*hf} sc1")
        a("s_waitcnt vmcnt(0)")
        self.tagcheck([G + 2 * k + 1 for k in range(16)], 56, 57)
        self.poll_end("L_p2poll")
        for o in (0, 2, 4, 6):
            a(f"v_add_f32 v{G+o}, v{G+o}, v{G+8+o}")
            a(f"v_add_f32 v{G+16+o}, v{G+16+o}, v{G+24+o}")
        for o in (0, 2, 4, 6):
            a(f"v_add_f32 v{G+o}, v{G+o}, v{G+16+o}")
        a(f"v_cvt_pk_bf16_f32 v{G}, v{G}, v{G+2}")
        a(f"v_cvt_pk_bf16_f32 v{G+4}, v{G+4}, v{G+6}")
        a(f"ds_write_b32 v2, v{G} offset:{Q_LDS}")
        a(f"ds_write_b32 v2, v{G+4} offset:{Q_LDS+256}")
        if self.dbg:
            a(f"s_lshl_b32 s92, s2, 9")
            a(f"s_add_u32 s92, s92, {WS_DBG + 0x80000}")
            a(f"buffer_store_dword v{G}, v2, {srd(S_WS)}, s92 offen")
            a(f"buffer_store_dword v{G+4}, v2, {srd(S_WS)}, s92 offen offset:256")
        a("s_waitcnt lgkmcnt(0)")
        if self.qflag:
            a("v_mov_b32 v56, 0")
            a("v_mov_b32 v57, 1")
            a(f"ds_write_b32 v56, v57 offset:{QFL_LDS}")
            self.stamp(5)
        else:
            self.stamp(5)
            a("s_barrier")
        a("s_setprio 1")
        a(f"s_cmp_eq_u32 s{sCLS}, 0")
        a.branch("s_cbranch_scc0 L_sv_now")
        self.mk_srd(S_WU, 18, 576 * 4608 * 2)
        self.mk_srd(S_WD, 20, 4608 * 576 * 2)
        a(f"""
        v_mul_u32_u24 v56, 9216, v9
        v_add_u32 v56, v56, v10
        v_mul_u32_u24 v57, 1152, v9
        v_add_u32 v57, v57, v10
        s_lshl_b32 s92, s{sIDX}, 7
        s_add_u32 s92, s92, {3 * 144 * 9216}
        """)
        for t in range(18):
            a(f"buffer_load_dwordx4 {vr(self.GU+4*t,4)}, v56, {srd(S_WU)}, s92 offen nt")
            if t < 17: a(f"s_add_u32 s92, s92, {8*9216}")
        a(f"s_mul_i32 s92, s{sIDX}, {64*1152}")
        a(f"s_add_u32 s92, s92, {7*128}")
        a(f"s_add_u32 s93, s92, 128")
        for t in range(8):
            a(f"buffer_load_dwordx4 {vr(self.WD+4*t,4)}, v57, {srd(S_WD)}, s92 offen nt")
            a(f"buffer_load_dwordx4 {vr(self.WDX+4*t,4)}, v57, {srd(S_WD)}, s93 offen nt")
            if t < 7:
                a(f"s_add_u32 s92, s92, {8*1152}")
                a(f"s_add_u32 s93, s93, {8*1152}")
        a.label("L_sv_now")
        a(f"""
        v_mov_b32 v44, -1
        v_mov_b32 v45, -1
        v_mov_b32 v46, -1
        v_mov_b32 v47, -1
        s_lshl_b32 s30, s2, 10
        s_add_u32 s30, s30, {WS_T1O}
        buffer_store_dwordx4 v[44:47], v8, {srd(S_WS)}, s30 offen sc1
        s_mov_b64 exec, 1
        s_lshl_b32 s30, s2, 4
        s_add_u32 s30, s30, {WS_T1ML}
        buffer_store_dwordx4 v[44:47], v8, {srd(S_WS)}, s30 offen sc1
        s_mov_b64 exec, -1
        s_cmp_eq_u32 s{sCLS}, 1
        s_cbranch_scc1 L_sv_clr_done
        s_cmp_eq_u32 s{sCLS}, 0
        s_cbranch_scc1 L_sv_clr_ffn
        s_mul_i32 s30, s{sG}, 2304
        s_lshl_b32 s92, s{sIDX}, 8
        s_add_u32 s30, s30, s92
        s_add_u32 s30, s30, {WS_T2}
        s_mov_b64 exec, 0xffff
        buffer_store_dwordx4 v[44:47], v8, {srd(S_WS)}, s30 offen sc1
        s_mov_b64 exec, -1
        s_branch L_sv_clr_done
        """)
        a.label("L_sv_clr_ffn")
        a(f"""
        s_mul_i32 s30, s{sIDX}, 2304
        s_add_u32 s30, s30, {WS_T3}
        buffer_store_dwordx4 v[44:47], v8, {srd(S_WS)}, s30 offen sc1
        buffer_store_dwordx4 v[44:47], v8, {srd(S_WS)}, s30 offen offset:1024 sc1
        s_mov_b64 exec, 0xffff
        buffer_store_dwordx4 v[44:47], v8, {srd(S_WS)}, s30 offen offset:2048 sc1
        s_mov_b64 exec, -1
        """)
        a.label("L_sv_clr_done")
        a(f"""
        s_waitcnt vmcnt(0)
        v_mov_b32 v44, s{sTAG}
        s_lshl_b32 s30, s2, 2
        s_add_u32 s30, s30, {WS_HELLO}
        v_mov_b32 v45, 0
        s_mov_b64 exec, 1
        buffer_store_dword v44, v45, {srd(S_WS)}, s30 offen sc1
        s_mov_b64 exec, -1
        """)
        self.mk_srd(S_WD, 20, 4608 * 576 * 2)
        self.mk_srd(S_OUT, 26, 1152)
        self.stamp(8)
        a(f"s_cmp_lg_u32 s{sCLS}, 1")
        a.branch("s_cbranch_scc1 L_broker")
        a(f"s_cmp_lt_u32 s{sIDX}, 36")
        a.branch("s_cbranch_scc0 L_broker")
        a(f"""
        v_and_b32 v56, 31, v0
        v_lshlrev_b32 v57, 3, v56
        v_lshlrev_b32 v56, 4, v56
        s_lshl_b32 s92, s{sIDX}, 9
        s_add_u32 s92, s92, {WS_P1 + 1152 * 8}
        s_add_u32 s93, s92, {P1S}
        s_add_u32 s94, s92, {2 * P1S}
        s_add_u32 s95, s92, {3 * P1S}
        """)
        self.poll_begin("L_p3bpoll")
        for k in range(4):
            a(f"buffer_load_dwordx4 {vr(64+4*k,4)}, v56, {srd(S_WS)}, s{92+k} offen sc1")
        a("s_waitcnt vmcnt(0)")
        self.tagcheck([64 + 2 * k + 1 for k in range(8)], 58, 59)
        self.poll_end("L_p3bpoll")
        a(f"""
        v_add_f32 v64, v64, v68
        v_add_f32 v72, v72, v76
        v_add_f32 v66, v66, v70
        v_add_f32 v74, v74, v78
        v_add_f32 v64, v64, v72
        v_add_f32 v66, v66, v74
        v_cvt_pk_bf16_f32 v64, v64, v66
        v_mov_b32 v65, s{sTAG}
        s_lshl_b32 s30, s{sIDX}, 8
        s_add_u32 s30, s30, {WS_P3}
        s_mov_b64 exec, 0xffffffff
        buffer_store_dwordx2 v[64:65], v57, {srd(S_WS)}, s30 offen sc1
        s_mov_b64 exec, -1
        """)
        self.stamp(12)
        a.branch("s_branch L_broker")
        self.broker()
        a(f"s_cmp_eq_u32 s{sCLS}, 1")
        a.branch("s_cbranch_scc1 L_sv_b1")
        a.label("L_sv_hello")
        a(f"s_mov_b32 s30, {WS_HELLO}")
        self.poll_begin("L_hpoll")
        a(f"buffer_load_dwordx4 v[48:51], v8, {srd(S_WS)}, s30 offen sc1")
        a("s_waitcnt vmcnt(0)")
        self.tagcheck([48, 49, 50, 51], 58, 59)
        self.poll_end("L_hpoll")
        a("v_mov_b32 v58, 0")
        a("v_mov_b32 v59, 1")
        a(f"ds_write_b32 v58, v59 offset:{HFL_LDS}")
        a.label("L_sv_b1")
        self.stamp(14)

    def pool_map(self, dst, p, t0):
        a = self.a
        a(f"""
        v_bfe_u32 v{dst}, v{p}, 2, 4
        v_lshlrev_b32 v{dst}, 19, v{dst}
        v_lshrrev_b32 v{t0}, 6, v{p}
        v_lshlrev_b32 v{t0}, 2, v{t0}
        v_and_or_b32 v{t0}, v{p}, 3, v{t0}
        v_add_u32 v{t0}, {self.NS}, v{t0}
        v_lshl_add_u32 v{dst}, v{t0}, 12, v{dst}
        v_or_b32 v{dst}, 1, v{dst}
        """)

    def tab_init(self):
        a = self.a
        a("""
        v_mov_b32 v56, 0
        v_mov_b32 v57, 0
        v_mov_b32 v58, 0
        v_mov_b32 v59, 0
        """)
        n = (self.P + 64 + 255) // 256
        for k in range(n):
            a(f"ds_write_b128 v8, v[56:59] offset:{TAB_LDS + 1024 * k}")

    def broker(self):
        a = self.a
        N, D, X, NS, P = self.BN, self.BD, self.BX, self.NS, self.P
        PL = 240
        a.label("L_broker")
        a(f"""
        s_mul_i32 s{sPOOL}, s{sG}, {self.pstride}
        s_add_u32 s{sPOOL}, s{sPOOL}, {WS_POOL}
        v_mov_b32 v57, 0
        s_mov_b32 s{sREQ}, {NS - X}
        s_mov_b32 s{sFILL}, 0
        s_mov_b32 s{sQ2}, {P}
        s_cmp_eq_u32 s{sCLS}, 0
        s_cselect_b32 s{sQ2}, {min(self.QF, P)}, s{sQ2}
        s_waitcnt vmcnt(0)
        """)
        def trig(name):
            a(f"s_mov_b32 s{sCNT}, {SPIN * 4}")
            a.label(name)
            a(f"ds_read_b32 v58, v57 offset:{CTR_LDS}")
            a("s_waitcnt lgkmcnt(0)")
            a(f"v_readfirstlane_b32 s{sBC}, v58")
            a(f"s_cmp_gt_u32 s{sBC}, s{sREQ}")
            a(f"s_cbranch_scc1 {name}_ok")
            a(f"s_sub_u32 s{sCNT}, s{sCNT}, 1")
            a(f"s_cmp_lg_u32 s{sCNT}, 0")
            a.branch(f"s_cbranch_scc1 {name}")
            a.label(name + "_ok")
        def req(d):
            a("s_mov_b64 exec, 1")
            a(f"v_mov_b32 v{PL+d}, {N}")
            a(f"buffer_atomic_add v{PL+d}, v57, {srd(S_WS)}, s{sPOOL} offen {self.atom_flags}")
            a("s_mov_b64 exec, -1")
            a(f"s_add_u32 s{sREQ}, s{sREQ}, {N}")
        def fill(d):
            a(f"v_readfirstlane_b32 s92, v{PL+d}")
            a(f"s_min_u32 s92, s92, {P}")
            a(f"s_sub_u32 s93, {P}, s92")
            a(f"s_min_u32 s93, s93, {N}")
            a(f"v_add_u32 v59, s92, v0")
            self.pool_map(60, 59, 61)
            a(f"s_lshl_b32 s94, s{sFILL}, 2")
            a(f"v_add_u32 v59, s94, v2")
            a(f"v_cmp_gt_u32 vcc, s93, v0")
            a(f"s_and_b64 exec, vcc, -1")
            a(f"ds_write_b32 v59, v60 offset:{TAB_LDS}")
            a("s_mov_b64 exec, -1")
            a(f"s_add_u32 s{sFILL}, s{sFILL}, s93")
            a(f"v_mov_b32 v{PL+d}, {P}")
            a(f"s_add_u32 s92, s92, {N}")
            a(f"s_cmp_ge_u32 s92, s{sQ2}")
        trig("L_bk_w0")
        self.stamp(10)
        for d in range(D - 1): req(d)
        a.label("L_bk_loop")
        for d in range(D):
            trig(f"L_bk_t{d}")
            req((d + D - 1) % D)
            a(f"s_waitcnt vmcnt({D - 1})")
            fill(d)
            a.branch("s_cbranch_scc1 L_bk_drain")
        a.branch("s_branch L_bk_loop")
        a.label("L_bk_drain")
        a("s_waitcnt vmcnt(0)")
        for d in range(D): fill(d)
        a(f"""
        s_lshl_b32 s94, s{sFILL}, 2
        v_add_u32 v59, s94, v2
        v_mov_b32 v60, {STOP:#x}
        ds_write_b32 v59, v60 offset:{TAB_LDS}
        """)
        self.stamp(11)

    def publish_f32(self, ACC, vaddr, _):
        a = self.a
        for r in range(4):
            a(f"v_mov_b32 v{240+2*r}, v{ACC+r}")
            a(f"v_mov_b32 v{241+2*r}, s{sTAG}")

    def publish_store(self, vaddr, soff):
        a = self.a
        a(f"""
        s_mov_b32 s30, 0x00ff00ff
        s_mov_b32 s31, 0
        s_mov_b64 exec, s[30:31]
        buffer_store_dwordx4 v[240:243], v{vaddr}, {srd(S_WS)}, {soff} offen sc1
        buffer_store_dwordx4 v[244:247], v{vaddr}, {srd(S_WS)}, {soff} offen offset:16 sc1
        s_mov_b64 exec, -1
        """)

    def tail_service(self):
        a = self.a
        PR = 200
        a(f"""
        s_setprio 3
        v_lshrrev_b32 v1, 5, v0
        v_lshlrev_b32 v1, 5, v1
        s_lshl_b32 s92, s2, 10
        s_add_u32 s92, s92, {WS_T1O}
        s_lshl_b32 s93, s2, 4
        s_add_u32 s93, s93, {WS_T1ML}
        v_lshrrev_b32 v2, 5, v0
        v_lshlrev_b32 v2, 3, v2
        v_mov_b32 v3, 0
        s_waitcnt vmcnt(0) lgkmcnt(0)
        s_cmp_eq_u32 s{sCLS}, 0
        s_cbranch_scc1 L_ts_arr
        s_barrier
        s_branch L_ts_go
        """)
        a.label("L_ts_arr")
        self.lds_spin("L_arr", ARR_LDS, 7, 3, 9, 30)
        a.label("L_ts_go")
        a(f"""
        ds_read_b128 v[16:19], v1 offset:{ML_LDS}
        ds_read_b128 v[20:23], v1 offset:{ML_LDS+16}
        ds_read_b128 v[24:27], v1 offset:{ML_LDS+64}
        ds_read_b128 v[28:31], v1 offset:{ML_LDS+80}
        """)
        for w in range(7):
            a(f"ds_read_b128 {vr(PR+4*w,4)}, v8 offset:{PART_LDS+1024*w}")
        self.stamp(7)
        a("s_waitcnt lgkmcnt(9)")
        a("v_max3_f32 v32, v16, v17, v18")
        a("v_max3_f32 v32, v32, v19, v20")
        a("v_max3_f32 v32, v32, v21, v22")
        for w in range(7):
            a(f"v_sub_f32 v{16+w}, v{16+w}, v32")
        for w in range(7):
            a(f"v_exp_f32 v{16+w}, v{16+w}")
        a("s_waitcnt lgkmcnt(7)")
        a("v_mul_f32 v33, v16, v24")
        for w in range(1, 7):
            a(f"v_fmac_f32 v33, v{16+w}, v{24+w}")
        for w in range(7):
            a(f"s_waitcnt lgkmcnt({6-w})")
            for r in range(4):
                if w == 0:
                    a(f"v_mul_f32 v{36+r}, v16, v{PR+r}")
                else:
                    a(f"v_fmac_f32 v{36+r}, v{16+w}, v{PR+4*w+r}")
        a(f"buffer_store_dwordx4 v[36:39], v8, {srd(S_WS)}, s92 offen sc1")
        a(f"""
        s_mov_b32 s30, 1
        s_mov_b32 s31, 1
        s_mov_b64 exec, s[30:31]
        buffer_store_dwordx2 v[32:33], v2, {srd(S_WS)}, s93 offen sc1
        s_mov_b64 exec, -1
        """)
        self.stamp(15)
        a(f"s_cmp_eq_u32 s{sCLS}, 2")
        a.branch("s_cbranch_scc1 L_wo_mm")
        a(f"s_cmp_eq_u32 s{sCLS}, 1")
        a.branch("s_cbranch_scc1 L_fin")
        self.ffn_addr()
        a.branch("s_branch L_ffn_post")

    def build(self):
        a = self.a
        self.prologue()
        self.streaming()
        self.wo_tail()
        self.ffn_tail()
        self.service()
        self.tail_service()
        a.label("L_end")
        a("s_endpgm")
        return a.text()


def main():
    ap = argparse.ArgumentParser()
    ap.add_argument("-o", default="main3.s")
    ap.add_argument("--R", type=int, default=6)
    ap.add_argument("--pace", type=int, default=4)
    ap.add_argument("--loopgrp", type=int, default=8)
    ap.add_argument("--prowait", type=int, default=2)
    ap.add_argument("--progrp", type=int, default=4)
    ap.add_argument("--dmawait", type=int, default=32)
    ap.add_argument("--NS", type=int, default=112)
    ap.add_argument("--QF", type=int, default=200)
    ap.add_argument("--S", type=int, default=1)
    ap.add_argument("--BN", type=int, default=4)
    ap.add_argument("--BD", type=int, default=4)
    ap.add_argument("--BX", type=int, default=16)
    ap.add_argument("--strip", action="store_true")
    ap.add_argument("--nobinit", action="store_true")
    ap.add_argument("--trace", action="store_true")
    ap.add_argument("--noqflag", action="store_true")
    ap.add_argument("--rot", action="store_true")
    ap.add_argument("--not2gate", action="store_true")
    ap.add_argument("--pstride", type=int, default=256)
    ap.add_argument("--aflags", type=str, default="sc0")
    ap.add_argument("--stamps", action="store_true")
    ap.add_argument("--dbg", action="store_true")
    args = ap.parse_args()
    assert args.NS - args.BX > 7 * args.R
    assert args.pace + args.loopgrp <= 12 and args.prowait + args.progrp <= 12
    g = Gen(R=args.R, pace=args.pace, pro_wait=args.prowait, pro_grp=args.progrp, stamps=args.stamps, dbg=args.dbg,
            NS=args.NS, QF=args.QF, S=args.S, BN=args.BN, BD=args.BD, BX=args.BX, dma_wait=args.dmawait)
    g.loop_grp = args.loopgrp
    g.strip = args.strip
    g.binit = not args.nobinit
    g.trace = args.trace
    g.qflag = not args.noqflag
    assert g.binit or not g.qflag
    g.rot = args.rot
    g.t2gate = not args.not2gate
    g.pstride = args.pstride
    g.atom_flags = args.aflags
    body = g.build()
    nv = 64 + 32 * args.R
    txt = wrap_single(body, 256, 512, LDS_SIZE, max(nv, 256))
    open(args.o, "w").write(txt)
    print(f"wrote {args.o}: {len(txt)} bytes, lds {LDS_SIZE}, nops {g.a.nops_inserted}")

if __name__ == "__main__":
    main()
```

```python
import sys, argparse, struct
from asmlib import *

WS_EPOCH = 0x0
WS_HELLO = 0x400
WS_P1 = 0x1000
P1S = 3456 * 8
WS_P3 = 0x1C000
WS_T1ML = 0x1F000
WS_T2 = 0x20000
WS_P2 = 0x30000
WS_T1O = 0x50000
WS_T3 = 0x90000
WS_POOL = 0xC0000
WS_DBG = 0x100000
WS_SIZE = 0x200000
WS_STAMP = 0x10000000

Q_LDS = 0x0000
O_LDS = 0x0200
ST_LDS = 0x0A00
CTR_LDS = 0x0A20
ARR_LDS = 0x0A24
HFL_LDS = 0x0A28
QFL_LDS = 0x0A2C
DFL_LDS = 0x0A30
ML_LDS = 0x0A40
HD_LDS = 0x0D00
HD_P = 80
X1_LDS = 0x1700
PART_LDS = 0x2400
IMG_LDS = 0x4000
HD2_LDS = 0x4000
PX_LDS = 0x5000
TAB_LDS = 0xC000
LDS_SIZE = 0xD000
STOP = 0x80000000

LOG2E = 0x3FB8AA3B
SCALE = 0x3DB504F3
SPIN = 50000

S_K, S_V, S_WS, S_X, S_C, S_WMOD, S_WQ, S_WO, S_WG, S_WU, S_WD, S_OUT = [32 + 4 * i for i in range(12)]
sTAG, sWAVE, sOFF, sCNT = 80, 81, 82, 83
sSCALE, sLOG2E, sG, sJ, sCLS, sIDX, sPA = 84, 86, 87, 88, 89, 90, 91
sP = 3
sST, sPEND, sQ, sPOOL, sGUB, sWDB, sOOB, sHOME, sLIM, sSPIN = 48, 49, 50, 51, 52, 53, 54, 55, 56, 57
sLANE = 58
sMODE = 59
sDMN = 50
sREQ, sFILL, sBC, sQ2 = 48, 49, 50, 52
V_ST = 62


def srd(s):
    return f"s[{s}:{s+3}]"

def vr(b, n):
    return f"v[{b}:{b+n-1}]"

def f32(x):
    return hex(struct.unpack("<I", struct.pack("<f", x))[0])


class Gen:
    def __init__(self, R=6, pace=4, pro_wait=2, pro_grp=4, stamps=False, dbg=False,
                 NS=112, QF=200, S=1, BN=4, BD=4, BX=16, dma_wait=32):
        self.a = Asm()
        self.R = R; self.pace = pace; self.pro_wait = pro_wait; self.pro_grp = pro_grp
        self.stamps = stamps; self.dbg = dbg
        self.NS = NS; self.QF = QF; self.S = S; self.BN = BN; self.BD = BD; self.BX = BX; self.dma_wait = dma_wait
        self.T = 128 - NS; assert self.T % 4 == 0
        self.P = 16 * self.T
        assert BX >= (BD - 1) * BN and self.P + 64 <= 1024 and BD <= 8

    def mk_srd(self, s, plo, size, add=None):
        a = self.a
        if add is None:
            a(f"s_mov_b32 s{s}, s{plo}")
            a(f"s_and_b32 s{s+1}, s{plo+1}, 0xffff")
        else:
            a(f"s_add_u32 s{s}, s{plo}, {add}")
            a(f"s_addc_u32 s{s+1}, s{plo+1}, 0")
            a(f"s_and_b32 s{s+1}, s{s+1}, 0xffff")
        a(f"s_mov_b32 s{s+2}, {size}")
        a(f"s_mov_b32 s{s+3}, 0x20000")

    def rnd(self, d, s):
        self.a(f"v_cvt_pk_bf16_f32 v{d}, 0, v{s}")

    def stamp(self, k):
        if not self.stamps: return
        a = self.a
        a("s_memrealtime s[100:101]")
        a("s_waitcnt lgkmcnt(0)")
        a(f"v_writelane_b32 v{V_ST}, s100, {k}")

    def stamp_flush(self):
        if not self.stamps: return
        a = self.a
        a(f"""
        s_mov_b64 exec, {-1 if self.trace else 0xffff}
        s_lshl_b32 s92, s2, 3
        s_add_u32 s92, s92, s{sWAVE}
        s_lshl_b32 s92, s92, {9 if self.trace else 7}
        s_add_u32 s92, s92, {WS_STAMP}
        s_add_u32 s92, s28, s92
        s_addc_u32 s93, s29, 0
        v_lshlrev_b32 v60, 3, v0
        v_mov_b32 v{V_ST+1}, 0
        global_store_dwordx2 v60, v[{V_ST}:{V_ST+1}], s[92:93]
        s_mov_b64 exec, -1
        """)

    def row_allreduce(self, op, regs, shifts=(8, 4, 2, 1)):
        a = self.a
        for sh in shifts:
            for r in regs:
                a(f"v_{op}_f32_dpp v{r}, v{r}, v{r} row_ror:{sh} row_mask:0xf bank_mask:0xf")

    def cross_rows(self, op, regs, tmps):
        a = self.a
        for sw in ("16", "32"):
            for r, t in zip(regs, tmps):
                a(f"v_mov_b32 v{t}, v{r}")
            for r, t in zip(regs, tmps):
                a(f"v_permlane{sw}_swap_b32 v{r}, v{t}")
            for r, t in zip(regs, tmps):
                a(f"v_{op}_f32 v{r}, v{r}, v{t}")

    def poll_begin(self, name):
        a = self.a
        a(f"s_mov_b32 s{sCNT}, {SPIN}")
        a.label(name)

    def poll_end(self, name):
        a = self.a
        ok = name + "_ok"
        a(f"s_cbranch_vccz {ok}")
        a(f"s_sub_u32 s{sCNT}, s{sCNT}, 1")
        a(f"s_cmp_lg_u32 s{sCNT}, 0")
        a.branch(f"s_cbranch_scc1 {name}")
        a.label(ok)

    def inc_poll(self, name, units, sm, after_wait=None):
        a = self.a
        n = len(units)
        a(f"s_mov_b32 s{sm}, {(1 << n) - 1}")
        a(f"s_mov_b32 s{sCNT}, {SPIN}")
        a.label(name)
        for u, (ld, ck, ov) in enumerate(units):
            a(f"s_bitcmp1_b32 s{sm}, {u}")
            a(f"s_cbranch_scc0 {name}_l{u}")
            ld()
            a.label(f"{name}_l{u}", fence=False)
        a("s_waitcnt vmcnt(0)")
        if after_wait: after_wait()
        for u, (ld, ck, ov) in enumerate(units):
            a(f"s_bitcmp1_b32 s{sm}, {u}")
            a(f"s_cbranch_scc0 {name}_c{u}")
            ck()
            a.branch(f"s_cbranch_vccnz {name}_c{u}")
            a(f"s_bitset0_b32 s{sm}, {u}")
            if ov: ov()
            a.label(f"{name}_c{u}")
        a(f"s_cmp_eq_u32 s{sm}, 0")
        a(f"s_cbranch_scc1 {name}_ok")
        a(f"s_sub_u32 s{sCNT}, s{sCNT}, 1")
        a(f"s_cmp_lg_u32 s{sCNT}, 0")
        a.branch(f"s_cbranch_scc1 {name}")
        a.label(name + "_ok")

    def lds_spin(self, name, off, val, vaddr, vt, st):
        a = self.a
        a(f"s_mov_b32 s{sCNT}, {SPIN * 4}")
        a.label(name)
        a(f"ds_read_b32 v{vt}, v{vaddr} offset:{off}")
        a("s_waitcnt lgkmcnt(0)")
        a(f"v_readfirstlane_b32 s{st}, v{vt}")
        a(f"s_cmp_eq_u32 s{st}, {val}")
        a(f"s_cbranch_scc1 {name}_ok")
        a(f"s_sub_u32 s{sCNT}, s{sCNT}, 1")
        a(f"s_cmp_lg_u32 s{sCNT}, 0")
        a.branch(f"s_cbranch_scc1 {name}")
        a.label(name + "_ok")

    def tagcheck(self, regs, t0, t1):
        a = self.a
        assert len(regs) % 2 == 0
        a(f"v_max_u32 v{t0}, v{regs[0]}, v{regs[1]}")
        a(f"v_min_u32 v{t1}, v{regs[0]}, v{regs[1]}")
        for k in range(2, len(regs), 2):
            a(f"v_max3_u32 v{t0}, v{t0}, v{regs[k]}, v{regs[k+1]}")
            a(f"v_min3_u32 v{t1}, v{t1}, v{regs[k]}, v{regs[k+1]}")
        a(f"v_xor_b32 v{t0}, s{sTAG}, v{t0}")
        a(f"v_xor_b32 v{t1}, s{sTAG}, v{t1}")
        a(f"v_or_b32 v{t0}, v{t0}, v{t1}")
        a(f"v_cmp_ne_u32 vcc, 0, v{t0}")

    def ln_finish(self, mean, var):
        a = self.a
        self.rnd(mean, mean)
        self.rnd(var, var)
        a(f"v_add_f32 v{var}, {f32(1e-5)}, v{var}")
        self.rnd(var, var)
        a(f"v_sqrt_f32 v{var}, v{var}")
        self.rnd(var, var)
        a(f"v_rcp_f32 v{var}, v{var}")

    vMK = 4

    def mk_masks(self, t0, t1, t2):
        a = self.a
        a(f"""
        v_and_b32 v{t2}, 1, v0
        v_mov_b32 v{t0}, 0xffff
        v_mov_b32 v{t1}, 0xffff0000
        v_cmp_eq_u32 vcc, 1, v{t2}
        v_cndmask_b32 v{t0}, v{t0}, v{t1}, vcc
        v_bfe_u32 v{t2}, v0, 1, 2
        """)
        for d in range(4):
            a(f"v_cmp_eq_u32 vcc, {d}, v{t2}")
            a(f"v_cndmask_b32 v{self.vMK+d}, 0, v{t0}, vcc")

    def mk_sub(self, d, t):
        a = self.a
        a(f"v_bfe_u32 v{d}, v0, 3, 1")
        a(f"v_lshrrev_b32 v{t}, 4, v0")
        a(f"v_lshl_add_u32 v{d}, v{d}, 2, v{t}")

    def gemv(self, W, n, AV, ASET, ACC, first, waits=None):
        a = self.a
        def build(t):
            s = ASET + 4 * (t & 1)
            for d in range(4):
                a(f"v_and_b32 v{s+d}, v{AV[t]}, v{self.vMK+d}")
        build(0)
        for t in range(n):
            if t + 1 < n: build(t + 1)
            if waits and t in waits: a(waits[t])
            s = ASET + 4 * (t & 1)
            c = "0" if (first and t == 0) else vr(ACC, 4)
            wr = W[t] if isinstance(W, (list, tuple)) else W + 4 * t
            a(f"v_mfma_f32_16x16x32_bf16 {vr(ACC,4)}, {vr(s,4)}, {vr(wr,4)}, {c}")

    def halfsum(self, ACC, T):
        a = self.a
        for r in range(4): a(f"v_mov_b32 v{T+r}, v{ACC+r}")
        for r in range(4): a(f"v_permlane32_swap_b32 v{ACC+r}, v{T+r}")
        for r in range(4): a(f"v_add_f32_dpp v{ACC+r}, v{T+r}, v{ACC+r} row_ror:8 row_mask:0xf bank_mask:0xf")

    def silu(self, c, o, t0, t1):
        a = self.a
        a(f"v_mul_f32 v{o}, s{sLOG2E}, v{c}")
        a(f"v_exp_f32 v{o}, -v{o}")
        a(f"v_add_f32 v{o}, 1.0, v{o}")
        a(f"v_rcp_f32 v{t0}, v{o}")
        a(f"v_mul_f32 v{t1}, v{t0}, v{c}")
        a(f"v_fma_f32 v{o}, -v{t1}, v{o}, v{c}")
        a(f"v_fma_f32 v{o}, v{o}, v{t0}, v{t1}")
        a(f"v_cvt_pk_bf16_f32 v{o}, v{o}, v{o}")

    def prologue(self):
        a = self.a
        if self.stamps: a("s_memrealtime s[98:99]")
        a(f"""
        s_cmp_ge_u32 s2, 256
        s_cbranch_scc1 L_end
        s_load_dwordx16 s[4:19], s[0:1], 0
        s_load_dwordx8 s[20:27], s[0:1], 64
        s_load_dwordx2 s[28:29], s[0:1], 104
        v_lshrrev_b32 v1, 6, v0
        v_and_b32 v0, 63, v0
        v_readfirstlane_b32 s{sWAVE}, v1
        """)
        if self.S == 1:
            a("""
            s_and_b32 s92, s2, 7
            s_lshr_b32 s93, s2, 3
            s_lshl_b32 s92, s92, 5
            s_or_b32 s2, s92, s93
            """)
        elif self.S == 2:
            a("""
            s_bfe_u32 s92, s2, 0x20001
            s_lshl_b32 s92, s92, 6
            s_bfe_u32 s93, s2, 0x20006
            s_lshl_b32 s93, s93, 4
            s_or_b32 s92, s92, s93
            s_and_b32 s93, s2, 1
            s_lshl_b32 s93, s93, 3
            s_or_b32 s92, s92, s93
            s_bfe_u32 s93, s2, 0x30003
            s_or_b32 s2, s92, s93
            """)
        elif self.S == 4:
            a("""
            s_bfe_u32 s92, s2, 0x10002
            s_lshl_b32 s92, s92, 7
            s_bfe_u32 s93, s2, 0x30005
            s_lshl_b32 s93, s93, 4
            s_or_b32 s92, s92, s93
            s_and_b32 s93, s2, 3
            s_lshl_b32 s93, s93, 2
            s_or_b32 s92, s92, s93
            s_bfe_u32 s93, s2, 0x20003
            s_or_b32 s2, s92, s93
            """)
        if self.rot:
            a("""
            s_lshr_b32 s92, s2, 4
            s_add_u32 s92, s92, s2
            s_and_b32 s92, s92, 15
            s_and_b32 s2, s2, 0xf0
            s_or_b32 s2, s2, s92
            """)
        a(f"""
        s_lshr_b32 s{sG}, s2, 4
        s_and_b32 s{sJ}, s2, 15
        s_and_b32 s{sP}, s{sG}, 1
        s_sub_u32 s92, 5, s{sP}
        s_sub_i32 s93, s{sJ}, 7
        s_max_i32 s93, s93, 0
        s_mov_b32 s{sLOG2E}, {LOG2E:#x}
        """)
        a(f"""
        s_mul_i32 s94, s{sG}, 14
        s_add_u32 s94, s94, s{sJ}
        s_sub_u32 s94, s94, 2
        s_cmp_lt_u32 s{sJ}, 2
        s_cselect_b32 s94, -1, s94
        s_cmp_lt_u32 s94, 216
        s_cselect_b32 s{sPA}, s94, -1
        s_mov_b32 s{sCLS}, 2
        s_mov_b32 s{sIDX}, s93
        s_cmp_lt_u32 s{sJ}, 7
        s_cbranch_scc0 L_cls_done
        s_lshr_b32 s95, s{sG}, 1
        s_cmp_lt_u32 s{sJ}, s92
        s_cbranch_scc0 L_cls_mid
        s_mov_b32 s{sCLS}, 0
        s_lshl_b32 s{sIDX}, s{sG}, 2
        s_add_u32 s{sIDX}, s{sIDX}, s{sJ}
        s_add_u32 s95, s95, 64
        s_cmp_eq_u32 s{sJ}, 4
        s_cselect_b32 s{sIDX}, s95, s{sIDX}
        s_branch L_cls_done
        """)
        a.label("L_cls_mid", fence=False)
        a(f"""
        s_mov_b32 s{sCLS}, 1
        s_mul_i32 s96, s95, 3
        s_add_u32 s96, s96, s{sJ}
        s_sub_u32 s96, s96, 4
        s_lshl_b32 s97, s95, 1
        s_add_u32 s97, s97, s{sJ}
        s_add_u32 s97, s97, 19
        s_cmp_eq_u32 s{sP}, 1
        s_cselect_b32 s{sIDX}, s96, s97
        """)
        a.label("L_cls_done", fence=False)
        if self.stamps:
            a(f"v_mov_b32 v{V_ST}, 0")
            a("s_waitcnt lgkmcnt(0)")
            a(f"v_writelane_b32 v{V_ST}, s98, 13")
            self.stamp(6) if False else None
        a(f"""
        s_cmp_eq_u32 s{sWAVE}, 7
        s_cbranch_scc1 L_service
        """)

    vK, vV = 1, 2
    vL = 8
    vM = 10
    vA = 12
    vS = 16
    vO = 20
    vB = 24
    vP = 32
    vT = 36
    vQ = 44
    RING = 64

    def kreg(self, slot): return self.RING + 32 * slot
    def vreg(self, slot): return self.RING + 32 * slot + 16

    def issue(self, slot, grp=8, wait=None, step=True):
        a = self.a
        k = self.kreg(slot); v = self.vreg(slot)
        n = 0
        for i in range(4):
            if wait is not None and n % grp == 0: a(f"s_waitcnt vmcnt({wait})")
            a(f"buffer_load_dwordx4 {vr(k+4*i,4)}, v{self.vK}, {srd(S_K)}, s{sOFF} offen offset:{64*i} nt")
            n += 1
        for i in range(4):
            if wait is not None and n % grp == 0: a(f"s_waitcnt vmcnt({wait})")
            a(f"buffer_load_dwordx4 {vr(v+4*i,4)}, v{self.vV}, {srd(S_V)}, s{sOFF} offen offset:{256*i} nt")
            n += 1
        if step: a(f"s_add_u32 s{sOFF}, s{sOFF}, {7*4096}")

    def block(self, slot, wk, wv):
        a = self.a
        k = self.kreg(slot); v = self.vreg(slot)
        S = self.vS; O = self.vO; P = self.vP; T = self.vT; M = self.vM; A = self.vA; L = self.vL
        a("s_mov_b64 exec, 1")
        a(f"ds_add_rtn_u32 v{self.vTK}, v{self.vZ}, v{self.vOne} offset:{CTR_LDS}")
        a("s_mov_b64 exec, -1")
        a(f"s_cmp_le_u32 s{sCNT}, 2")
        a.branch(f"s_cbranch_scc1 L_dw_{slot}")
        a.label(f"L_dwb_{slot}", fence=False)
        a(f"s_waitcnt vmcnt({wk})")
        if self.strip:
            for i in range(4):
                a(f"v_mfma_f32_16x16x32_bf16 {vr(S,4)}, {vr(k+4*i,4)}, {vr(self.vQ+4*i,4)}, {vr(S,4)}")
            a(f"s_waitcnt vmcnt({wv})")
            for r in range(4):
                a(f"v_mfma_f32_16x16x32_bf16 {vr(O,4)}, {vr(v+4*r,4)}, {vr(self.vB,4)}, {vr(O,4)}")
        else:
            self.block_compute(slot, wk, wv)
        self.block_end(slot)

    strip = False
    qflag = True
    rot = False
    t2gate = True
    trace = False
    binit = True
    pstride = 256
    atom_flags = 'sc0'
    def block_compute(self, slot, wk, wv):
        a = self.a
        k = self.kreg(slot); v = self.vreg(slot)
        S = self.vS; O = self.vO; P = self.vP; T = self.vT; M = self.vM; A = self.vA; L = self.vL
        a(f"v_mfma_f32_16x16x32_bf16 {vr(S,4)}, {vr(k,4)}, {vr(self.vQ,4)}, 0")
        for i in range(1, 4):
            a(f"v_mfma_f32_16x16x32_bf16 {vr(S,4)}, {vr(k+4*i,4)}, {vr(self.vQ+4*i,4)}, {vr(S,4)}")
        for r in range(4):
            self.rnd(S + r, S + r)
        a(f"v_pk_mul_f32 {vr(S,2)}, {vr(S,2)}, s[{sSCALE}:{sSCALE+1}]")
        a(f"v_pk_mul_f32 {vr(S+2,2)}, {vr(S+2,2)}, s[{sSCALE}:{sSCALE+1}]")
        for r in range(4):
            self.rnd(S + r, S + r)
        a(f"v_max3_f32 v{T}, v{S}, v{S+1}, v{S+2}")
        a(f"v_max_f32 v{T}, v{T}, v{S+3}")
        self.cross_rows("max", [T], [T + 1])
        a(f"v_mul_f32 v{T}, s{sLOG2E}, v{T}")
        a(f"v_max_f32 v{T}, v{M}, v{T}")
        a(f"v_sub_f32 v{A}, v{M}, v{T}")
        a(f"v_exp_f32 v{A}, v{A}")
        a(f"v_mov_b32 v{M}, v{T}")
        for r in range(4):
            a(f"v_fma_f32 v{P+r}, v{S+r}, s{sLOG2E}, -v{T}")
        for r in range(4):
            a(f"v_exp_f32 v{P+r}, v{P+r}")
        a(f"v_pk_mul_f32 {vr(L,2)}, {vr(L,2)}, {vr(A,2)} op_sel_hi:[1,0]")
        a(f"v_pk_mul_f32 {vr(O,2)}, {vr(O,2)}, {vr(A,2)} op_sel_hi:[1,0]")
        a(f"v_pk_mul_f32 {vr(O+2,2)}, {vr(O+2,2)}, {vr(A,2)} op_sel_hi:[1,0]")
        a(f"v_pk_add_f32 {vr(L,2)}, {vr(L,2)}, {vr(P,2)}")
        a(f"v_pk_add_f32 {vr(L,2)}, {vr(L,2)}, {vr(P+2,2)}")
        for r in range(4):
            Bs = self.vB + 4 * (r & 1)
            a(f"v_cvt_pk_bf16_f32 v{T+2+r}, v{P+r}, v{P+r}")
            for d in range(4):
                a(f"v_and_b32 v{Bs+d}, v{T+2+r}, v{self.vMK+d}")
            if r == 0:
                a(f"s_waitcnt vmcnt({wv})")
            a(f"v_mfma_f32_16x16x32_bf16 {vr(O,4)}, {vr(v+4*r,4)}, {vr(Bs,4)}, {vr(O,4)}")

    def block_end(self, slot):
        a = self.a
        a("s_waitcnt lgkmcnt(0)")
        a(f"v_readfirstlane_b32 s30, v{self.vTK}")
        a(f"s_cmp_ge_u32 s30, s{sLIM}")
        a.branch(f"s_cbranch_scc1 L_slow_{slot}")
        a(f"s_lshl_b32 s{sOFF}, s30, 12")
        a(f"s_add_u32 s{sOFF}, s{sOFF}, s{sHOME}")
        a(f"s_waitcnt vmcnt({self.pace})")
        a.label(f"L_kv_{slot}", fence=False)
        a(f"s_add_u32 s{sCNT}, s{sCNT}, 1")
        if self.trace:
            a(f"""
            s_memrealtime s[100:101]
            s_waitcnt lgkmcnt(0)
            s_lshl_b32 s100, s100, 8
            s_and_b32 s101, s30, 0xff
            s_or_b32 s100, s100, s101
            s_add_u32 s{sLANE}, s{sLANE}, 1
            s_lshl_b64 exec, 1, s{sLANE}
            v_mov_b32 v{V_ST}, s100
            s_mov_b64 exec, -1
            """)
        k = self.kreg(slot); v = self.vreg(slot)
        for i in range(4):
            a(f"buffer_load_dwordx4 {vr(k+4*i,4)}, v{self.vK}, {srd(S_K)}, s{sOFF} offen offset:{64*i} nt")
        if self.loop_grp == 4: a(f"s_waitcnt vmcnt({self.pace})")
        for i in range(4):
            a(f"buffer_load_dwordx4 {vr(v+4*i,4)}, v{self.vV}, {srd(S_V)}, s{sOFF} offen offset:{256*i} nt")
        a.label(f"L_back_{slot}", fence=False)

    def slow(self, slot):
        a = self.a
        a.label(f"L_slow_{slot}")
        a(f"s_cmp_lg_u32 s{sST}, 0")
        a(f"s_cbranch_scc1 L_alt_{slot}")
        a(f"s_lshl_b32 s92, s30, 2")
        a(f"v_mov_b32 v{self.vPL}, s92")
        a(f"s_mov_b32 s93, {SPIN}")
        if self.stamps:
            a(f"s_cmp_lg_u32 s{sPEND}, 0")
            a(f"s_cbranch_scc1 L_spin_{slot}")
            a(f"s_mov_b32 s{sPEND}, 1")
            self.stamp(10)
        a.label(f"L_spin_{slot}")
        a(f"ds_read_b32 v{self.vT}, v{self.vPL} offset:{TAB_LDS - 4 * self.NS}")
        a("s_waitcnt lgkmcnt(0)")
        a(f"v_readfirstlane_b32 s92, v{self.vT}")
        a(f"s_cmp_lg_u32 s92, 0")
        a(f"s_cbranch_scc1 L_got_{slot}")
        if self.stamps: a(f"s_add_u32 s{sSPIN}, s{sSPIN}, 1")
        a(f"s_sub_u32 s93, s93, 1")
        a(f"s_cmp_lg_u32 s93, 0")
        a.branch(f"s_cbranch_scc1 L_spin_{slot}")
        a(f"s_mov_b32 s92, {STOP:#x}")
        a.label(f"L_got_{slot}")
        a(f"s_cmp_lt_i32 s92, 0")
        a(f"s_cbranch_scc1 L_stop_{slot}")
        a(f"s_and_b32 s{sOFF}, s92, 0x7ff000")
        a(f"s_waitcnt vmcnt({self.pace})")
        a.branch(f"s_branch L_kv_{slot}")
        a.label(f"L_stop_{slot}")
        a(f"s_mov_b32 s{sST}, 1")
        a(f"s_mov_b32 s{sLIM}, 0")
        self.stamp(11)
        a.label(f"L_alt_{slot}")
        if self.wdrain or self.wodrain:
            a(f"s_cmp_eq_u32 s{sMODE}, 2")
            a.branch(f"s_cbranch_scc1 L_back_{slot}")
            a(f"s_cmp_eq_u32 s{sMODE}, 1")
            a(f"s_cbranch_scc1 L_altd_{slot}")
            if self.wdrain:
                n = self.wdrain
                for i in range(n):
                    self.w_load(n * slot + i)
            a.branch(f"s_branch L_back_{slot}")
            a.label(f"L_altd_{slot}")
            if self.wodrain:
                a(f"s_cmp_eq_u32 s{sDMN}, 0")
                a.branch(f"s_cbranch_scc1 L_back_{slot}")
                for p in range(self.wodrain):
                    a(f"s_mov_b32 m0, s{sWDB}")
                    a(f"buffer_load_dwordx4 v{self.vGU}, {srd(S_WO)}, s{sGUB} offen nt lds")
                    a(f"s_add_u32 s{sWDB}, s{sWDB}, 1024")
                    a(f"s_add_u32 s{sGUB}, s{sGUB}, {8*1152}")
                a(f"s_sub_u32 s{sDMN}, s{sDMN}, {self.wodrain}")
        a.branch(f"s_branch L_back_{slot}")
        a.label(f"L_dw_{slot}")
        w = {0: (8 + 4 * self.wdrain, 5 * self.wdrain), 1: ((16, 8) if self.wodrain else (8, 0)), 2: (8, 0)}
        modes = [0, 1, 2] if (self.wdrain or self.wodrain) else [2]
        for md in modes:
            if md != modes[-1]:
                a(f"s_cmp_eq_u32 s{sMODE}, {md}")
                a(f"s_cbranch_scc0 L_dwm{md}_{slot}")
            a(f"s_cmp_eq_u32 s{sCNT}, 2")
            a(f"s_cbranch_scc1 L_dw2{md}_{slot}")
            a(f"s_waitcnt vmcnt({w[md][1]})")
            a.label(f"L_dw2{md}_{slot}", fence=False)
            a(f"s_waitcnt vmcnt({w[md][0]})")
            a.branch(f"s_branch L_dwb_{slot}")
            if md != modes[-1]:
                a.label(f"L_dwm{md}_{slot}", fence=False)

    pdelay = None
    def xdelay(self, name, k):
        if not self.pdelay: return
        a = self.a
        a.label(name)
        a("s_memrealtime s[100:101]")
        a("s_waitcnt lgkmcnt(0)")
        a("s_sub_u32 s100, s100, s3")
        a(f"s_cmp_lt_u32 s100, {self.pdelay[k]}")
        a(f"s_cbranch_scc1 {name}")
    binit_late = False
    wdrain = 0
    npre = None
    QF3 = 400
    wodrain = 0
    def w_list(self):
        L = [(self.GUq(q), S_WG, self.vGU, sGUB, q * 8 * 9216) for q in range(18)]
        L += [(self.WDq(k), S_WD, self.vWDA, sWDB, k * 8 * 1152) for k in range(8)]
        return L
    def w_load(self, idx):
        a = self.a
        reg, sr, va, sb, so = self.w_list()[idx]
        if so:
            a(f"s_add_u32 s92, s{sb}, {so}")
            a(f"buffer_load_dwordx4 {vr(reg,4)}, v{va}, {srd(sr)}, s92 offen nt")
        else:
            a(f"buffer_load_dwordx4 {vr(reg,4)}, v{va}, {srd(sr)}, s{sb} offen nt")
    def Wreg(self, f):
        return self.RING + 32 * (f // 4) + 4 * (f % 4) if f < 24 else self.RING + 32 * (f - 24) + 16
    def GUq(self, q): return self.Wreg(q)
    def WDq(self, k): return self.Wreg(18 + k)
    def WDXq(self, k): return self.RING + 32 * k + 20 if k < 6 else self.RING + 32 * (k - 6) + 24

    loop_grp = 8
    vTK, vZ, vOne = 13, 14, 15
    vPL, vDUM, vGU, vWDA = 3, 63, 60, 61

    def wo_dma(self):
        a = self.a
        a(f"s_cmp_eq_u32 s{sCLS}, 2")
        a("s_cbranch_scc0 L_nodma")
        a(f"s_cmp_lt_u32 s{sWAVE}, 4")
        a("s_cbranch_scc0 L_nodma")
        self.mk_srd(S_WO, 12, 4096 * 576 * 2)
        T = self.vT
        va = self.vGU if self.wodrain else T
        a(f"""
        v_lshrrev_b32 v{T}, 3, v0
        v_and_b32 v{T+1}, 6, v{T}
        v_and_b32 v{T+2}, 7, v0
        v_xor_b32 v{T+1}, v{T+1}, v{T+2}
        v_mul_u32_u24 v{T}, 1152, v{T}
        v_lshl_add_u32 v{va}, v{T+1}, 4, v{T}
        s_mul_i32 s92, s{sG}, {256*1152}
        s_lshl_b32 s30, s{sIDX}, 7
        s_add_u32 s92, s92, s30
        s_mul_i32 s30, s{sWAVE}, {8*8*1152}
        s_add_u32 s92, s92, s30
        s_lshl_b32 s30, s{sWAVE}, 13
        """)
        if self.wodrain:
            a(f"""
            s_add_u32 s{sWDB}, s30, {IMG_LDS}
            s_mov_b32 s{sGUB}, s92
            s_mov_b32 s{sDMN}, 8
            s_mov_b32 s{sMODE}, 1
            """)
        else:
            a(f"s_add_u32 m0, s30, {IMG_LDS}")
            for p in range(8):
                if p % self.pro_grp == 0: a(f"s_waitcnt vmcnt({self.pro_wait})")
                a(f"buffer_load_dwordx4 v{T}, {srd(S_WO)}, s92 offen nt lds")
                if p < 7:
                    a("s_add_u32 m0, m0, 1024")
                    a(f"s_add_u32 s92, s92, {8*1152}")
        a.label("L_nodma")

    def streaming(self):
        a = self.a; R = self.R
        a(f"""
        v_and_b32 v3, 15, v0
        v_lshlrev_b32 v{self.vK}, 8, v3
        v_lshlrev_b32 v{self.vV}, 4, v3
        v_lshrrev_b32 v3, 4, v0
        v_lshl_add_u32 v{self.vK}, v3, 4, v{self.vK}
        v_lshl_add_u32 v{self.vV}, v3, 10, v{self.vV}
        s_lshl_b32 s30, s{sG}, 23
        s_lshl_b32 s{sHOME}, s{sJ}, 19
        s_lshl_b32 s{sOFF}, s{sWAVE}, 12
        s_add_u32 s{sOFF}, s{sOFF}, s{sHOME}
        v_mov_b32 v{self.vZ}, 0
        v_mov_b32 v{self.vOne}, 1
        s_mov_b32 s{sSCALE}, {SCALE:#x}
        s_mov_b32 s{sSCALE+1}, {SCALE:#x}
        """)
        self.mk_masks(self.vT, self.vT + 1, 3)
        a(f"""
        v_mov_b32 v{self.vL}, 0
        v_mov_b32 v{self.vL+1}, 0
        v_mov_b32 v{self.vM}, 0xff7fffff
        """)
        for r in range(4):
            a(f"v_mov_b32 v{self.vO+r}, 0")
        a(f"""
        v_bfe_u32 v3, v0, 3, 1
        v_lshlrev_b32 v3, 8, v3
        v_lshrrev_b32 v{self.vT}, 4, v0
        v_lshl_add_u32 v3, v{self.vT}, 4, v3
        s_waitcnt lgkmcnt(0)
        """)
        self.mk_srd(S_K, 6, 0x800000, add="s30")
        self.mk_srd(S_V, 8, 0x800000, add="s30")
        if self.binit: a("s_barrier")
        for s in range(R):
            if s == R - 1: self.wo_dma()
            self.issue(s, grp=self.pro_grp, wait=(self.pro_wait if s > 0 or self.pro_grp < 8 else None))
            if s == 0:
                self.stamp(0)
                a(f"s_load_dword s{sTAG}, s[28:29], {WS_EPOCH}")
                self.mk_srd(S_WS, 28, WS_SIZE)
                self.mk_srd(S_WD, 20, 4608 * 576 * 2)
                self.mk_srd(S_X, 4, 1152)
                self.mk_srd(S_OUT, 26, 1152)
                a(f"s_cmp_lt_u32 s{sWAVE}, 4")
                a("s_cbranch_scc0 L_gu_up")
                self.mk_srd(S_WG, 16, 576 * 4608 * 2)
                a("s_branch L_gu_done")
                a.label("L_gu_up", fence=False)
                self.mk_srd(S_WG, 18, 576 * 4608 * 2)
                a.label("L_gu_done", fence=False)
                self.mk_sub(self.vT, self.vT + 1)
                a(f"""
                v_and_b32 v{self.vT+1}, 7, v0
                v_lshlrev_b32 v{self.vT+1}, 4, v{self.vT+1}
                v_mul_u32_u24 v{self.vGU}, 9216, v{self.vT}
                v_add_u32 v{self.vGU}, v{self.vGU}, v{self.vT+1}
                v_mul_u32_u24 v{self.vWDA}, 1152, v{self.vT}
                v_add_u32 v{self.vWDA}, v{self.vWDA}, v{self.vT+1}
                s_and_b32 s92, s{sWAVE}, 3
                s_mul_i32 s{sGUB}, s92, {144 * 9216}
                s_lshl_b32 s92, s{sIDX}, 7
                s_add_u32 s{sGUB}, s{sGUB}, s92
                s_mul_i32 s{sWDB}, s{sIDX}, {64 * 1152}
                s_lshl_b32 s92, s{sWAVE}, 7
                s_add_u32 s{sWDB}, s{sWDB}, s92
                s_mov_b32 s{sOOB}, 0x800000
                s_mov_b32 s{sST}, 0
                s_mov_b32 s{sPEND}, 0
                s_mov_b32 s{sSPIN}, 0
                s_mov_b32 s{sLANE}, 15
                s_mov_b32 s{sLIM}, {self.NS}
                s_mov_b32 s{sMODE}, 2
                s_cmp_eq_u32 s{sCLS}, 0
                s_cselect_b32 s{sMODE}, {0 if self.wdrain else 2}, s{sMODE}
                """)
                a("s_waitcnt lgkmcnt(0)")
                a(f"s_mul_i32 s{sTAG}, s{sTAG}, 0x9E3779B1")
                a(f"s_add_u32 s{sTAG}, s{sTAG}, 0x7F4A7C15")
        self.stamp(1)
        if self.qflag:
            self.lds_spin("L_qfl", QFL_LDS, 1, self.vZ, self.vT, 30)
        else:
            a("s_barrier")
        for i in range(4):
            a(f"ds_read_b128 {vr(self.vQ+4*i,4)}, v3 offset:{Q_LDS+64*i}")
        a(f"s_mov_b32 s{sCNT}, {R}")
        a("s_waitcnt lgkmcnt(0)")
        self.stamp(2)
        a.label("L_loop")
        for s in range(R):
            self.block(s, 4 + 8 * (R - 1), 8 * (R - 1))
            a(f"s_sub_u32 s{sCNT}, s{sCNT}, 1")
            a(f"s_cmp_eq_u32 s{sCNT}, 0")
            if s < R - 1:
                a.branch("s_cbranch_scc1 L_epi")
            else:
                a.branch("s_cbranch_scc0 L_loop")
        a.label("L_epi")
        self.stamp(3)
        if self.stamps: a(f"v_writelane_b32 v{V_ST}, s{sSPIN}, 12")
        L = self.vL; T = self.vT
        a(f"v_add_f32 v{L}, v{L}, v{L+1}")
        self.cross_rows("add", [L], [T])
        a(f"""
        v_bfe_u32 v3, v0, 3, 1
        v_lshlrev_b32 v3, 9, v3
        v_lshrrev_b32 v{T+1}, 4, v0
        v_lshl_add_u32 v3, v{T+1}, 7, v3
        v_and_b32 v{T+1}, 7, v0
        v_lshl_add_u32 v3, v{T+1}, 2, v3
        s_lshl_b32 s30, s{sWAVE}, 10
        v_add_u32 v3, s30, v3
        """)
        for r in range(4):
            a(f"ds_write_b32 v3, v{self.vO+r} offset:{PART_LDS+32*r}")
        a(f"""
        v_bfe_u32 v{T+1}, v0, 3, 1
        v_lshlrev_b32 v{T+1}, 5, v{T+1}
        s_lshl_b32 s30, s{sWAVE}, 2
        v_add_u32 v{T+1}, s30, v{T+1}
        s_mov_b64 exec, 0x101
        ds_write_b32 v{T+1}, v{self.vM} offset:{ML_LDS}
        ds_write_b32 v{T+1}, v{L} offset:{ML_LDS+64}
        s_mov_b64 exec, -1
        s_cmp_eq_u32 s{sCLS}, 0
        """)
        a.branch("s_cbranch_scc1 L_ffn_tail")
        a(f"s_cmp_eq_u32 s{sCLS}, 2")
        a.branch("s_cbranch_scc1 L_wo_tail")
        a("""
        s_waitcnt lgkmcnt(0)
        s_barrier
        """)
        self.stamp(4)
        self.stamp_flush()
        a("s_endpgm")
        for s in range(R):
            self.slow(s)

    def wo_tail(self):
        a = self.a
        a.label("L_wo_tail")
        a(f"s_cmp_lt_u32 s{sWAVE}, 4")
        a.branch("s_cbranch_scc0 L_wo_c")
        a(f"""
        s_lshl_b32 s30, s{sWAVE}, 6
        v_add_u32 v1, s30, v0
        v_lshlrev_b32 v2, 2, v1
        v_lshrrev_b32 v8, 5, v1
        v_lshlrev_b32 v8, 6, v8
        v_bfe_u32 v9, v1, 2, 2
        v_lshl_add_u32 v8, v9, 4, v8
        v_bfe_u32 v9, v1, 4, 1
        v_lshl_add_u32 v8, v9, 3, v8
        v_and_b32 v9, 3, v1
        v_lshl_add_u32 v8, v9, 1, v8
        v_and_b32 v3, 15, v0
        v_lshlrev_b32 v3, 4, v3
        s_lshr_b32 s30, s{sWAVE}, 1
        s_lshl_b32 s30, s30, 3
        v_add_u32 v3, s30, v3
        s_lshl_b32 s30, s{sG}, 14
        s_add_u32 s92, s30, {WS_T1O}
        s_add_u32 s93, s92, 4096
        s_add_u32 s94, s92, 8192
        s_add_u32 s95, s92, 12288
        s_lshl_b32 s30, s{sG}, 8
        s_add_u32 s96, s30, {WS_T1ML}
        s_waitcnt lgkmcnt(0)
        s_barrier
        """)
        self.stamp(4)
        D = 16
        def ml_ld(): a(f"buffer_load_dwordx2 v[32:33], v3, {srd(S_WS)}, s96 offen sc1")
        def ml_ck():
            a("v_add_f32 v34, v32, v33")
            a("v_cmp_u_f32 vcc, v34, v34")
        def ml_ov():
            a("v_mov_b32 v34, v32")
            self.row_allreduce("max", [34])
            a("v_sub_f32 v35, v32, v34")
            a("v_exp_f32 v35, v35")
            a("v_mul_f32 v36, v35, v33")
            self.row_allreduce("add", [36])
            a("v_rcp_f32 v36, v36")
            a("v_mul_f32 v35, v35, v36")
        units = [(ml_ld, ml_ck, ml_ov)]
        for q in range(4):
            def ld(q=q):
                for s_ in range(4 * q, 4 * q + 4):
                    a(f"buffer_load_dword v{D+s_}, v2, {srd(S_WS)}, s{92 + q} offen offset:{1024*(s_%4)} sc1")
            def ck(q=q):
                a(f"v_add_f32 v38, v{D+4*q}, v{D+4*q+1}")
                a(f"v_add_f32 v39, v{D+4*q+2}, v{D+4*q+3}")
                a("v_add_f32 v38, v38, v39")
                a("v_cmp_u_f32 vcc, v38, v38")
            units.append((ld, ck, None))
        def dfl():
            a("s_mov_b64 exec, 1")
            a(f"ds_or_b32 v40, v41 offset:{DFL_LDS}")
            a("s_mov_b64 exec, -1")
        if self.wodrain:
            a(f"s_lshl_b32 s30, 1, s{sWAVE}")
            a("v_mov_b32 v40, 0")
            a("v_mov_b32 v41, s30")
        self.inc_poll("L_t1poll", units, 97, dfl if self.wodrain else None)
        a("v_mov_b32 v37, 0")
        for s_ in range(16):
            a(f"v_fmac_f32_dpp v37, v35, v{D+s_} row_newbcast:{s_} row_mask:0xf bank_mask:0xf")
        a(f"v_cvt_pk_bf16_f32 v37, v37, v37")
        a(f"ds_write_b16 v8, v37 offset:{O_LDS}")
        a("s_waitcnt lgkmcnt(0)")
        self.stamp(5)
        a("s_barrier")
        self.stamp_flush()
        a("s_endpgm")
        a.label("L_wo_c")
        a("""
        s_waitcnt lgkmcnt(0)
        s_barrier
        """)
        self.stamp(4)
        a.label("L_wo_mm")
        WOF = 64; OF = 96
        a(f"""
        s_sub_u32 s30, s{sWAVE}, 4
        v_bfe_u32 v1, v0, 4, 1
        v_bfe_u32 v2, v0, 2, 2
        v_lshl_add_u32 v1, v1, 2, v2
        v_bfe_u32 v2, v0, 1, 1
        s_lshl_b32 s31, s30, 1
        v_add_u32 v2, s31, v2
        v_and_b32 v3, 6, v1
        v_xor_b32 v2, v2, v3
        v_lshlrev_b32 v2, 4, v2
        v_lshl_add_u32 v2, v1, 7, v2
        v_and_b32 v3, 1, v0
        v_lshl_add_u32 v2, v3, 3, v2
        v_lshrrev_b32 v3, 5, v0
        v_lshl_add_u32 v2, v3, 10, v2
        v_add_u32 v2, {IMG_LDS}, v2
        v_lshrrev_b32 v3, 4, v0
        v_lshlrev_b32 v3, 4, v3
        """)
        if self.wodrain:
            a("v_mov_b32 v8, 0")
            self.lds_spin("L_dfl", DFL_LDS, 15, 8, 9, 31)
        for ks in range(8):
            a(f"ds_read_b64_tr_b16 {vr(WOF+4*ks,2)}, v2 offset:{4096*ks}")
            a(f"ds_read_b64_tr_b16 {vr(WOF+4*ks+2,2)}, v2 offset:{4096*ks+2048}")
        a(f"""
        s_mul_i32 s31, s{sG}, 2304
        s_lshl_b32 s93, s{sIDX}, 8
        s_add_u32 s93, s93, s31
        s_lshl_b32 s31, s30, 6
        s_add_u32 s93, s93, s31
        s_add_u32 s93, s93, {WS_T2}
        s_mov_b32 s30, 0x00010001
        s_mov_b32 s31, 0x00010001
        s_waitcnt lgkmcnt(0)
        s_barrier
        """)
        for s in range(8):
            a(f"ds_read_b128 {vr(OF+4*s,4)}, v3 offset:{O_LDS+64*s}")
        for s in range(8):
            a(f"s_waitcnt lgkmcnt({7-s})")
            c = "0" if s == 0 else vr(12, 4)
            a(f"v_mfma_f32_16x16x32_bf16 {vr(12,4)}, {vr(WOF+4*s,4)}, {vr(OF+4*s,4)}, {c}")
        a(f"""
        s_mov_b64 exec, s[30:31]
        buffer_store_dwordx4 v[12:15], v3, {srd(S_WS)}, s93 offen sc1
        s_mov_b64 exec, -1
        """)
        self.stamp(6)
        a.branch("s_branch L_fin")

    TDX = [84, 116, 148, 180, 212, 88, 120]
    def TD(self, s): return 16 + 4 * s if s < 9 else self.TDX[s - 9]
    CX, CGA, CCB, CSB = 92, 124, 156, 188
    ACC4 = 220
    UXL = (152, 184, 216, 244)
    GBQ = 252
    FINW = 6

    def ffn_addr(self):
        a = self.a
        self.mk_sub(1, 2)
        a(f"""
        v_mul_u32_u24 v8, {HD_P}, v1
        s_and_b32 s30, s{sWAVE}, 3
        s_mul_i32 s30, s30, {8 * HD_P}
        s_add_u32 s30, s30, {HD2_LDS}
        v_add_u32 v8, s30, v8
        v_lshlrev_b32 v11, 2, v1
        v_lshrrev_b32 v12, 4, v0
        v_lshlrev_b32 v12, 4, v12
        v_and_b32 v9, 7, v0
        v_lshl_add_u32 v12, v9, 5, v12
        s_lshl_b32 s30, s{sWAVE}, 8
        s_add_u32 s30, s30, {PX_LDS}
        v_add_u32 v9, s30, v12
        v_lshlrev_b32 v10, 2, v0
        v_add_u32 v10, {PX_LDS}, v10
        """)

    def ffn_tail(self):
        a = self.a
        a.label("L_ffn_tail")
        a("s_mov_b64 exec, 1")
        a(f"ds_add_u32 v{self.vZ}, v{self.vOne} offset:{ARR_LDS}")
        a("s_mov_b64 exec, -1")
        self.ffn_addr()
        a(f"s_cmp_lt_u32 s{sWAVE}, 3")
        a("s_cbranch_scc0 L_ffn_nog")
        a(f"""
        s_lshl_b32 s30, s{sWAVE}, 6
        v_add_u32 v52, s30, v0
        v_lshlrev_b32 v53, 4, v52
        v_lshlrev_b32 v54, 3, v52
        v_cmp_gt_u32 vcc, 144, v52
        v_mov_b32 v55, 0x7ffffff0
        v_cndmask_b32 v55, v55, v53, vcc
        v_min_u32 v56, 143, v52
        v_lshlrev_b32 v56, 4, v56
        v_mul_u32_u24 v57, 57, v52
        v_lshrrev_b32 v57, 11, v57
        v_mul_u32_u24 v58, 36, v57
        v_sub_u32 v58, v52, v58
        v_mul_u32_u24 v57, {8 * HD_P}, v57
        v_lshrrev_b32 v59, 1, v58
        v_lshl_add_u32 v57, v59, 2, v57
        v_and_b32 v58, 1, v58
        v_mul_u32_u24 v58, {4 * HD_P}, v58
        v_add_u32 v57, v57, v58
        v_add_u32 v57, {HD2_LDS}, v57
        buffer_load_dwordx2 {vr(self.CX,2)}, v54, {srd(S_X)}, 0 offen
        s_mov_b32 s92, {WS_P3}
        s_mov_b32 s93, {WS_P3 + 2304}
        s_mov_b32 s94, {WS_P3 + 4608}
        """)
        a(f"buffer_load_dwordx4 {vr(self.CGA,4)}, v56, {srd(S_WS)}, s92 offen sc1")
        a(f"buffer_load_dwordx4 {vr(self.CSB,4)}, v56, {srd(S_WS)}, s93 offen sc1")
        a(f"buffer_load_dwordx4 {vr(self.CCB,4)}, v56, {srd(S_WS)}, s94 offen sc1")
        a.label("L_ffn_nog")
        n_done = 6 * self.wdrain
        for f in range(n_done, 26):
            if self.npre is not None and f == n_done + self.npre:
                self.stamp(14)
                a("s_barrier")
            self.w_load(f)
        self.n_late = 26 - n_done
        if self.npre is None: self.stamp(14)
        self.stamp(4)
        a.label("L_ffn_post")
        a(f"s_cmp_lt_u32 s{sWAVE}, 3")
        a.branch("s_cbranch_scc0 L_ffn_w3")
        a(f"""
        s_mov_b32 s92, {WS_P3}
        s_mov_b32 s93, {WS_P3 + 2304}
        s_mov_b32 s94, {WS_P3 + 4608}
        """)
        regs = []
        for q in (self.CGA, self.CSB, self.CCB): regs += [q + 1, q + 3]
        a(f"s_waitcnt vmcnt({self.n_late})")
        self.tagcheck(regs, 58, 59)
        a.branch("s_cbranch_vccz L_p3poll_ok")
        self.poll_begin("L_p3poll")
        a(f"buffer_load_dwordx4 {vr(self.CGA,4)}, v56, {srd(S_WS)}, s92 offen sc1")
        a(f"buffer_load_dwordx4 {vr(self.CSB,4)}, v56, {srd(S_WS)}, s93 offen sc1")
        a(f"buffer_load_dwordx4 {vr(self.CCB,4)}, v56, {srd(S_WS)}, s94 offen sc1")
        a("s_waitcnt vmcnt(0)")
        self.tagcheck(regs, 58, 59)
        self.poll_end("L_p3poll")
        X, GA, CB, SB = self.UXL
        for dst, lo, hi in ((X, self.CX, self.CX + 1), (GA, self.CGA, self.CGA + 2), (CB, self.CCB, self.CCB + 2), (SB, self.CSB, self.CSB + 2)):
            a(f"v_lshlrev_b32 v{dst}, 16, v{lo}")
            a(f"v_and_b32 v{dst+1}, 0xffff0000, v{lo}")
            a(f"v_lshlrev_b32 v{dst+2}, 16, v{hi}")
            a(f"v_and_b32 v{dst+3}, 0xffff0000, v{hi}")
        for r in range(4):
            a(f"v_add_f32 v{CB+r}, 1.0, v{CB+r}")
        for r in range(4): self.rnd(CB + r, CB + r)
        self.stamp(8)
        for k in range(8):
            a(f"s_mov_b32 s{92+k}, {WS_T2 + 4608*k}")
        AC = self.ACC4
        a("v_mov_b32 v58, 0")
        self.lds_spin("L_hfl", HFL_LDS, 1, 58, 59, 30)
        if self.t2gate:
            a(f"""
            v_mul_u32_u24 v58, 2304, v0
            s_lshl_b32 s30, s{sWAVE}, 10
            s_add_u32 s30, s30, {WS_T2}
            s_mov_b64 exec, 0xffff
            """)
            self.poll_begin("L_t2gate")
            a(f"buffer_load_dword v59, v58, {srd(S_WS)}, s30 offen sc1")
            a("s_waitcnt vmcnt(0)")
            a("v_cmp_o_f32 vcc, v59, v59")
            a(f"s_cbranch_vccnz L_t2gate_ok")
            a(f"s_sub_u32 s{sCNT}, s{sCNT}, 1")
            a(f"s_cmp_lg_u32 s{sCNT}, 0")
            a.branch("s_cbranch_scc1 L_t2gate")
            a.label("L_t2gate_ok")
            a("s_mov_b64 exec, -1")
        units = []
        for q in range(4):
            def ld(q=q):
                for s_ in range(4 * q, 4 * q + 4):
                    a(f"buffer_load_dwordx4 {vr(self.TD(s_),4)}, v55, {srd(S_WS)}, s{92 + s_//2} offen offset:{2304*(s_%2)} sc1")
            def ck(q=q):
                t = [self.TD(4 * q + k) for k in range(4)]
                for h in (0, 2):
                    a(f"v_pk_add_f32 {vr(t[0]+h,2)}, {vr(t[0]+h,2)}, {vr(t[1]+h,2)}")
                    a(f"v_pk_add_f32 {vr(t[2]+h,2)}, {vr(t[2]+h,2)}, {vr(t[3]+h,2)}")
                for h in (0, 2):
                    a(f"v_pk_add_f32 {vr(t[0]+h,2)}, {vr(t[0]+h,2)}, {vr(t[2]+h,2)}")
                a(f"v_add_f32 v248, v{t[0]}, v{t[0]+1}")
                a(f"v_add_f32 v249, v{t[0]+2}, v{t[0]+3}")
                a("v_add_f32 v248, v248, v249")
                a("v_cmp_u_f32 vcc, v248, v248")
            units.append((ld, ck, None))
        self.inc_poll("L_t2poll", units, 31)
        q0, q1, q2, q3 = [self.TD(4 * q) for q in range(4)]
        for h in (0, 2):
            a(f"v_pk_add_f32 {vr(q0+h,2)}, {vr(q0+h,2)}, {vr(q1+h,2)}")
            a(f"v_pk_add_f32 {vr(q2+h,2)}, {vr(q2+h,2)}, {vr(q3+h,2)}")
        for h in (0, 2):
            a(f"v_pk_add_f32 {vr(AC+h,2)}, {vr(q0+h,2)}, {vr(q2+h,2)}")
        self.stamp(5)
        for r in range(4): self.rnd(AC + r, AC + r)
        a(f"v_pk_mul_f32 {vr(AC,2)}, {vr(AC,2)}, {vr(GA,2)}")
        a(f"v_pk_mul_f32 {vr(AC+2,2)}, {vr(AC+2,2)}, {vr(GA+2,2)}")
        for r in range(4): self.rnd(AC + r, AC + r)
        a(f"v_pk_add_f32 {vr(AC,2)}, {vr(AC,2)}, {vr(X,2)}")
        a(f"v_pk_add_f32 {vr(AC+2,2)}, {vr(AC+2,2)}, {vr(X+2,2)}")
        for r in range(4): self.rnd(AC + r, AC + r)
        a(f"ds_write_b128 v53, {vr(AC,4)} offset:{X1_LDS}")
        a(f"v_add_f32 v248, v{AC}, v{AC+1}")
        a(f"v_mul_f32 v249, v{AC}, v{AC}")
        a(f"v_add_f32 v250, v{AC+2}, v{AC+3}")
        a(f"v_fmac_f32 v249, v{AC+1}, v{AC+1}")
        a(f"v_add_f32 v248, v248, v250")
        a(f"v_fmac_f32 v249, v{AC+2}, v{AC+2}")
        a(f"v_fmac_f32 v249, v{AC+3}, v{AC+3}")
        self.row_allreduce("add", [248, 249])
        self.cross_rows("add", [248, 249], [250, 251])
        a(f"""
        s_lshl_b32 s30, s{sWAVE}, 3
        v_mov_b32 v250, s30
        s_mov_b64 exec, 1
        ds_write_b64 v250, v[248:249] offset:{ST_LDS}
        s_mov_b64 exec, -1
        s_waitcnt lgkmcnt(0)
        s_barrier
        v_mov_b32 v250, 0
        ds_read_b128 v[20:23], v250 offset:{ST_LDS}
        ds_read_b64 v[24:25], v250 offset:{ST_LDS+16}
        s_waitcnt lgkmcnt(0)
        v_add_f32 v248, v20, v22
        v_add_f32 v249, v21, v23
        v_add_f32 v248, v248, v24
        v_add_f32 v249, v249, v25
        v_mul_f32 v248, {f32(1.0/576.0)}, v248
        v_mul_f32 v249, {f32(1.0/576.0)}, v249
        v_fma_f32 v249, -v248, v248, v249
        v_max_f32 v249, 0, v249
        """)
        self.ln_finish(248, 249)
        for r in range(4):
            a(f"v_sub_f32 v{AC+r}, v{AC+r}, v248")
        for r in range(4): self.rnd(AC + r, AC + r)
        for r in range(4):
            a(f"v_mul_f32 v{AC+r}, v{AC+r}, v249")
        for r in range(4): self.rnd(AC + r, AC + r)
        a(f"v_pk_mul_f32 {vr(AC,2)}, {vr(AC,2)}, {vr(CB,2)}")
        a(f"v_pk_mul_f32 {vr(AC+2,2)}, {vr(AC+2,2)}, {vr(CB+2,2)}")
        for r in range(4): self.rnd(AC + r, AC + r)
        a(f"v_pk_add_f32 {vr(AC,2)}, {vr(AC,2)}, {vr(SB,2)}")
        a(f"v_pk_add_f32 {vr(AC+2,2)}, {vr(AC+2,2)}, {vr(SB+2,2)}")
        if self.dbg:
            a(f"v_cvt_pk_bf16_f32 v250, v{AC}, v{AC+1}")
            a(f"v_cvt_pk_bf16_f32 v251, v{AC+2}, v{AC+3}")
            a(f"s_lshl_b32 s92, s{sIDX}, 11")
            a(f"s_add_u32 s92, s92, {WS_DBG}")
            a(f"buffer_store_dwordx2 v[250:251], v54, {srd(S_WS)}, s92 offen")
        for r in range(4):
            a(f"v_cvt_pk_bf16_f32 v{AC+r}, v{AC+r}, v{AC+r}")
        a(f"ds_write2_b32 v57, v{AC}, v{AC+1} offset0:0 offset1:{HD_P//4}")
        a(f"ds_write2_b32 v57, v{AC+2}, v{AC+3} offset0:{2*HD_P//4} offset1:{3*HD_P//4}")
        a("s_waitcnt lgkmcnt(0)")
        self.stamp(6)
        a.branch("s_branch L_ffn_b4")
        a.label("L_ffn_w3")
        a(f"s_cmp_eq_u32 s{sWAVE}, {self.FINW}")
        a("s_cbranch_scc0 L_ffn_nogb")
        a(f"""
        v_and_b32 v56, 3, v0
        v_lshlrev_b32 v56, 4, v56
        s_min_u32 s92, s{sIDX}, 35
        s_lshl_b32 s92, s92, 6
        s_add_u32 s92, s92, {WS_P3 + 1728*4}
        """)
        self.poll_begin("L_gbpoll")
        a(f"buffer_load_dwordx4 {vr(self.GBQ,4)}, v56, {srd(S_WS)}, s92 offen sc1")
        a("s_waitcnt vmcnt(0)")
        self.tagcheck([self.GBQ + 1, self.GBQ + 3], 58, 59)
        self.poll_end("L_gbpoll")
        a.label("L_ffn_nogb")
        a("s_barrier")
        a.label("L_ffn_b4")
        a("s_barrier")
        AV = 16
        for q in range(5):
            a(f"ds_read_b128 {vr(AV+4*q,4)}, v8 offset:{16*q}")
        kb = 0.7978845608028654; kk = 0.044715
        c1 = -2.0 * kb * 1.4426950408889634
        a(f"""
        s_mov_b32 s92, {f32(kk)}
        s_mov_b32 s30, 0x00ff00ff
        s_mov_b32 s31, 0
        s_mul_i32 s93, s{sIDX}, 2304
        s_lshl_b32 s94, s{sWAVE}, 8
        s_add_u32 s93, s93, s94
        s_add_u32 s93, s93, {WS_T3}
        s_waitcnt vmcnt(0) lgkmcnt(0)
        """)
        self.stamp(9)
        self.gemv([self.GUq(t) for t in range(18)], 18, [AV + t for t in range(18)], 40, 48, True)
        self.halfsum(48, 52)
        a(f"""
        s_mov_b64 exec, s[30:31]
        ds_write_b128 v9, v[48:51]
        s_mov_b64 exec, -1
        s_waitcnt lgkmcnt(0)
        s_barrier
        """)
        for w in range(8):
            a(f"ds_read_b32 v{16+w}, v10 offset:{256*w}")
        a(f"""
        s_waitcnt lgkmcnt(4)
        v_add_f32 v16, v16, v17
        v_add_f32 v18, v18, v19
        v_add_f32 v24, v16, v18
        s_waitcnt lgkmcnt(0)
        v_add_f32 v20, v20, v21
        v_add_f32 v22, v22, v23
        v_add_f32 v25, v20, v22
        """)
        self.rnd(24, 24)
        self.rnd(25, 25)
        a(f"""
        v_mul_f32 v26, v24, v24
        v_fma_f32 v26, v26, s92, 1.0
        v_mul_f32 v26, v26, v24
        v_mul_f32 v26, {f32(c1)}, v26
        v_exp_f32 v26, v26
        v_add_f32 v26, 1.0, v26
        v_rcp_f32 v26, v26
        v_mul_f32 v26, v26, v24
        """)
        self.rnd(26, 26)
        a("v_mul_f32 v26, v26, v25")
        a("v_cvt_pk_bf16_f32 v26, v26, v26")
        if self.dbg:
            a(f"""
            v_lshlrev_b32 v54, 1, v0
            s_lshl_b32 s92, s{sIDX}, 7
            s_add_u32 s92, s92, {WS_DBG + 0x40000}
            buffer_store_short v26, v54, {srd(S_WS)}, s92 offen
            s_add_u32 s92, s92, 0x4000
            buffer_store_short_d16_hi v24, v54, {srd(S_WS)}, s92 offen
            s_add_u32 s92, s92, 0x4000
            buffer_store_short_d16_hi v25, v54, {srd(S_WS)}, s92 offen
            """)
        for t in range(8):
            a(f"ds_bpermute_b32 v{16+t}, v11, v26 offset:{32*t}")
        a("s_waitcnt lgkmcnt(0)")
        AVd = [16 + t for t in range(8)]
        self.gemv([self.WDq(t) for t in range(8)], 8, AVd, 40, 48, True)
        self.halfsum(48, 52)
        a(f"""
        s_mov_b64 exec, s[30:31]
        buffer_store_dwordx4 v[48:51], v12, {srd(S_WS)}, s93 offen sc1
        s_mov_b64 exec, -1
        """)
        a(f"s_cmp_eq_u32 s{sWAVE}, 7")
        a("s_cbranch_scc0 L_ffn_nod3")
        self.gemv([self.WDXq(t) for t in range(8)], 8, AVd, 40, 36, True)
        self.halfsum(36, 32)
        a(f"""
        s_mul_i32 s93, s{sIDX}, 2304
        s_add_u32 s93, s93, {WS_T3 + 8*256}
        s_mov_b64 exec, s[30:31]
        buffer_store_dwordx4 v[36:39], v12, {srd(S_WS)}, s93 offen sc1
        s_mov_b64 exec, -1
        """)
        a.label("L_ffn_nod3")
        self.stamp(7)
        a(f"s_cmp_eq_u32 s{sWAVE}, {self.FINW}")
        a.branch("s_cbranch_scc0 L_fin")
        a(f"s_cmp_lt_u32 s{sIDX}, 36")
        a.branch("s_cbranch_scc0 L_fin")
        a(f"""
        v_lshrrev_b32 v1, 2, v0
        v_mul_u32_u24 v2, 2304, v1
        v_and_b32 v3, 3, v0
        v_lshl_add_u32 v2, v3, 4, v2
        v_cmp_gt_u32 vcc, 8, v1
        v_mov_b32 v8, 0x7ffffff0
        v_cndmask_b32 v8, v8, v2, vcc
        v_lshlrev_b32 v9, 4, v3
        s_lshl_b32 s30, s{sIDX}, 6
        v_add_u32 v9, s30, v9
        v_lshrrev_b32 v10, 1, v9
        ds_read_b128 v[40:43], v9 offset:{X1_LDS}
        s_add_u32 s92, s30, {WS_T3}
        s_add_u32 s93, s92, {16*2304}
        s_add_u32 s94, s92, {32*2304}
        s_add_u32 s95, s92, {48*2304}
        s_add_u32 s96, s92, {64*2304}
        """)
        self.poll_begin("L_t3poll")
        for t in range(5):
            a(f"buffer_load_dwordx4 {vr(16+4*t,4)}, v{2 if t < 4 else 8}, {srd(S_WS)}, s{92+t} offen sc1")
        for t in range(1, 5):
            a(f"s_waitcnt vmcnt({4-t})")
            a(f"v_pk_add_f32 v[16:17], v[16:17], {vr(16+4*t,2)}")
            a(f"v_pk_add_f32 v[18:19], v[18:19], {vr(18+4*t,2)}")
        self.row_allreduce("add", [16, 17, 18, 19], shifts=(8, 4))
        self.cross_rows("add", [16, 17, 18, 19], [20, 21, 22, 23])
        a("v_add_f32 v24, v16, v17")
        a("v_add_f32 v25, v18, v19")
        a("v_add_f32 v24, v24, v25")
        a("v_cmp_u_f32 vcc, v24, v24")
        self.poll_end("L_t3poll")
        for r in range(4): self.rnd(16 + r, 16 + r)
        a(f"""
        v_lshlrev_b32 v20, 16, v{self.GBQ}
        v_and_b32 v21, 0xffff0000, v{self.GBQ}
        v_lshlrev_b32 v22, 16, v{self.GBQ+2}
        v_and_b32 v23, 0xffff0000, v{self.GBQ+2}
        s_waitcnt lgkmcnt(0)
        v_pk_mul_f32 v[16:17], v[16:17], v[20:21]
        v_pk_mul_f32 v[18:19], v[18:19], v[22:23]
        """)
        for r in range(4): self.rnd(16 + r, 16 + r)
        a(f"""
        v_pk_add_f32 v[16:17], v[16:17], v[40:41]
        v_pk_add_f32 v[18:19], v[18:19], v[42:43]
        v_cvt_pk_bf16_f32 v16, v16, v17
        v_cvt_pk_bf16_f32 v17, v18, v19
        s_mov_b64 exec, 0xf
        buffer_store_dwordx2 v[16:17], v10, {srd(S_OUT)}, 0 offen
        s_mov_b64 exec, -1
        """)
        a.label("L_fin")
        a("s_cmp_eq_u32 s2, 0")
        a("s_cbranch_scc0 L_fin2")
        a(f"s_cmp_eq_u32 s{sWAVE}, 7")
        a("s_cbranch_scc0 L_fin2")
        a(f"""
        s_load_dword s30, s[28:29], {WS_EPOCH}
        s_waitcnt lgkmcnt(0)
        s_add_u32 s30, s30, 1
        v_mov_b32 v16, s30
        v_mov_b32 v17, {WS_EPOCH}
        s_mov_b64 exec, 1
        buffer_store_dword v16, v17, {srd(S_WS)}, 0 offen sc1
        s_mov_b64 exec, -1
        """)
        a.label("L_fin2")
        self.stamp_flush()
        a("s_endpgm")

    def service(self):
        a = self.a
        a.label("L_service")
        if self.pdelay: a("s_mov_b32 s3, s98")
        AV = 16
        ASET = 40
        ACC = 48
        T4 = 52
        WA = 64
        WQ = 136
        XR = 208
        XP = 214
        CR = 216
        XV = 220
        NP = 232
        G = 64
        PROD = f"s_cmp_lt_i32 s{sPA}, 0"
        a(f"""
        s_setprio 3
        v_lshlrev_b32 v1, 1, v0
        v_lshlrev_b32 v3, 3, v0
        v_lshlrev_b32 v2, 2, v0
        v_lshlrev_b32 v8, 4, v0
        """)
        self.mk_sub(9, 10)
        a(f"""
        v_and_b32 v10, 7, v0
        v_lshlrev_b32 v10, 4, v10
        v_mul_u32_u24 v11, 6912, v9
        v_add_u32 v11, v11, v10
        v_lshl_add_u32 v12, v9, 13, v10
        v_mul_u32_u24 v13, {HD_P}, v9
        s_and_b32 s92, s{sPA}, 3
        s_lshr_b32 s93, s{sPA}, 2
        s_mul_i32 s94, s92, 288
        s_mul_i32 s95, s92, {144*6912}
        s_lshl_b32 s96, s93, 7
        s_add_u32 s95, s95, s96
        s_waitcnt lgkmcnt(0)
        """)
        self.mk_srd(S_C, 22, 1152)
        self.mk_srd(S_WMOD, 24, 576 * 3456 * 2)
        a(PROD)
        a("s_cbranch_scc1 L_sv_nop1a")
        for i in range(3):
            a(f"buffer_load_ushort v{CR+i}, v1, {srd(S_C)}, s94 offen offset:{128*i}")
        for t in range(18):
            a(f"buffer_load_dwordx4 {vr(WA+4*t,4)}, v11, {srd(S_WMOD)}, s95 offen nt")
            if t < 17: a(f"s_add_u32 s95, s95, {8*6912}")
        a.label("L_sv_nop1a")
        a(f"v_mov_b32 v56, {7*self.R}")
        a("v_mov_b32 v57, 0")
        a("v_mov_b32 v58, 0")
        a("v_mov_b32 v59, 0")
        a(f"ds_write_b128 v57, v[56:59] offset:{CTR_LDS}")
        a(f"ds_write_b32 v57, v57 offset:{DFL_LDS}")
        a("s_waitcnt lgkmcnt(0)")
        if self.binit and not self.binit_late: a("s_barrier")
        a(f"s_load_dword s{sTAG}, s[28:29], {WS_EPOCH}")
        self.tab_init()
        self.mk_srd(S_X, 4, 1152)
        self.mk_srd(S_WQ, 10, 576 * 4096 * 2)
        for j in range(3):
            a(f"buffer_load_dwordx2 {vr(XR+2*j,2)}, v3, {srd(S_X)}, 0 offen offset:{512*j}")
        a(f"""
        s_lshr_b32 s96, s{sJ}, 2
        s_mul_i32 s97, s96, 288
        buffer_load_dword v{XP}, v2, {srd(S_X)}, s97 offen
        buffer_load_dword v{XP+1}, v2, {srd(S_X)}, s97 offen offset:256
        s_mul_i32 s98, s96, {144*8192}
        s_lshl_b32 s99, s{sG}, 9
        s_add_u32 s98, s98, s99
        s_and_b32 s99, s{sJ}, 3
        s_lshl_b32 s99, s99, 7
        s_add_u32 s98, s98, s99
        """)
        for t in range(18):
            a(f"buffer_load_dwordx4 {vr(WQ+4*t,4)}, v12, {srd(S_WQ)}, s98 offen nt")
            if t < 17: a(f"s_add_u32 s98, s98, {8*8192}")
        if self.binit and self.binit_late: a("s_barrier")
        self.mk_srd(S_WS, 28, WS_SIZE)
        self.mk_masks(56, 57, 58)
        a("s_waitcnt lgkmcnt(0)")
        a(f"s_mul_i32 s{sTAG}, s{sTAG}, 0x9E3779B1")
        a(f"s_add_u32 s{sTAG}, s{sTAG}, 0x7F4A7C15")
        self.stamp(0)
        a(f"""
        v_and_b32 v15, 7, v0
        v_lshlrev_b32 v15, 6, v15
        v_lshrrev_b32 v56, 4, v0
        v_lshl_add_u32 v15, v56, 5, v15
        v_and_b32 v56, 7, v0
        v_mul_u32_u24 v56, {HD_P}, v56
        v_lshrrev_b32 v57, 3, v0
        v_lshl_add_u32 v56, v57, 2, v56
        """)
        a(PROD)
        a.branch("s_cbranch_scc1 L_sv_nop1b")
        a("s_waitcnt vmcnt(41)")
        for i in range(3):
            a(f"v_lshlrev_b32 v{CR+i}, 16, v{CR+i}")
            self.silu(CR + i, T4 + i, 58, 59)
        a(f"ds_write_b32 v56, v{T4} offset:{HD_LDS}")
        a(f"ds_write_b32 v56, v{T4+1} offset:{HD_LDS+32}")
        a("s_mov_b64 exec, 0xffff")
        a(f"ds_write_b32 v56, v{T4+2} offset:{HD_LDS+64}")
        a("s_mov_b64 exec, -1")
        a("s_waitcnt lgkmcnt(0)")
        for q in range(5):
            a(f"ds_read_b128 {vr(AV+4*q,4)}, v13 offset:{HD_LDS+16*q}")
        a("s_waitcnt lgkmcnt(0)")
        waits = {t: f"s_waitcnt vmcnt({23 + 15 - t})" for t in range(0, 18, 3)}
        self.gemv(WA, 18, [AV + t for t in range(18)], ASET, ACC, True, waits)
        self.halfsum(ACC, T4)
        self.publish_f32(ACC, 15, None)
        a(f"""
        s_and_b32 s92, s{sPA}, 3
        s_mul_i32 s92, s92, {P1S}
        s_lshr_b32 s93, s{sPA}, 2
        s_lshl_b32 s93, s93, 9
        s_add_u32 s92, s92, s93
        s_add_u32 s92, s92, {WS_P1}
        """)
        self.publish_store(15, "s92")
        a.label("L_sv_nop1b")
        self.stamp(1)
        a("s_waitcnt vmcnt(18)")
        for j in range(3):
            for d in range(2):
                a(f"v_lshlrev_b32 v{XV+4*j+2*d}, 16, v{XR+2*j+d}")
                a(f"v_and_b32 v{XV+4*j+2*d+1}, 0xffff0000, v{XR+2*j+d}")
        a(f"v_add_f32 v56, v{XV}, v{XV+1}")
        for k in range(2, 12):
            a(f"v_add_f32 v56, v56, v{XV+k}")
        self.row_allreduce("add", [56])
        self.cross_rows("add", [56], [57])
        a(f"v_mul_f32 v56, {f32(1.0/576.0)}, v56")
        a("v_mov_b32 v57, 0")
        for k in range(8):
            a(f"v_sub_f32 v58, v{XV+k}, v56")
            a("v_fmac_f32 v57, v58, v58")
        a("s_mov_b64 exec, 0xffff")
        for k in range(8, 12):
            a(f"v_sub_f32 v58, v{XV+k}, v56")
            a("v_fmac_f32 v57, v58, v58")
        a("s_mov_b64 exec, -1")
        self.row_allreduce("add", [57])
        self.cross_rows("add", [57], [58])
        a(f"v_mul_f32 v57, {f32(1.0/576.0)}, v57")
        self.ln_finish(56, 57)
        a(f"v_lshlrev_b32 v{NP}, 16, v{XP}")
        a(f"v_and_b32 v{NP+1}, 0xffff0000, v{XP}")
        a(f"v_lshlrev_b32 v{NP+2}, 16, v{XP+1}")
        a(f"v_and_b32 v{NP+3}, 0xffff0000, v{XP+1}")
        for k in range(4): a(f"v_sub_f32 v{NP+k}, v{NP+k}, v56")
        for k in range(4): self.rnd(NP + k, NP + k)
        for k in range(4): a(f"v_mul_f32 v{NP+k}, v{NP+k}, v57")
        for k in range(4): self.rnd(NP + k, NP + k)
        a(f"""
        v_min_u32 v58, 7, v0
        v_lshlrev_b32 v58, 4, v58
        v_add_u32 v58, 1024, v58
        s_lshr_b32 s96, s{sJ}, 2
        s_mul_i32 s96, s96, 1152
        s_add_u32 s92, s96, {WS_P1}
        s_add_u32 s93, s92, {P1S}
        s_add_u32 s94, s92, {2*P1S}
        s_add_u32 s95, s92, {3*P1S}
        s_add_u32 s96, s92, 4608
        s_add_u32 s97, s93, 4608
        s_add_u32 s98, s94, 4608
        s_add_u32 s99, s95, 4608
        v_and_b32 v59, 3, v0
        v_mul_u32_u24 v59, {2*HD_P}, v59
        v_lshrrev_b32 v57, 2, v0
        v_lshl_add_u32 v59, v57, 2, v59
        """)
        a(f"s_cmp_eq_u32 s{sJ}, 0")
        a("s_cbranch_scc0 L_sv_noinit")
        a(f"""
        s_mul_i32 s30, s{sG}, {self.pstride}
        s_add_u32 s30, s30, {WS_POOL}
        v_mov_b32 v56, 0
        v_mov_b32 v57, 0
        s_mov_b64 exec, 1
        buffer_store_dword v56, v57, {srd(S_WS)}, s30 offen sc1
        s_mov_b64 exec, -1
        """)
        a.label("L_sv_noinit")
        self.stamp(2)
        self.xdelay("L_xd1", 0)
        self.poll_begin("L_p1poll")
        for s in range(4):
            a(f"buffer_load_dwordx4 {vr(G+16*s,4)}, v8, {srd(S_WS)}, s{92+s} offen sc1")
            a(f"buffer_load_dwordx4 {vr(G+16*s+8,4)}, v8, {srd(S_WS)}, s{96+s} offen sc1")
        for s in range(4):
            a(f"buffer_load_dwordx4 {vr(G+16*s+4,4)}, v58, {srd(S_WS)}, s{92+s} offen sc1")
            a(f"buffer_load_dwordx4 {vr(G+16*s+12,4)}, v58, {srd(S_WS)}, s{96+s} offen sc1")
        a("s_waitcnt vmcnt(0)")
        self.tagcheck([G + 2 * k + 1 for k in range(32)], 56, 57)
        self.poll_end("L_p1poll")
        if self.stamps: a(f"v_writelane_b32 v{V_ST}, s{sCNT}, 6")
        self.stamp(3)
        for o in (0, 2, 4, 6, 8, 10, 12, 14):
            a(f"v_add_f32 v{G+o}, v{G+o}, v{G+16+o}")
            a(f"v_add_f32 v{G+32+o}, v{G+32+o}, v{G+48+o}")
        for o in (0, 2, 4, 6, 8, 10, 12, 14):
            a(f"v_add_f32 v{G+o}, v{G+o}, v{G+32+o}")
        for o in (0, 2, 4, 6, 8, 10, 12, 14):
            self.rnd(G + o, G + o)
        pairs = [(0, 0, 8), (1, 2, 10), (2, 4, 12), (3, 6, 14)]
        for k, so, co in pairs: a(f"v_add_f32 v{G+co}, 1.0, v{G+co}")
        for k, so, co in pairs: self.rnd(G + co, G + co)
        for k, so, co in pairs: a(f"v_mul_f32 v{G+co}, v{G+co}, v{NP+k}")
        for k, so, co in pairs: self.rnd(G + co, G + co)
        for k, so, co in pairs: a(f"v_add_f32 v{G+co}, v{G+co}, v{G+so}")
        for k, so, co in pairs: a(f"v_cvt_pk_bf16_f32 v{G+co}, v{G+co}, v{G+co}")
        a(f"v_add_u32 v59, {HD_LDS}, v59")
        a(f"ds_write2_b32 v59, v{G+8}, v{G+10} offset0:0 offset1:{HD_P//4}")
        a("s_mov_b64 exec, 0xff")
        a(f"ds_write2_b32 v59, v{G+12}, v{G+14} offset0:16 offset1:{16 + HD_P//4}")
        a("s_mov_b64 exec, -1")
        a("s_waitcnt lgkmcnt(0)")
        for q in range(5):
            a(f"ds_read_b128 {vr(AV+4*q,4)}, v13 offset:{HD_LDS+16*q}")
        a(f"""
        s_lshl_b32 s92, s{sG}, 2
        s_lshr_b32 s93, s{sJ}, 2
        s_add_u32 s92, s92, s93
        s_lshl_b32 s92, s92, 11
        s_and_b32 s93, s{sJ}, 3
        s_lshl_b32 s93, s93, 9
        s_add_u32 s92, s92, s93
        s_add_u32 s92, s92, {WS_P2}
        s_lshl_b32 s93, s{sG}, 13
        s_add_u32 s93, s93, {WS_P2}
        s_add_u32 s94, s93, 2048
        s_add_u32 s95, s93, 4096
        s_add_u32 s96, s93, 6144
        s_waitcnt lgkmcnt(0)
        """)
        self.gemv(WQ, 18, [AV + t for t in range(18)], ASET, ACC, True)
        self.halfsum(ACC, T4)
        self.publish_f32(ACC, 15, None)
        self.publish_store(15, "s92")
        self.stamp(4)
        self.xdelay("L_xd2", 1)
        self.poll_begin("L_p2poll")
        for kp in range(4):
            for hf in range(2):
                a(f"buffer_load_dwordx4 {vr(G+8*kp+4*hf,4)}, v8, {srd(S_WS)}, s{93+kp} offen offset:{1024*hf} sc1")
        a("s_waitcnt vmcnt(0)")
        self.tagcheck([G + 2 * k + 1 for k in range(16)], 56, 57)
        self.poll_end("L_p2poll")
        if self.stamps: a(f"v_writelane_b32 v{V_ST}, s{sCNT}, 9")
        for o in (0, 2, 4, 6):
            a(f"v_add_f32 v{G+o}, v{G+o}, v{G+8+o}")
            a(f"v_add_f32 v{G+16+o}, v{G+16+o}, v{G+24+o}")
        for o in (0, 2, 4, 6):
            a(f"v_add_f32 v{G+o}, v{G+o}, v{G+16+o}")
        a(f"v_cvt_pk_bf16_f32 v{G}, v{G}, v{G+2}")
        a(f"v_cvt_pk_bf16_f32 v{G+4}, v{G+4}, v{G+6}")
        a(f"ds_write_b32 v2, v{G} offset:{Q_LDS}")
        a(f"ds_write_b32 v2, v{G+4} offset:{Q_LDS+256}")
        if self.dbg:
            a(f"s_lshl_b32 s92, s2, 9")
            a(f"s_add_u32 s92, s92, {WS_DBG + 0x80000}")
            a(f"buffer_store_dword v{G}, v2, {srd(S_WS)}, s92 offen")
            a(f"buffer_store_dword v{G+4}, v2, {srd(S_WS)}, s92 offen offset:256")
        a("s_waitcnt lgkmcnt(0)")
        if self.qflag:
            a("v_mov_b32 v56, 0")
            a("v_mov_b32 v57, 1")
            a(f"ds_write_b32 v56, v57 offset:{QFL_LDS}")
            self.stamp(5)
        else:
            self.stamp(5)
            a("s_barrier")
        a("s_setprio 1")
        a(f"s_cmp_eq_u32 s{sCLS}, 0")
        a.branch("s_cbranch_scc0 L_sv_now")
        self.mk_srd(S_WU, 18, 576 * 4608 * 2)
        self.mk_srd(S_WD, 20, 4608 * 576 * 2)
        a(f"""
        v_mul_u32_u24 v56, 9216, v9
        v_add_u32 v56, v56, v10
        v_mul_u32_u24 v57, 1152, v9
        v_add_u32 v57, v57, v10
        s_lshl_b32 s92, s{sIDX}, 7
        s_add_u32 s92, s92, {3 * 144 * 9216}
        """)
        for t in range(18):
            a(f"buffer_load_dwordx4 {vr(self.GUq(t),4)}, v56, {srd(S_WU)}, s92 offen nt")
            if t < 17: a(f"s_add_u32 s92, s92, {8*9216}")
        a(f"s_mul_i32 s92, s{sIDX}, {64*1152}")
        a(f"s_add_u32 s92, s92, {7*128}")
        a(f"s_add_u32 s93, s92, 128")
        for t in range(8):
            a(f"buffer_load_dwordx4 {vr(self.WDq(t),4)}, v57, {srd(S_WD)}, s92 offen nt")
            a(f"buffer_load_dwordx4 {vr(self.WDXq(t),4)}, v57, {srd(S_WD)}, s93 offen nt")
            if t < 7:
                a(f"s_add_u32 s92, s92, {8*1152}")
                a(f"s_add_u32 s93, s93, {8*1152}")
        a.label("L_sv_now")
        a(f"""
        v_mov_b32 v44, -1
        v_mov_b32 v45, -1
        v_mov_b32 v46, -1
        v_mov_b32 v47, -1
        s_lshl_b32 s30, s2, 10
        s_add_u32 s30, s30, {WS_T1O}
        buffer_store_dwordx4 v[44:47], v8, {srd(S_WS)}, s30 offen sc1
        s_mov_b64 exec, 1
        s_lshl_b32 s30, s2, 4
        s_add_u32 s30, s30, {WS_T1ML}
        buffer_store_dwordx4 v[44:47], v8, {srd(S_WS)}, s30 offen sc1
        s_mov_b64 exec, -1
        s_cmp_eq_u32 s{sCLS}, 1
        s_cbranch_scc1 L_sv_clr_done
        s_cmp_eq_u32 s{sCLS}, 0
        s_cbranch_scc1 L_sv_clr_ffn
        s_mul_i32 s30, s{sG}, 2304
        s_lshl_b32 s92, s{sIDX}, 8
        s_add_u32 s30, s30, s92
        s_add_u32 s30, s30, {WS_T2}
        s_mov_b64 exec, 0xffff
        buffer_store_dwordx4 v[44:47], v8, {srd(S_WS)}, s30 offen sc1
        s_mov_b64 exec, -1
        s_branch L_sv_clr_done
        """)
        a.label("L_sv_clr_ffn")
        a(f"""
        s_mul_i32 s30, s{sIDX}, 2304
        s_add_u32 s30, s30, {WS_T3}
        buffer_store_dwordx4 v[44:47], v8, {srd(S_WS)}, s30 offen sc1
        buffer_store_dwordx4 v[44:47], v8, {srd(S_WS)}, s30 offen offset:1024 sc1
        s_mov_b64 exec, 0xffff
        buffer_store_dwordx4 v[44:47], v8, {srd(S_WS)}, s30 offen offset:2048 sc1
        s_mov_b64 exec, -1
        """)
        a.label("L_sv_clr_done")
        a(f"""
        s_waitcnt vmcnt(0)
        v_mov_b32 v44, s{sTAG}
        s_lshl_b32 s30, s2, 2
        s_add_u32 s30, s30, {WS_HELLO}
        v_mov_b32 v45, 0
        s_mov_b64 exec, 1
        buffer_store_dword v44, v45, {srd(S_WS)}, s30 offen sc1
        s_mov_b64 exec, -1
        """)
        self.mk_srd(S_WD, 20, 4608 * 576 * 2)
        self.mk_srd(S_OUT, 26, 1152)
        self.stamp(8)
        a(f"s_cmp_lg_u32 s{sCLS}, 1")
        a.branch("s_cbranch_scc1 L_broker")
        a(f"s_cmp_lt_u32 s{sIDX}, 36")
        a.branch("s_cbranch_scc0 L_broker")
        a(f"""
        v_and_b32 v56, 31, v0
        v_lshlrev_b32 v57, 3, v56
        v_lshlrev_b32 v56, 4, v56
        s_lshl_b32 s92, s{sIDX}, 9
        s_add_u32 s92, s92, {WS_P1 + 1152 * 8}
        s_add_u32 s93, s92, {P1S}
        s_add_u32 s94, s92, {2 * P1S}
        s_add_u32 s95, s92, {3 * P1S}
        """)
        self.poll_begin("L_p3bpoll")
        for k in range(4):
            a(f"buffer_load_dwordx4 {vr(64+4*k,4)}, v56, {srd(S_WS)}, s{92+k} offen sc1")
        a("s_waitcnt vmcnt(0)")
        self.tagcheck([64 + 2 * k + 1 for k in range(8)], 58, 59)
        self.poll_end("L_p3bpoll")
        a(f"""
        v_add_f32 v64, v64, v68
        v_add_f32 v72, v72, v76
        v_add_f32 v66, v66, v70
        v_add_f32 v74, v74, v78
        v_add_f32 v64, v64, v72
        v_add_f32 v66, v66, v74
        v_cvt_pk_bf16_f32 v64, v64, v66
        v_mov_b32 v65, s{sTAG}
        s_lshl_b32 s30, s{sIDX}, 8
        s_add_u32 s30, s30, {WS_P3}
        s_mov_b64 exec, 0xffffffff
        buffer_store_dwordx2 v[64:65], v57, {srd(S_WS)}, s30 offen sc1
        s_mov_b64 exec, -1
        """)
        self.stamp(12)
        a.branch("s_branch L_broker")
        self.broker()
        a(f"s_cmp_eq_u32 s{sCLS}, 1")
        a.branch("s_cbranch_scc1 L_sv_b1")
        a.label("L_sv_hello")
        a(f"s_mov_b32 s30, {WS_HELLO}")
        self.poll_begin("L_hpoll")
        a(f"buffer_load_dwordx4 v[48:51], v8, {srd(S_WS)}, s30 offen sc1")
        a("s_waitcnt vmcnt(0)")
        self.tagcheck([48, 49, 50, 51], 58, 59)
        self.poll_end("L_hpoll")
        a("v_mov_b32 v58, 0")
        a("v_mov_b32 v59, 1")
        a(f"ds_write_b32 v58, v59 offset:{HFL_LDS}")
        a.label("L_sv_b1")
        self.stamp(14)

    def pool_map(self, dst, p, t0):
        a = self.a
        a(f"""
        v_bfe_u32 v{dst}, v{p}, 2, 4
        v_lshlrev_b32 v{dst}, 19, v{dst}
        v_lshrrev_b32 v{t0}, 6, v{p}
        v_lshlrev_b32 v{t0}, 2, v{t0}
        v_and_or_b32 v{t0}, v{p}, 3, v{t0}
        v_add_u32 v{t0}, {self.NS}, v{t0}
        v_lshl_add_u32 v{dst}, v{t0}, 12, v{dst}
        v_or_b32 v{dst}, 1, v{dst}
        """)

    def tab_init(self):
        a = self.a
        a("""
        v_mov_b32 v56, 0
        v_mov_b32 v57, 0
        v_mov_b32 v58, 0
        v_mov_b32 v59, 0
        """)
        n = (self.P + 64 + 255) // 256
        for k in range(n):
            a(f"ds_write_b128 v8, v[56:59] offset:{TAB_LDS + 1024 * k}")

    def broker(self):
        a = self.a
        N, D, X, NS, P = self.BN, self.BD, self.BX, self.NS, self.P
        PL = 16
        a.label("L_broker")
        a(f"""
        s_mul_i32 s{sPOOL}, s{sG}, {self.pstride}
        s_add_u32 s{sPOOL}, s{sPOOL}, {WS_POOL}
        v_mov_b32 v57, 0
        s_mov_b32 s{sREQ}, {NS - X}
        s_mov_b32 s{sFILL}, 0
        s_mov_b32 s{sQ2}, {P}
        s_cmp_eq_u32 s{sCLS}, 0
        s_cselect_b32 s{sQ2}, {min(self.QF, P)}, s{sQ2}
        s_cbranch_scc0 L_bk_nq3
        s_and_b32 s92, s{sIDX}, 7
        s_cmp_eq_u32 s92, 3
        s_cselect_b32 s{sQ2}, {min(self.QF3, P)}, s{sQ2}
        L_bk_nq3:
        s_waitcnt vmcnt(0)
        """)
        def trig(name):
            a(f"s_mov_b32 s{sCNT}, {SPIN * 4}")
            a.label(name)
            a(f"ds_read_b32 v58, v57 offset:{CTR_LDS}")
            a("s_waitcnt lgkmcnt(0)")
            a(f"v_readfirstlane_b32 s{sBC}, v58")
            a(f"s_cmp_gt_u32 s{sBC}, s{sREQ}")
            a(f"s_cbranch_scc1 {name}_ok")
            a(f"s_sub_u32 s{sCNT}, s{sCNT}, 1")
            a(f"s_cmp_lg_u32 s{sCNT}, 0")
            a.branch(f"s_cbranch_scc1 {name}")
            a.label(name + "_ok")
        def req(d):
            a("s_mov_b64 exec, 1")
            a(f"v_mov_b32 v{PL+d}, {N}")
            a(f"buffer_atomic_add v{PL+d}, v57, {srd(S_WS)}, s{sPOOL} offen {self.atom_flags}")
            a("s_mov_b64 exec, -1")
            a(f"s_add_u32 s{sREQ}, s{sREQ}, {N}")
        def fill(d):
            a(f"v_readfirstlane_b32 s92, v{PL+d}")
            a(f"s_min_u32 s92, s92, {P}")
            a(f"s_sub_u32 s93, {P}, s92")
            a(f"s_min_u32 s93, s93, {N}")
            a(f"v_add_u32 v59, s92, v0")
            self.pool_map(60, 59, 61)
            a(f"s_lshl_b32 s94, s{sFILL}, 2")
            a(f"v_add_u32 v59, s94, v2")
            a(f"v_cmp_gt_u32 vcc, s93, v0")
            a(f"s_and_b64 exec, vcc, -1")
            a(f"ds_write_b32 v59, v60 offset:{TAB_LDS}")
            a("s_mov_b64 exec, -1")
            a(f"s_add_u32 s{sFILL}, s{sFILL}, s93")
            a(f"v_mov_b32 v{PL+d}, {P}")
            a(f"s_add_u32 s92, s92, {N}")
            a(f"s_cmp_ge_u32 s92, s{sQ2}")
        trig("L_bk_w0")
        self.stamp(10)
        for d in range(D - 1): req(d)
        a.label("L_bk_loop")
        for d in range(D):
            trig(f"L_bk_t{d}")
            req((d + D - 1) % D)
            a(f"s_waitcnt vmcnt({D - 1})")
            fill(d)
            a.branch("s_cbranch_scc1 L_bk_drain")
        a.branch("s_branch L_bk_loop")
        a.label("L_bk_drain")
        a("s_waitcnt vmcnt(0)")
        for d in range(D): fill(d)
        a(f"""
        s_lshl_b32 s94, s{sFILL}, 2
        v_add_u32 v59, s94, v2
        v_mov_b32 v60, {STOP:#x}
        ds_write_b32 v59, v60 offset:{TAB_LDS}
        """)
        self.stamp(11)

    def publish_f32(self, ACC, vaddr, _):
        a = self.a
        for r in range(4):
            a(f"v_mov_b32 v{240+2*r}, v{ACC+r}")
            a(f"v_mov_b32 v{241+2*r}, s{sTAG}")

    def publish_store(self, vaddr, soff):
        a = self.a
        a(f"""
        s_mov_b32 s30, 0x00ff00ff
        s_mov_b32 s31, 0
        s_mov_b64 exec, s[30:31]
        buffer_store_dwordx4 v[240:243], v{vaddr}, {srd(S_WS)}, {soff} offen sc1
        buffer_store_dwordx4 v[244:247], v{vaddr}, {srd(S_WS)}, {soff} offen offset:16 sc1
        s_mov_b64 exec, -1
        """)

    def tail_service(self):
        a = self.a
        PRL = [92, 124, 156, 188, 220, 252, 144]
        a(f"""
        s_setprio 3
        v_lshrrev_b32 v1, 5, v0
        v_lshlrev_b32 v1, 5, v1
        s_lshl_b32 s92, s2, 10
        s_add_u32 s92, s92, {WS_T1O}
        s_lshl_b32 s93, s2, 4
        s_add_u32 s93, s93, {WS_T1ML}
        v_lshrrev_b32 v2, 5, v0
        v_lshlrev_b32 v2, 3, v2
        v_mov_b32 v3, 0
        s_waitcnt vmcnt(0) lgkmcnt(0)
        s_cmp_eq_u32 s{sCLS}, 0
        s_cbranch_scc1 L_ts_arr
        s_barrier
        s_branch L_ts_go
        """)
        a.label("L_ts_arr")
        self.lds_spin("L_arr", ARR_LDS, 7, 3, 9, 30)
        a.label("L_ts_go")
        a(f"""
        ds_read_b128 v[16:19], v1 offset:{ML_LDS}
        ds_read_b128 v[20:23], v1 offset:{ML_LDS+16}
        ds_read_b128 v[24:27], v1 offset:{ML_LDS+64}
        ds_read_b128 v[28:31], v1 offset:{ML_LDS+80}
        """)
        for w in range(7):
            a(f"ds_read_b128 {vr(PRL[w],4)}, v8 offset:{PART_LDS+1024*w}")
        self.stamp(7)
        a("s_waitcnt lgkmcnt(9)")
        a("v_max3_f32 v32, v16, v17, v18")
        a("v_max3_f32 v32, v32, v19, v20")
        a("v_max3_f32 v32, v32, v21, v22")
        for w in range(7):
            a(f"v_sub_f32 v{16+w}, v{16+w}, v32")
        for w in range(7):
            a(f"v_exp_f32 v{16+w}, v{16+w}")
        a("s_waitcnt lgkmcnt(7)")
        a("v_mul_f32 v33, v16, v24")
        for w in range(1, 7):
            a(f"v_fmac_f32 v33, v{16+w}, v{24+w}")
        for w in range(7):
            a(f"s_waitcnt lgkmcnt({6-w})")
            for r in range(4):
                if w == 0:
                    a(f"v_mul_f32 v{36+r}, v16, v{PRL[0]+r}")
                else:
                    a(f"v_fmac_f32 v{36+r}, v{16+w}, v{PRL[w]+r}")
        a(f"buffer_store_dwordx4 v[36:39], v8, {srd(S_WS)}, s92 offen sc1")
        a(f"""
        s_mov_b32 s30, 1
        s_mov_b32 s31, 1
        s_mov_b64 exec, s[30:31]
        buffer_store_dwordx2 v[32:33], v2, {srd(S_WS)}, s93 offen sc1
        s_mov_b64 exec, -1
        """)
        self.stamp(15)
        a(f"s_cmp_eq_u32 s{sCLS}, 2")
        a.branch("s_cbranch_scc1 L_wo_mm")
        a(f"s_cmp_eq_u32 s{sCLS}, 1")
        a.branch("s_cbranch_scc1 L_fin")
        if self.npre is not None: a("s_barrier")
        self.ffn_addr()
        a.branch("s_branch L_ffn_post")

    def build(self):
        a = self.a
        self.prologue()
        self.streaming()
        self.wo_tail()
        self.ffn_tail()
        self.service()
        self.tail_service()
        a.label("L_end")
        a("s_endpgm")
        return a.text()


def main():
    ap = argparse.ArgumentParser()
    ap.add_argument("-o", default="main3.s")
    ap.add_argument("--R", type=int, default=6)
    ap.add_argument("--pace", type=int, default=4)
    ap.add_argument("--loopgrp", type=int, default=8)
    ap.add_argument("--prowait", type=int, default=2)
    ap.add_argument("--progrp", type=int, default=4)
    ap.add_argument("--dmawait", type=int, default=32)
    ap.add_argument("--NS", type=int, default=112)
    ap.add_argument("--QF", type=int, default=200)
    ap.add_argument("--S", type=int, default=1)
    ap.add_argument("--BN", type=int, default=4)
    ap.add_argument("--BD", type=int, default=4)
    ap.add_argument("--BX", type=int, default=16)
    ap.add_argument("--wdrain", type=int, default=0)
    ap.add_argument("--binitlate", action="store_true")
    ap.add_argument("--pdelay", type=str, default="")
    ap.add_argument("--npre", type=int, default=-1)
    ap.add_argument("--QF3", type=int, default=-1)
    ap.add_argument("--wodrain", type=int, default=0)
    ap.add_argument("--strip", action="store_true")
    ap.add_argument("--nobinit", action="store_true")
    ap.add_argument("--trace", action="store_true")
    ap.add_argument("--noqflag", action="store_true")
    ap.add_argument("--rot", action="store_true")
    ap.add_argument("--not2gate", action="store_true")
    ap.add_argument("--pstride", type=int, default=256)
    ap.add_argument("--aflags", type=str, default="sc0")
    ap.add_argument("--stamps", action="store_true")
    ap.add_argument("--dbg", action="store_true")
    args = ap.parse_args()
    assert args.NS - args.BX > 7 * args.R
    assert args.pace + args.loopgrp <= 12 and args.prowait + args.progrp <= 12
    g = Gen(R=args.R, pace=args.pace, pro_wait=args.prowait, pro_grp=args.progrp, stamps=args.stamps, dbg=args.dbg,
            NS=args.NS, QF=args.QF, S=args.S, BN=args.BN, BD=args.BD, BX=args.BX, dma_wait=args.dmawait)
    g.loop_grp = args.loopgrp
    g.strip = args.strip
    g.QF3 = args.QF3 if args.QF3 >= 0 else args.QF
    g.npre = args.npre if args.npre >= 0 else None
    assert g.npre is None or g.npre < 26 - 6 * args.wdrain
    g.pdelay = [int(x) for x in args.pdelay.split(",")] if args.pdelay else None
    g.binit_late = args.binitlate
    g.wdrain = args.wdrain; g.wodrain = args.wodrain
    assert args.wdrain in (0, 1, 2, 3, 4) and args.wodrain in (0, 2, 4, 8) and args.R == 6
    g.binit = not args.nobinit
    g.trace = args.trace
    g.qflag = not args.noqflag
    assert g.binit or not g.qflag
    g.rot = args.rot
    g.t2gate = not args.not2gate
    g.pstride = args.pstride
    g.atom_flags = args.aflags
    body = g.build()
    nv = 64 + 32 * args.R
    txt = wrap_single(body, 256, 512, LDS_SIZE, max(nv, 256))
    open(args.o, "w").write(txt)
    print(f"wrote {args.o}: {len(txt)} bytes, lds {LDS_SIZE}, nops {g.a.nops_inserted}")

if __name__ == "__main__":
    main()
```

```python
import sys, argparse, struct
from asmlib import *

WS_EPOCH = 0x0
WS_HELLO = 0x400
WS_P1 = 0x1000
P1S = 3456 * 8
WS_P3 = 0x1C000
WS_T1ML = 0x1F000
WS_T2 = 0x20000
WS_P2 = 0x30000
WS_T1O = 0x50000
WS_T3 = 0x90000
WS_POOL = 0xC0000
WS_DBG = 0x100000
WS_SIZE = 0x200000
WS_STAMP = 0x10000000

Q_LDS = 0x0000
O_LDS = 0x0200
ST_LDS = 0x0A00
CTR_LDS = 0x0A20
ARR_LDS = 0x0A24
HFL_LDS = 0x0A28
QFL_LDS = 0x0A2C
DFL_LDS = 0x0A30
ML_LDS = 0x0A40
HD_LDS = 0x0D00
HD_P = 80
X1_LDS = 0x1700
PART_LDS = 0x2400
IMG_LDS = 0x4000
HD2_LDS = 0x4000
PX_LDS = 0x5000
TAB_LDS = 0xC000
LDS_SIZE = 0xD000
STOP = 0x80000000

LOG2E = 0x3FB8AA3B
SCALE = 0x3DB504F3
SPIN = 50000

S_K, S_V, S_WS, S_X, S_C, S_WMOD, S_WQ, S_WO, S_WG, S_WU, S_WD, S_OUT = [32 + 4 * i for i in range(12)]
sTAG, sWAVE, sOFF, sCNT = 80, 81, 82, 83
sSCALE, sLOG2E, sG, sJ, sCLS, sIDX, sPA = 84, 86, 87, 88, 89, 90, 91
sP = 3
sST, sPEND, sQ, sPOOL, sGUB, sWDB, sOOB, sHOME, sLIM, sSPIN = 48, 49, 50, 51, 52, 53, 54, 55, 56, 57
sLANE = 58
sSKIP = 51
sMODE = 59
sDMN = 50
sREQ, sFILL, sBC, sQ2 = 48, 49, 50, 52
V_ST = 62


def srd(s):
    return f"s[{s}:{s+3}]"

def vr(b, n):
    return f"v[{b}:{b+n-1}]"

def f32(x):
    return hex(struct.unpack("<I", struct.pack("<f", x))[0])


class Gen:
    def __init__(self, R=6, pace=4, pro_wait=2, pro_grp=4, stamps=False, dbg=False,
                 NS=112, QF=200, S=1, BN=4, BD=4, BX=16, dma_wait=32):
        self.a = Asm()
        self.R = R; self.pace = pace; self.pro_wait = pro_wait; self.pro_grp = pro_grp
        self.stamps = stamps; self.dbg = dbg
        self.NS = NS; self.QF = QF; self.S = S; self.BN = BN; self.BD = BD; self.BX = BX; self.dma_wait = dma_wait
        self.T = 128 - NS; assert self.T % 4 == 0
        self.P = 16 * self.T
        assert self.P + 64 <= 1024 and BD <= 8

    def mk_srd(self, s, plo, size, add=None):
        a = self.a
        if add is None:
            a(f"s_mov_b32 s{s}, s{plo}")
            a(f"s_and_b32 s{s+1}, s{plo+1}, 0xffff")
        else:
            a(f"s_add_u32 s{s}, s{plo}, {add}")
            a(f"s_addc_u32 s{s+1}, s{plo+1}, 0")
            a(f"s_and_b32 s{s+1}, s{s+1}, 0xffff")
        a(f"s_mov_b32 s{s+2}, {size}")
        a(f"s_mov_b32 s{s+3}, 0x20000")

    def rnd(self, d, s):
        self.a(f"v_cvt_pk_bf16_f32 v{d}, 0, v{s}")

    def stamp(self, k):
        if not self.stamps: return
        a = self.a
        a("s_memrealtime s[100:101]")
        a("s_waitcnt lgkmcnt(0)")
        a(f"v_writelane_b32 v{V_ST}, s100, {k}")

    def stamp_flush(self):
        if not self.stamps: return
        a = self.a
        a(f"""
        s_mov_b64 exec, {-1 if self.trace else 0xffff}
        s_lshl_b32 s92, s2, 3
        s_add_u32 s92, s92, s{sWAVE}
        s_lshl_b32 s92, s92, {9 if self.trace else 7}
        s_add_u32 s92, s92, {WS_STAMP}
        s_add_u32 s92, s28, s92
        s_addc_u32 s93, s29, 0
        v_lshlrev_b32 v60, 3, v0
        v_mov_b32 v{V_ST+1}, 0
        global_store_dwordx2 v60, v[{V_ST}:{V_ST+1}], s[92:93]
        s_mov_b64 exec, -1
        """)

    def row_allreduce(self, op, regs, shifts=(8, 4, 2, 1)):
        a = self.a
        for sh in shifts:
            for r in regs:
                a(f"v_{op}_f32_dpp v{r}, v{r}, v{r} row_ror:{sh} row_mask:0xf bank_mask:0xf")

    def cross_rows(self, op, regs, tmps):
        a = self.a
        for sw in ("16", "32"):
            for r, t in zip(regs, tmps):
                a(f"v_mov_b32 v{t}, v{r}")
            for r, t in zip(regs, tmps):
                a(f"v_permlane{sw}_swap_b32 v{r}, v{t}")
            for r, t in zip(regs, tmps):
                a(f"v_{op}_f32 v{r}, v{r}, v{t}")

    def poll_begin(self, name):
        a = self.a
        a(f"s_mov_b32 s{sCNT}, {SPIN}")
        a.label(name)

    def poll_end(self, name):
        a = self.a
        ok = name + "_ok"
        a(f"s_cbranch_vccz {ok}")
        a(f"s_sub_u32 s{sCNT}, s{sCNT}, 1")
        a(f"s_cmp_lg_u32 s{sCNT}, 0")
        a.branch(f"s_cbranch_scc1 {name}")
        a.label(ok)

    def inc_poll(self, name, units, sm, after_wait=None):
        a = self.a
        n = len(units)
        a(f"s_mov_b32 s{sm}, {(1 << n) - 1}")
        a(f"s_mov_b32 s{sCNT}, {SPIN}")
        a.label(name)
        for u, (ld, ck, ov) in enumerate(units):
            a(f"s_bitcmp1_b32 s{sm}, {u}")
            a(f"s_cbranch_scc0 {name}_l{u}")
            ld()
            a.label(f"{name}_l{u}", fence=False)
        a("s_waitcnt vmcnt(0)")
        if after_wait: after_wait()
        for u, (ld, ck, ov) in enumerate(units):
            a(f"s_bitcmp1_b32 s{sm}, {u}")
            a(f"s_cbranch_scc0 {name}_c{u}")
            ck()
            a.branch(f"s_cbranch_vccnz {name}_c{u}")
            a(f"s_bitset0_b32 s{sm}, {u}")
            if ov: ov()
            a.label(f"{name}_c{u}")
        a(f"s_cmp_eq_u32 s{sm}, 0")
        a(f"s_cbranch_scc1 {name}_ok")
        a(f"s_sub_u32 s{sCNT}, s{sCNT}, 1")
        a(f"s_cmp_lg_u32 s{sCNT}, 0")
        a.branch(f"s_cbranch_scc1 {name}")
        a.label(name + "_ok")

    def lds_spin(self, name, off, val, vaddr, vt, st):
        a = self.a
        a(f"s_mov_b32 s{sCNT}, {SPIN * 4}")
        a.label(name)
        a(f"ds_read_b32 v{vt}, v{vaddr} offset:{off}")
        a("s_waitcnt lgkmcnt(0)")
        a(f"v_readfirstlane_b32 s{st}, v{vt}")
        a(f"s_cmp_eq_u32 s{st}, {val}")
        a(f"s_cbranch_scc1 {name}_ok")
        a(f"s_sub_u32 s{sCNT}, s{sCNT}, 1")
        a(f"s_cmp_lg_u32 s{sCNT}, 0")
        a.branch(f"s_cbranch_scc1 {name}")
        a.label(name + "_ok")

    def tagcheck(self, regs, t0, t1):
        a = self.a
        assert len(regs) % 2 == 0
        a(f"v_max_u32 v{t0}, v{regs[0]}, v{regs[1]}")
        a(f"v_min_u32 v{t1}, v{regs[0]}, v{regs[1]}")
        for k in range(2, len(regs), 2):
            a(f"v_max3_u32 v{t0}, v{t0}, v{regs[k]}, v{regs[k+1]}")
            a(f"v_min3_u32 v{t1}, v{t1}, v{regs[k]}, v{regs[k+1]}")
        a(f"v_xor_b32 v{t0}, s{sTAG}, v{t0}")
        a(f"v_xor_b32 v{t1}, s{sTAG}, v{t1}")
        a(f"v_or_b32 v{t0}, v{t0}, v{t1}")
        a(f"v_cmp_ne_u32 vcc, 0, v{t0}")

    def ln_finish(self, mean, var):
        a = self.a
        self.rnd(mean, mean)
        self.rnd(var, var)
        a(f"v_add_f32 v{var}, {f32(1e-5)}, v{var}")
        self.rnd(var, var)
        a(f"v_sqrt_f32 v{var}, v{var}")
        self.rnd(var, var)
        a(f"v_rcp_f32 v{var}, v{var}")

    vMK = 4

    def mk_masks(self, t0, t1, t2):
        a = self.a
        a(f"""
        v_and_b32 v{t2}, 1, v0
        v_mov_b32 v{t0}, 0xffff
        v_mov_b32 v{t1}, 0xffff0000
        v_cmp_eq_u32 vcc, 1, v{t2}
        v_cndmask_b32 v{t0}, v{t0}, v{t1}, vcc
        v_bfe_u32 v{t2}, v0, 1, 2
        """)
        for d in range(4):
            a(f"v_cmp_eq_u32 vcc, {d}, v{t2}")
            a(f"v_cndmask_b32 v{self.vMK+d}, 0, v{t0}, vcc")

    def mk_sub(self, d, t):
        a = self.a
        a(f"v_bfe_u32 v{d}, v0, 3, 1")
        a(f"v_lshrrev_b32 v{t}, 4, v0")
        a(f"v_lshl_add_u32 v{d}, v{d}, 2, v{t}")

    def gemv(self, W, n, AV, ASET, ACC, first, waits=None):
        a = self.a
        def build(t):
            s = ASET + 4 * (t & 1)
            for d in range(4):
                a(f"v_and_b32 v{s+d}, v{AV[t]}, v{self.vMK+d}")
        build(0)
        for t in range(n):
            if t + 1 < n: build(t + 1)
            if waits and t in waits: a(waits[t])
            s = ASET + 4 * (t & 1)
            c = "0" if (first and t == 0) else vr(ACC, 4)
            wr = W[t] if isinstance(W, (list, tuple)) else W + 4 * t
            a(f"v_mfma_f32_16x16x32_bf16 {vr(ACC,4)}, {vr(s,4)}, {vr(wr,4)}, {c}")

    def halfsum(self, ACC, T):
        a = self.a
        for r in range(4): a(f"v_mov_b32 v{T+r}, v{ACC+r}")
        for r in range(4): a(f"v_permlane32_swap_b32 v{ACC+r}, v{T+r}")
        for r in range(4): a(f"v_add_f32_dpp v{ACC+r}, v{T+r}, v{ACC+r} row_ror:8 row_mask:0xf bank_mask:0xf")

    def silu(self, c, o, t0, t1):
        a = self.a
        a(f"v_mul_f32 v{o}, s{sLOG2E}, v{c}")
        a(f"v_exp_f32 v{o}, -v{o}")
        a(f"v_add_f32 v{o}, 1.0, v{o}")
        a(f"v_rcp_f32 v{t0}, v{o}")
        a(f"v_mul_f32 v{t1}, v{t0}, v{c}")
        a(f"v_fma_f32 v{o}, -v{t1}, v{o}, v{c}")
        a(f"v_fma_f32 v{o}, v{o}, v{t0}, v{t1}")
        a(f"v_cvt_pk_bf16_f32 v{o}, v{o}, v{o}")

    def prologue(self):
        a = self.a
        if self.stamps: a("s_memrealtime s[98:99]")
        a(f"""
        s_cmp_ge_u32 s2, 256
        s_cbranch_scc1 L_end
        s_load_dwordx16 s[4:19], s[0:1], 0
        s_load_dwordx8 s[20:27], s[0:1], 64
        s_load_dwordx2 s[28:29], s[0:1], 104
        v_lshrrev_b32 v1, 6, v0
        v_and_b32 v0, 63, v0
        v_readfirstlane_b32 s{sWAVE}, v1
        """)
        if self.S == 1:
            a("""
            s_and_b32 s92, s2, 7
            s_lshr_b32 s93, s2, 3
            s_lshl_b32 s92, s92, 5
            s_or_b32 s2, s92, s93
            """)
        elif self.S == 2:
            a("""
            s_bfe_u32 s92, s2, 0x20001
            s_lshl_b32 s92, s92, 6
            s_bfe_u32 s93, s2, 0x20006
            s_lshl_b32 s93, s93, 4
            s_or_b32 s92, s92, s93
            s_and_b32 s93, s2, 1
            s_lshl_b32 s93, s93, 3
            s_or_b32 s92, s92, s93
            s_bfe_u32 s93, s2, 0x30003
            s_or_b32 s2, s92, s93
            """)
        elif self.S == 4:
            a("""
            s_bfe_u32 s92, s2, 0x10002
            s_lshl_b32 s92, s92, 7
            s_bfe_u32 s93, s2, 0x30005
            s_lshl_b32 s93, s93, 4
            s_or_b32 s92, s92, s93
            s_and_b32 s93, s2, 3
            s_lshl_b32 s93, s93, 2
            s_or_b32 s92, s92, s93
            s_bfe_u32 s93, s2, 0x20003
            s_or_b32 s2, s92, s93
            """)
        if self.rot:
            a("""
            s_lshr_b32 s92, s2, 4
            s_add_u32 s92, s92, s2
            s_and_b32 s92, s92, 15
            s_and_b32 s2, s2, 0xf0
            s_or_b32 s2, s2, s92
            """)
        a(f"""
        s_lshr_b32 s{sG}, s2, 4
        s_and_b32 s{sJ}, s2, 15
        s_and_b32 s{sP}, s{sG}, 1
        s_sub_u32 s92, 5, s{sP}
        s_sub_i32 s93, s{sJ}, 7
        s_max_i32 s93, s93, 0
        s_mov_b32 s{sLOG2E}, {LOG2E:#x}
        """)
        a(f"""
        s_mul_i32 s94, s{sG}, 14
        s_add_u32 s94, s94, s{sJ}
        s_sub_u32 s94, s94, 2
        s_cmp_lt_u32 s{sJ}, 2
        s_cselect_b32 s94, -1, s94
        s_cmp_lt_u32 s94, 216
        s_cselect_b32 s{sPA}, s94, -1
        s_mov_b32 s{sCLS}, 2
        s_mov_b32 s{sIDX}, s93
        s_cmp_lt_u32 s{sJ}, 7
        s_cbranch_scc0 L_cls_done
        s_lshr_b32 s95, s{sG}, 1
        s_cmp_lt_u32 s{sJ}, s92
        s_cbranch_scc0 L_cls_mid
        s_mov_b32 s{sCLS}, 0
        s_xor_b32 s{sIDX}, s{sG}, {1 if self.fswap else 0}
        s_lshl_b32 s{sIDX}, s{sIDX}, 2
        s_add_u32 s{sIDX}, s{sIDX}, s{sJ}
        s_add_u32 s95, s95, 64
        s_cmp_eq_u32 s{sJ}, 4
        s_cselect_b32 s{sIDX}, s95, s{sIDX}
        s_branch L_cls_done
        """)
        a.label("L_cls_mid", fence=False)
        a(f"""
        s_mov_b32 s{sCLS}, 1
        s_mul_i32 s96, s95, 3
        s_add_u32 s96, s96, s{sJ}
        s_sub_u32 s96, s96, 4
        s_lshl_b32 s97, s95, 1
        s_add_u32 s97, s97, s{sJ}
        s_add_u32 s97, s97, 19
        s_cmp_eq_u32 s{sP}, 1
        s_cselect_b32 s{sIDX}, s96, s97
        """)
        a.label("L_cls_done", fence=False)
        if self.stamps:
            a(f"v_mov_b32 v{V_ST}, 0")
            a("s_waitcnt lgkmcnt(0)")
            a(f"v_writelane_b32 v{V_ST}, s98, 13")
            self.stamp(6) if False else None
        a(f"""
        s_cmp_eq_u32 s{sWAVE}, 7
        s_cbranch_scc1 L_service
        """)

    vK, vV = 1, 2
    vL = 8
    vM = 10
    vA = 12
    vS = 16
    vO = 20
    vB = 24
    vP = 32
    vT = 36
    vQ = 44
    RING = 64

    def kreg(self, slot): return self.RING + 32 * slot
    def vreg(self, slot): return self.RING + 32 * slot + 16

    def issue(self, slot, grp=8, wait=None, step=True):
        a = self.a
        k = self.kreg(slot); v = self.vreg(slot)
        n = 0
        for i in range(4):
            if wait is not None and n % grp == 0: a(f"s_waitcnt vmcnt({wait})")
            a(f"buffer_load_dwordx4 {vr(k+4*i,4)}, v{self.vK}, {srd(S_K)}, s{sOFF} offen offset:{64*i} nt")
            n += 1
        for i in range(4):
            if wait is not None and n % grp == 0: a(f"s_waitcnt vmcnt({wait})")
            a(f"buffer_load_dwordx4 {vr(v+4*i,4)}, v{self.vV}, {srd(S_V)}, s{sOFF} offen offset:{256*i} nt")
            n += 1
        if step: a(f"s_add_u32 s{sOFF}, s{sOFF}, {7*4096}")

    def block(self, slot, wk, wv):
        a = self.a
        k = self.kreg(slot); v = self.vreg(slot)
        S = self.vS; O = self.vO; P = self.vP; T = self.vT; M = self.vM; A = self.vA; L = self.vL
        if self.dist:
            a("s_mov_b64 exec, 1")
            a(f"ds_add_rtn_u32 v{self.vTK}, v{self.vZ}, v{self.vOne} offset:{CTR_LDS}")
            a("s_mov_b64 exec, -1")
            a(f"s_cmp_le_u32 s{sCNT}, {self.dist - 1}")
        else:
            a("s_mov_b64 exec, 1")
            a(f"ds_add_rtn_u32 v{self.vTK}, v{self.vZ}, v{self.vOne} offset:{CTR_LDS}")
            a("s_mov_b64 exec, -1")
            a(f"s_cmp_le_u32 s{sCNT}, 2")
        a.branch(f"s_cbranch_scc1 L_dw_{slot}")
        a.label(f"L_dwb_{slot}", fence=False)
        a(f"s_waitcnt vmcnt({wk})")
        if self.strip:
            for i in range(4):
                a(f"v_mfma_f32_16x16x32_bf16 {vr(S,4)}, {vr(k+4*i,4)}, {vr(self.vQ+4*i,4)}, {vr(S,4)}")
            a(f"s_waitcnt vmcnt({wv})")
            for r in range(4):
                a(f"v_mfma_f32_16x16x32_bf16 {vr(O,4)}, {vr(v+4*r,4)}, {vr(self.vB,4)}, {vr(O,4)}")
        else:
            self.block_compute(slot, wk, wv)
        self.block_end(slot)

    strip = False
    qflag = True
    rot = False
    t2gate = True
    trace = False
    binit = True
    pstride = 256
    atom_flags = 'sc0'
    def block_compute(self, slot, wk, wv):
        a = self.a
        k = self.kreg(slot); v = self.vreg(slot)
        S = self.vS; O = self.vO; P = self.vP; T = self.vT; M = self.vM; A = self.vA; L = self.vL
        a(f"v_mfma_f32_16x16x32_bf16 {vr(S,4)}, {vr(k,4)}, {vr(self.vQ,4)}, 0")
        for i in range(1, 4):
            a(f"v_mfma_f32_16x16x32_bf16 {vr(S,4)}, {vr(k+4*i,4)}, {vr(self.vQ+4*i,4)}, {vr(S,4)}")
        for r in range(4):
            self.rnd(S + r, S + r)
        a(f"v_pk_mul_f32 {vr(S,2)}, {vr(S,2)}, s[{sSCALE}:{sSCALE+1}]")
        a(f"v_pk_mul_f32 {vr(S+2,2)}, {vr(S+2,2)}, s[{sSCALE}:{sSCALE+1}]")
        for r in range(4):
            self.rnd(S + r, S + r)
        a(f"v_max3_f32 v{T}, v{S}, v{S+1}, v{S+2}")
        a(f"v_max_f32 v{T}, v{T}, v{S+3}")
        self.cross_rows("max", [T], [T + 1])
        a(f"v_mul_f32 v{T}, s{sLOG2E}, v{T}")
        a(f"v_max_f32 v{T}, v{M}, v{T}")
        a(f"v_sub_f32 v{A}, v{M}, v{T}")
        a(f"v_exp_f32 v{A}, v{A}")
        a(f"v_mov_b32 v{M}, v{T}")
        for r in range(4):
            a(f"v_fma_f32 v{P+r}, v{S+r}, s{sLOG2E}, -v{T}")
        for r in range(4):
            a(f"v_exp_f32 v{P+r}, v{P+r}")
        a(f"v_pk_mul_f32 {vr(L,2)}, {vr(L,2)}, {vr(A,2)} op_sel_hi:[1,0]")
        a(f"v_pk_mul_f32 {vr(O,2)}, {vr(O,2)}, {vr(A,2)} op_sel_hi:[1,0]")
        a(f"v_pk_mul_f32 {vr(O+2,2)}, {vr(O+2,2)}, {vr(A,2)} op_sel_hi:[1,0]")
        a(f"v_pk_add_f32 {vr(L,2)}, {vr(L,2)}, {vr(P,2)}")
        a(f"v_pk_add_f32 {vr(L,2)}, {vr(L,2)}, {vr(P+2,2)}")
        for r in range(4):
            Bs = self.vB + 4 * (r & 1)
            a(f"v_cvt_pk_bf16_f32 v{T+2+r}, v{P+r}, v{P+r}")
            for d in range(4):
                a(f"v_and_b32 v{Bs+d}, v{T+2+r}, v{self.vMK+d}")
            if r == 0:
                a(f"s_waitcnt vmcnt({wv})")
            a(f"v_mfma_f32_16x16x32_bf16 {vr(O,4)}, {vr(v+4*r,4)}, {vr(Bs,4)}, {vr(O,4)}")

    def block_end(self, slot):
        a = self.a
        a("s_waitcnt lgkmcnt(0)")
        a(f"v_readfirstlane_b32 s30, v{self.vTK}")
        a(f"s_cmp_ge_u32 s30, s{sLIM}")
        a.branch(f"s_cbranch_scc1 L_slow_{slot}")
        a(f"s_lshl_b32 s{sOFF}, s30, 12")
        a(f"s_add_u32 s{sOFF}, s{sOFF}, s{sHOME}")
        a(f"s_waitcnt vmcnt({self.pace})")
        a.label(f"L_kv_{slot}", fence=False)
        self.kv_issue(slot, self.pace if self.loop_grp == 4 else None)
        a.label(f"L_back_{slot}", fence=False)

    def kv_issue(self, slot, mid):
        a = self.a
        a(f"s_add_u32 s{sCNT}, s{sCNT}, 1")
        if self.trace:
            a(f"""
            s_memrealtime s[100:101]
            s_waitcnt lgkmcnt(0)
            s_lshl_b32 s100, s100, 8
            s_and_b32 s101, s30, 0xff
            s_or_b32 s100, s100, s101
            s_add_u32 s{sLANE}, s{sLANE}, 1
            s_lshl_b64 exec, 1, s{sLANE}
            v_mov_b32 v{V_ST}, s100
            s_mov_b64 exec, -1
            """)
        tslot = (slot + self.dist) % self.R if self.dist else slot
        k = self.kreg(tslot); v = self.vreg(tslot)
        for i in range(4):
            a(f"buffer_load_dwordx4 {vr(k+4*i,4)}, v{self.vK}, {srd(S_K)}, s{sOFF} offen offset:{64*i} nt")
        if mid is not None: a(f"s_waitcnt vmcnt({mid})")
        for i in range(4):
            a(f"buffer_load_dwordx4 {vr(v+4*i,4)}, v{self.vV}, {srd(S_V)}, s{sOFF} offen offset:{256*i} nt")

    def slow(self, slot):
        a = self.a
        a.label(f"L_slow_{slot}")
        if self.dist:
            a(f"s_cmp_eq_u32 s{sSKIP}, 0")
            a(f"s_cbranch_scc1 L_nsk_{slot}")
            a(f"s_sub_u32 s{sSKIP}, s{sSKIP}, 1")
            a(f"s_cmp_lg_u32 s{sSKIP}, 0")
            a.branch(f"s_cbranch_scc1 L_back_{slot}")
            a(f"s_mov_b32 s{sLIM}, {self.NS}")
            a(f"v_mov_b32 v{self.vOne}, 1")
            a.branch(f"s_branch L_back_{slot}")
            a.label(f"L_nsk_{slot}")
        a(f"s_cmp_lg_u32 s{sST}, 0")
        a(f"s_cbranch_scc1 L_alt_{slot}")
        a(f"s_lshl_b32 s92, s30, 2")
        a(f"v_mov_b32 v{self.vPL}, s92")
        a(f"s_mov_b32 s93, {SPIN}")
        if self.stamps:
            a(f"s_cmp_lg_u32 s{sPEND}, 0")
            a(f"s_cbranch_scc1 L_spin_{slot}")
            a(f"s_mov_b32 s{sPEND}, 1")
            self.stamp(10)
        a.label(f"L_spin_{slot}")
        a(f"ds_read_b32 v{self.vT}, v{self.vPL} offset:{TAB_LDS - 4 * self.NS}")
        a("s_waitcnt lgkmcnt(0)")
        a(f"v_readfirstlane_b32 s92, v{self.vT}")
        a(f"s_cmp_lg_u32 s92, 0")
        a(f"s_cbranch_scc1 L_got_{slot}")
        if self.stamps: a(f"s_add_u32 s{sSPIN}, s{sSPIN}, 1")
        a(f"s_sub_u32 s93, s93, 1")
        a(f"s_cmp_lg_u32 s93, 0")
        a.branch(f"s_cbranch_scc1 L_spin_{slot}")
        a(f"s_mov_b32 s92, {STOP:#x}")
        a.label(f"L_got_{slot}")
        a(f"s_cmp_lt_i32 s92, 0")
        a(f"s_cbranch_scc1 L_stop_{slot}")
        a(f"s_and_b32 s{sOFF}, s92, 0x7ff000")
        if self.ppace:
            a(f"s_waitcnt vmcnt({self.ppace[0]})")
            self.kv_issue(slot, self.ppace[1])
            a.branch(f"s_branch L_back_{slot}")
        else:
            a(f"s_waitcnt vmcnt({self.pace})")
            a.branch(f"s_branch L_kv_{slot}")
        a.label(f"L_stop_{slot}")
        a(f"s_mov_b32 s{sST}, 1")
        a(f"s_mov_b32 s{sLIM}, 0")
        self.stamp(11)
        a.label(f"L_alt_{slot}")
        if self.wdrain or self.wodrain:
            a(f"s_cmp_eq_u32 s{sMODE}, 2")
            a.branch(f"s_cbranch_scc1 L_back_{slot}")
            a(f"s_cmp_eq_u32 s{sMODE}, 1")
            a(f"s_cbranch_scc1 L_altd_{slot}")
            if self.wdrain:
                n = self.wdrain
                for i in range(n):
                    self.w_load(n * slot + i)
            a.branch(f"s_branch L_back_{slot}")
            a.label(f"L_altd_{slot}")
            if self.wodrain:
                a(f"s_cmp_eq_u32 s{sDMN}, 0")
                a.branch(f"s_cbranch_scc1 L_back_{slot}")
                for p in range(self.wodrain):
                    a(f"s_mov_b32 m0, s{sWDB}")
                    a(f"buffer_load_dwordx4 v{self.vGU}, {srd(S_WO)}, s{sGUB} offen nt lds")
                    a(f"s_add_u32 s{sWDB}, s{sWDB}, 1024")
                    a(f"s_add_u32 s{sGUB}, s{sGUB}, {8*1152}")
                a(f"s_sub_u32 s{sDMN}, s{sDMN}, {self.wodrain}")
        a.branch(f"s_branch L_back_{slot}")
        a.label(f"L_dw_{slot}")
        if self.dist == 2:
            a("s_waitcnt vmcnt(0)")
            a.branch(f"s_branch L_dwb_{slot}")
            return
        w = {0: (8 + 4 * self.wdrain, 5 * self.wdrain), 1: ((16, 8) if self.wodrain else (8, 0)), 2: (8, 0)}
        modes = [0, 1, 2] if (self.wdrain or self.wodrain) else [2]
        for md in modes:
            if md != modes[-1]:
                a(f"s_cmp_eq_u32 s{sMODE}, {md}")
                a(f"s_cbranch_scc0 L_dwm{md}_{slot}")
            a(f"s_cmp_eq_u32 s{sCNT}, 2")
            a(f"s_cbranch_scc1 L_dw2{md}_{slot}")
            a(f"s_waitcnt vmcnt({w[md][1]})")
            a.label(f"L_dw2{md}_{slot}", fence=False)
            a(f"s_waitcnt vmcnt({w[md][0]})")
            a.branch(f"s_branch L_dwb_{slot}")
            if md != modes[-1]:
                a.label(f"L_dwm{md}_{slot}", fence=False)

    pdelay = None
    def xdelay(self, name, k):
        if not self.pdelay: return
        a = self.a
        a.label(name)
        a("s_memrealtime s[100:101]")
        a("s_waitcnt lgkmcnt(0)")
        a("s_sub_u32 s100, s100, s3")
        a(f"s_cmp_lt_u32 s100, {self.pdelay[k]}")
        a(f"s_cbranch_scc1 {name}")
    binit_late = False
    dist = 0
    ppace = None
    wpace = None
    wpace_first = 3
    fswap = False
    wdrain = 0
    npre = None
    QF3 = 400
    wodrain = 0
    def w_list(self):
        L = [(self.GUq(q), S_WG, self.vGU, sGUB, q * 8 * 9216) for q in range(18)]
        L += [(self.WDq(k), S_WD, self.vWDA, sWDB, k * 8 * 1152) for k in range(8)]
        return L
    def w_load(self, idx):
        a = self.a
        reg, sr, va, sb, so = self.w_list()[idx]
        if so:
            a(f"s_add_u32 s92, s{sb}, {so}")
            a(f"buffer_load_dwordx4 {vr(reg,4)}, v{va}, {srd(sr)}, s92 offen nt")
        else:
            a(f"buffer_load_dwordx4 {vr(reg,4)}, v{va}, {srd(sr)}, s{sb} offen nt")
    def Wreg(self, f):
        return self.RING + 32 * (f // 4) + 4 * (f % 4) if f < 24 else self.RING + 32 * (f - 24) + 16
    def GUq(self, q): return self.Wreg(q)
    def WDq(self, k): return self.Wreg(18 + k)
    def WDXq(self, k): return self.RING + 32 * k + 20 if k < 6 else self.RING + 32 * (k - 6) + 24

    loop_grp = 8
    vTK, vZ, vOne = 13, 14, 15
    vPL, vDUM, vGU, vWDA = 3, 63, 60, 61

    def wo_dma(self):
        a = self.a
        a(f"s_cmp_eq_u32 s{sCLS}, 2")
        a("s_cbranch_scc0 L_nodma")
        a(f"s_cmp_lt_u32 s{sWAVE}, 4")
        a("s_cbranch_scc0 L_nodma")
        self.mk_srd(S_WO, 12, 4096 * 576 * 2)
        T = self.vT
        va = self.vGU if self.wodrain else T
        a(f"""
        v_lshrrev_b32 v{T}, 3, v0
        v_and_b32 v{T+1}, 6, v{T}
        v_and_b32 v{T+2}, 7, v0
        v_xor_b32 v{T+1}, v{T+1}, v{T+2}
        v_mul_u32_u24 v{T}, 1152, v{T}
        v_lshl_add_u32 v{va}, v{T+1}, 4, v{T}
        s_mul_i32 s92, s{sG}, {256*1152}
        s_lshl_b32 s30, s{sIDX}, 7
        s_add_u32 s92, s92, s30
        s_mul_i32 s30, s{sWAVE}, {8*8*1152}
        s_add_u32 s92, s92, s30
        s_lshl_b32 s30, s{sWAVE}, 13
        """)
        if self.wodrain:
            a(f"""
            s_add_u32 s{sWDB}, s30, {IMG_LDS}
            s_mov_b32 s{sGUB}, s92
            s_mov_b32 s{sDMN}, 8
            s_mov_b32 s{sMODE}, 1
            """)
        else:
            a(f"s_add_u32 m0, s30, {IMG_LDS}")
            for p in range(8):
                if p % self.pro_grp == 0: a(f"s_waitcnt vmcnt({self.pro_wait})")
                a(f"buffer_load_dwordx4 v{T}, {srd(S_WO)}, s92 offen nt lds")
                if p < 7:
                    a("s_add_u32 m0, m0, 1024")
                    a(f"s_add_u32 s92, s92, {8*1152}")
        a.label("L_nodma")

    def streaming(self):
        a = self.a; R = self.R
        a(f"""
        v_and_b32 v3, 15, v0
        v_lshlrev_b32 v{self.vK}, 8, v3
        v_lshlrev_b32 v{self.vV}, 4, v3
        v_lshrrev_b32 v3, 4, v0
        v_lshl_add_u32 v{self.vK}, v3, 4, v{self.vK}
        v_lshl_add_u32 v{self.vV}, v3, 10, v{self.vV}
        s_lshl_b32 s30, s{sG}, 23
        s_lshl_b32 s{sHOME}, s{sJ}, 19
        s_lshl_b32 s{sOFF}, s{sWAVE}, 12
        s_add_u32 s{sOFF}, s{sOFF}, s{sHOME}
        v_mov_b32 v{self.vZ}, 0
        v_mov_b32 v{self.vOne}, {0 if self.dist else 1}
        s_mov_b32 s{sSCALE}, {SCALE:#x}
        s_mov_b32 s{sSCALE+1}, {SCALE:#x}
        """)
        self.mk_masks(self.vT, self.vT + 1, 3)
        a(f"""
        v_mov_b32 v{self.vL}, 0
        v_mov_b32 v{self.vL+1}, 0
        v_mov_b32 v{self.vM}, 0xff7fffff
        """)
        for r in range(4):
            a(f"v_mov_b32 v{self.vO+r}, 0")
        a(f"""
        v_bfe_u32 v3, v0, 3, 1
        v_lshlrev_b32 v3, 8, v3
        v_lshrrev_b32 v{self.vT}, 4, v0
        v_lshl_add_u32 v3, v{self.vT}, 4, v3
        s_waitcnt lgkmcnt(0)
        """)
        self.mk_srd(S_K, 6, 0x800000, add="s30")
        self.mk_srd(S_V, 8, 0x800000, add="s30")
        if self.binit: a("s_barrier")
        for s in range(R):
            if s == R - 1: self.wo_dma()
            self.issue(s, grp=self.pro_grp, wait=(self.pro_wait if s > 0 or self.pro_grp < 8 else None))
            if s == 0:
                self.stamp(0)
                a(f"s_load_dword s{sTAG}, s[28:29], {WS_EPOCH}")
                self.mk_srd(S_WS, 28, WS_SIZE)
                self.mk_srd(S_WD, 20, 4608 * 576 * 2)
                self.mk_srd(S_X, 4, 1152)
                self.mk_srd(S_OUT, 26, 1152)
                a(f"s_cmp_lt_u32 s{sWAVE}, 4")
                a("s_cbranch_scc0 L_gu_up")
                self.mk_srd(S_WG, 16, 576 * 4608 * 2)
                a("s_branch L_gu_done")
                a.label("L_gu_up", fence=False)
                self.mk_srd(S_WG, 18, 576 * 4608 * 2)
                a.label("L_gu_done", fence=False)
                self.mk_sub(self.vT, self.vT + 1)
                a(f"""
                v_and_b32 v{self.vT+1}, 7, v0
                v_lshlrev_b32 v{self.vT+1}, 4, v{self.vT+1}
                v_mul_u32_u24 v{self.vGU}, 9216, v{self.vT}
                v_add_u32 v{self.vGU}, v{self.vGU}, v{self.vT+1}
                v_mul_u32_u24 v{self.vWDA}, 1152, v{self.vT}
                v_add_u32 v{self.vWDA}, v{self.vWDA}, v{self.vT+1}
                s_and_b32 s92, s{sWAVE}, 3
                s_mul_i32 s{sGUB}, s92, {144 * 9216}
                s_lshl_b32 s92, s{sIDX}, 7
                s_add_u32 s{sGUB}, s{sGUB}, s92
                s_mul_i32 s{sWDB}, s{sIDX}, {64 * 1152}
                s_lshl_b32 s92, s{sWAVE}, 7
                s_add_u32 s{sWDB}, s{sWDB}, s92
                s_mov_b32 s{sOOB}, 0x800000
                s_mov_b32 s{sST}, 0
                s_mov_b32 s{sPEND}, 0
                s_mov_b32 s{sSPIN}, 0
                s_mov_b32 s{sLANE}, 15
                s_mov_b32 s{sLIM}, {self.NS}
                s_mov_b32 s{sMODE}, 2
                s_cmp_eq_u32 s{sCLS}, 0
                s_cselect_b32 s{sMODE}, {0 if self.wdrain else 2}, s{sMODE}
                """)
                if self.dist:
                    a(f"s_mov_b32 s{sSKIP}, {R - self.dist}")
                    a(f"s_mov_b32 s{sLIM}, 0")
                a("s_waitcnt lgkmcnt(0)")
                a(f"s_mul_i32 s{sTAG}, s{sTAG}, 0x9E3779B1")
                a(f"s_add_u32 s{sTAG}, s{sTAG}, 0x7F4A7C15")
        self.stamp(1)
        if self.qflag:
            self.lds_spin("L_qfl", QFL_LDS, 1, self.vZ, self.vT, 30)
        else:
            a("s_barrier")
        for i in range(4):
            a(f"ds_read_b128 {vr(self.vQ+4*i,4)}, v3 offset:{Q_LDS+64*i}")
        a(f"s_mov_b32 s{sCNT}, {R}")
        a("s_waitcnt lgkmcnt(0)")
        self.stamp(2)
        a.label("L_loop")
        for s in range(R):
            dd = self.dist if self.dist else R
            self.block(s, 4 + 8 * (dd - 1), 8 * (dd - 1))
            a(f"s_sub_u32 s{sCNT}, s{sCNT}, 1")
            a(f"s_cmp_eq_u32 s{sCNT}, 0")
            if s < R - 1:
                a.branch("s_cbranch_scc1 L_epi")
            else:
                a.branch("s_cbranch_scc0 L_loop")
        a.label("L_epi")
        self.stamp(3)
        if self.stamps: a(f"v_writelane_b32 v{V_ST}, s{sSPIN}, 12")
        L = self.vL; T = self.vT
        a(f"v_add_f32 v{L}, v{L}, v{L+1}")
        self.cross_rows("add", [L], [T])
        a(f"""
        v_bfe_u32 v3, v0, 3, 1
        v_lshlrev_b32 v3, 9, v3
        v_lshrrev_b32 v{T+1}, 4, v0
        v_lshl_add_u32 v3, v{T+1}, 7, v3
        v_and_b32 v{T+1}, 7, v0
        v_lshl_add_u32 v3, v{T+1}, 2, v3
        s_lshl_b32 s30, s{sWAVE}, 10
        v_add_u32 v3, s30, v3
        """)
        for r in range(4):
            a(f"ds_write_b32 v3, v{self.vO+r} offset:{PART_LDS+32*r}")
        a(f"""
        v_bfe_u32 v{T+1}, v0, 3, 1
        v_lshlrev_b32 v{T+1}, 5, v{T+1}
        s_lshl_b32 s30, s{sWAVE}, 2
        v_add_u32 v{T+1}, s30, v{T+1}
        s_mov_b64 exec, 0x101
        ds_write_b32 v{T+1}, v{self.vM} offset:{ML_LDS}
        ds_write_b32 v{T+1}, v{L} offset:{ML_LDS+64}
        s_mov_b64 exec, -1
        s_cmp_eq_u32 s{sCLS}, 0
        """)
        a.branch("s_cbranch_scc1 L_ffn_tail")
        a(f"s_cmp_eq_u32 s{sCLS}, 2")
        a.branch("s_cbranch_scc1 L_wo_tail")
        a("""
        s_waitcnt lgkmcnt(0)
        s_barrier
        """)
        self.stamp(4)
        self.w_prefetch("mid")
        self.stamp_flush()
        a("s_endpgm")
        for s in range(R):
            self.slow(s)

    pf = None
    pfn = (4, 5, 7, 13)
    def w_prefetch(self, role):
        if self.pf is None: return
        a = self.a
        X, NT, M, C, E, NW = 48, 49, 50, 51, 52, 53
        nWo, nWe, nMo, nMe = self.pfn
        tag = "L_pf" + role
        self.mk_srd(S_WG, 16, 576 * 4608 * 2)
        self.mk_srd(S_WU, 18, 576 * 4608 * 2)
        a(f"""
        s_sub_u32 s{X}, s{sJ}, s{sG}
        s_and_b32 s{X}, s{X}, 7
        s_lshr_b32 s92, s{sG}, 3
        s_bitcmp1_b32 s{X}, 0
        s_cselect_b32 s{NT}, 8, 10
        s_movk_i32 s{M}, 205
        s_cselect_b32 s{M}, 256, s{M}
        s_cselect_b32 s{NW}, {nWo}, {nWe}
        s_cselect_b32 s93, {nMo}, {nMe}
        v_mul_u32_u24 v16, 9216, v0
        v_mul_u32_u24 v17, 1152, v0
        """)
        if role == "wo":
            a(f"""
            s_add_u32 s92, s92, 16
            s_cmp_ge_u32 s{sJ}, 8
            s_cselect_b32 s92, s{sG}, s92
            s_mul_i32 s{C}, s92, s{NW}
            s_add_u32 s{E}, s{C}, s{NW}
            s_add_u32 s{C}, s{C}, s{sWAVE}
            s_sub_u32 s{C}, s{C}, 4
            """)
            step = 3
        else:
            a(f"""
            s_cmp_eq_u32 s{sJ}, 6
            s_cselect_b32 s94, 2, 0
            s_cmp_eq_u32 s{sJ}, 4
            s_cselect_b32 s94, 4, s94
            s_add_u32 s92, s92, s94
            s_mul_i32 s{C}, s92, s93
            s_mul_i32 s94, s{NW}, 18
            s_add_u32 s{C}, s{C}, s94
            s_add_u32 s{E}, s{C}, s93
            s_add_u32 s{C}, s{C}, s{sWAVE}
            """)
            step = 7
        a.label(tag + "_loop")
        a(f"""
        s_cmp_ge_u32 s{C}, s{E}
        s_cbranch_scc1 {tag}_done
        s_mul_i32 s92, s{C}, s{M}
        s_lshr_b32 s92, s92, 11
        s_cmp_ge_u32 s92, 14
        s_cbranch_scc1 {tag}_done
        s_mul_i32 s93, s92, s{NT}
        s_sub_u32 s93, s{C}, s93
        s_add_u32 s{C}, s{C}, {step}
        s_and_b32 s94, s93, 3
        s_lshr_b32 s95, s93, 2
        s_sub_u32 s96, s93, 8
        s_cmp_ge_u32 s93, 8
        s_cselect_b32 s94, 4, s94
        s_cselect_b32 s95, s96, s95
        s_sub_u32 s96, s94, s{X}
        s_and_b32 s96, s96, 7
        s_lshl_b32 s95, s95, 3
        s_add_u32 s96, s96, s95
        s_xor_b32 s95, s96, {1 if self.fswap else 0}
        s_lshl_b32 s95, s95, 2
        s_add_u32 s95, s95, s94
        s_lshr_b32 s96, s96, 1
        s_add_u32 s96, s96, 64
        s_cmp_eq_u32 s94, 4
        s_cselect_b32 s95, s96, s95
        s_cmp_lt_u32 s92, 7
        s_cbranch_scc0 {tag}_wd
        s_and_b32 s93, s92, 3
        s_mul_i32 s93, s93, {144 * 9216}
        s_lshl_b32 s95, s95, 7
        s_add_u32 s93, s93, s95
        s_add_u32 s93, s93, {80 * 9216}
        s_cmp_lt_u32 s92, 4
        s_cbranch_scc0 {tag}_up
        buffer_load_dword v18, v16, {srd(S_WG)}, s93 offen {self.pf}
        s_branch {tag}_loop
        """)
        a.label(tag + "_up", fence=False)
        a(f"buffer_load_dword v18, v16, {srd(S_WU)}, s93 offen {self.pf}")
        a(f"s_branch {tag}_loop")
        a.label(tag + "_wd", fence=False)
        a(f"""
        s_mul_i32 s93, s95, {64 * 1152}
        s_sub_u32 s92, s92, 7
        s_lshl_b32 s92, s92, 7
        s_add_u32 s93, s93, s92
        buffer_load_dword v18, v17, {srd(S_WD)}, s93 offen {self.pf}
        s_branch {tag}_loop
        """)
        a.label(tag + "_done")

    def wo_tail(self):
        a = self.a
        a.label("L_wo_tail")
        a(f"s_cmp_lt_u32 s{sWAVE}, 4")
        a.branch("s_cbranch_scc0 L_wo_c")
        a(f"""
        s_lshl_b32 s30, s{sWAVE}, 6
        v_add_u32 v1, s30, v0
        v_lshlrev_b32 v2, 2, v1
        v_lshrrev_b32 v8, 5, v1
        v_lshlrev_b32 v8, 6, v8
        v_bfe_u32 v9, v1, 2, 2
        v_lshl_add_u32 v8, v9, 4, v8
        v_bfe_u32 v9, v1, 4, 1
        v_lshl_add_u32 v8, v9, 3, v8
        v_and_b32 v9, 3, v1
        v_lshl_add_u32 v8, v9, 1, v8
        v_and_b32 v3, 15, v0
        v_lshlrev_b32 v3, 4, v3
        s_lshr_b32 s30, s{sWAVE}, 1
        s_lshl_b32 s30, s30, 3
        v_add_u32 v3, s30, v3
        s_lshl_b32 s30, s{sG}, 14
        s_add_u32 s92, s30, {WS_T1O}
        s_add_u32 s93, s92, 4096
        s_add_u32 s94, s92, 8192
        s_add_u32 s95, s92, 12288
        s_lshl_b32 s30, s{sG}, 8
        s_add_u32 s96, s30, {WS_T1ML}
        s_waitcnt lgkmcnt(0)
        s_barrier
        """)
        self.stamp(4)
        D = 16
        def ml_ld(): a(f"buffer_load_dwordx2 v[32:33], v3, {srd(S_WS)}, s96 offen sc1")
        def ml_ck():
            a("v_add_f32 v34, v32, v33")
            a("v_cmp_u_f32 vcc, v34, v34")
        def ml_ov():
            a("v_mov_b32 v34, v32")
            self.row_allreduce("max", [34])
            a("v_sub_f32 v35, v32, v34")
            a("v_exp_f32 v35, v35")
            a("v_mul_f32 v36, v35, v33")
            self.row_allreduce("add", [36])
            a("v_rcp_f32 v36, v36")
            a("v_mul_f32 v35, v35, v36")
        units = [(ml_ld, ml_ck, ml_ov)]
        for q in range(4):
            def ld(q=q):
                for s_ in range(4 * q, 4 * q + 4):
                    a(f"buffer_load_dword v{D+s_}, v2, {srd(S_WS)}, s{92 + q} offen offset:{1024*(s_%4)} sc1")
            def ck(q=q):
                a(f"v_add_f32 v38, v{D+4*q}, v{D+4*q+1}")
                a(f"v_add_f32 v39, v{D+4*q+2}, v{D+4*q+3}")
                a("v_add_f32 v38, v38, v39")
                a("v_cmp_u_f32 vcc, v38, v38")
            units.append((ld, ck, None))
        def dfl():
            a("s_mov_b64 exec, 1")
            a(f"ds_or_b32 v40, v41 offset:{DFL_LDS}")
            a("s_mov_b64 exec, -1")
        if self.wodrain:
            a(f"s_lshl_b32 s30, 1, s{sWAVE}")
            a("v_mov_b32 v40, 0")
            a("v_mov_b32 v41, s30")
        self.inc_poll("L_t1poll", units, 97, dfl if self.wodrain else None)
        a("v_mov_b32 v37, 0")
        for s_ in range(16):
            a(f"v_fmac_f32_dpp v37, v35, v{D+s_} row_newbcast:{s_} row_mask:0xf bank_mask:0xf")
        a(f"v_cvt_pk_bf16_f32 v37, v37, v37")
        a(f"ds_write_b16 v8, v37 offset:{O_LDS}")
        a("s_waitcnt lgkmcnt(0)")
        self.stamp(5)
        a("s_barrier")
        self.stamp_flush()
        a("s_endpgm")
        a.label("L_wo_c")
        a("""
        s_waitcnt lgkmcnt(0)
        s_barrier
        """)
        self.stamp(4)
        self.w_prefetch("wo")
        a.label("L_wo_mm")
        WOF = 64; OF = 96
        a(f"""
        s_sub_u32 s30, s{sWAVE}, 4
        v_bfe_u32 v1, v0, 4, 1
        v_bfe_u32 v2, v0, 2, 2
        v_lshl_add_u32 v1, v1, 2, v2
        v_bfe_u32 v2, v0, 1, 1
        s_lshl_b32 s31, s30, 1
        v_add_u32 v2, s31, v2
        v_and_b32 v3, 6, v1
        v_xor_b32 v2, v2, v3
        v_lshlrev_b32 v2, 4, v2
        v_lshl_add_u32 v2, v1, 7, v2
        v_and_b32 v3, 1, v0
        v_lshl_add_u32 v2, v3, 3, v2
        v_lshrrev_b32 v3, 5, v0
        v_lshl_add_u32 v2, v3, 10, v2
        v_add_u32 v2, {IMG_LDS}, v2
        v_lshrrev_b32 v3, 4, v0
        v_lshlrev_b32 v3, 4, v3
        """)
        if self.wodrain:
            a("v_mov_b32 v8, 0")
            self.lds_spin("L_dfl", DFL_LDS, 15, 8, 9, 31)
        for ks in range(8):
            a(f"ds_read_b64_tr_b16 {vr(WOF+4*ks,2)}, v2 offset:{4096*ks}")
            a(f"ds_read_b64_tr_b16 {vr(WOF+4*ks+2,2)}, v2 offset:{4096*ks+2048}")
        a(f"""
        s_mul_i32 s31, s{sG}, 2304
        s_lshl_b32 s93, s{sIDX}, 8
        s_add_u32 s93, s93, s31
        s_lshl_b32 s31, s30, 6
        s_add_u32 s93, s93, s31
        s_add_u32 s93, s93, {WS_T2}
        s_mov_b32 s30, 0x00010001
        s_mov_b32 s31, 0x00010001
        s_waitcnt lgkmcnt(0)
        s_barrier
        """)
        for s in range(8):
            a(f"ds_read_b128 {vr(OF+4*s,4)}, v3 offset:{O_LDS+64*s}")
        for s in range(8):
            a(f"s_waitcnt lgkmcnt({7-s})")
            c = "0" if s == 0 else vr(12, 4)
            a(f"v_mfma_f32_16x16x32_bf16 {vr(12,4)}, {vr(WOF+4*s,4)}, {vr(OF+4*s,4)}, {c}")
        a(f"""
        s_mov_b64 exec, s[30:31]
        buffer_store_dwordx4 v[12:15], v3, {srd(S_WS)}, s93 offen sc1
        s_mov_b64 exec, -1
        """)
        self.stamp(6)
        a.branch("s_branch L_fin")

    TDX = [84, 116, 148, 180, 212, 88, 120]
    def TD(self, s): return 16 + 4 * s if s < 9 else self.TDX[s - 9]
    CX, CGA, CCB, CSB = 92, 124, 156, 188
    ACC4 = 220
    UXL = (152, 184, 216, 244)
    GBQ = 252
    FINW = 6

    def ffn_addr(self):
        a = self.a
        self.mk_sub(1, 2)
        a(f"""
        v_mul_u32_u24 v8, {HD_P}, v1
        s_and_b32 s30, s{sWAVE}, 3
        s_mul_i32 s30, s30, {8 * HD_P}
        s_add_u32 s30, s30, {HD2_LDS}
        v_add_u32 v8, s30, v8
        v_lshlrev_b32 v11, 2, v1
        v_lshrrev_b32 v12, 4, v0
        v_lshlrev_b32 v12, 4, v12
        v_and_b32 v9, 7, v0
        v_lshl_add_u32 v12, v9, 5, v12
        s_lshl_b32 s30, s{sWAVE}, 8
        s_add_u32 s30, s30, {PX_LDS}
        v_add_u32 v9, s30, v12
        v_lshlrev_b32 v10, 2, v0
        v_add_u32 v10, {PX_LDS}, v10
        """)

    def ffn_tail(self):
        a = self.a
        a.label("L_ffn_tail")
        a("s_mov_b64 exec, 1")
        a(f"ds_add_u32 v{self.vZ}, v{self.vOne} offset:{ARR_LDS}")
        a("s_mov_b64 exec, -1")
        self.ffn_addr()
        a(f"s_cmp_lt_u32 s{sWAVE}, 3")
        a("s_cbranch_scc0 L_ffn_nog")
        a(f"""
        s_lshl_b32 s30, s{sWAVE}, 6
        v_add_u32 v52, s30, v0
        v_lshlrev_b32 v53, 4, v52
        v_lshlrev_b32 v54, 3, v52
        v_cmp_gt_u32 vcc, 144, v52
        v_mov_b32 v55, 0x7ffffff0
        v_cndmask_b32 v55, v55, v53, vcc
        v_min_u32 v56, 143, v52
        v_lshlrev_b32 v56, 4, v56
        v_mul_u32_u24 v57, 57, v52
        v_lshrrev_b32 v57, 11, v57
        v_mul_u32_u24 v58, 36, v57
        v_sub_u32 v58, v52, v58
        v_mul_u32_u24 v57, {8 * HD_P}, v57
        v_lshrrev_b32 v59, 1, v58
        v_lshl_add_u32 v57, v59, 2, v57
        v_and_b32 v58, 1, v58
        v_mul_u32_u24 v58, {4 * HD_P}, v58
        v_add_u32 v57, v57, v58
        v_add_u32 v57, {HD2_LDS}, v57
        buffer_load_dwordx2 {vr(self.CX,2)}, v54, {srd(S_X)}, 0 offen
        s_mov_b32 s92, {WS_P3}
        s_mov_b32 s93, {WS_P3 + 2304}
        s_mov_b32 s94, {WS_P3 + 4608}
        """)
        a(f"buffer_load_dwordx4 {vr(self.CGA,4)}, v56, {srd(S_WS)}, s92 offen sc1")
        a(f"buffer_load_dwordx4 {vr(self.CSB,4)}, v56, {srd(S_WS)}, s93 offen sc1")
        a(f"buffer_load_dwordx4 {vr(self.CCB,4)}, v56, {srd(S_WS)}, s94 offen sc1")
        a.label("L_ffn_nog")
        n_done = 6 * self.wdrain
        if self.wpace is not None:
            assert self.npre is not None and n_done == 0
            for f in range(0, self.npre): self.w_load(f)
            self.stamp(14)
            a("s_barrier")
            a(f"s_cmp_lt_u32 s{sWAVE}, {self.wpace_first}")
            a("s_cbranch_scc0 L_ffn_wpaced")
            for f in range(self.npre, 26): self.w_load(f)
            a.branch("s_branch L_ffn_wdone")
            a.label("L_ffn_wpaced")
            for f in range(self.npre, 26):
                a(f"s_waitcnt vmcnt({self.wpace})")
                self.w_load(f)
            a.label("L_ffn_wdone")
        else:
          for f in range(n_done, 26):
            if self.npre is not None and f == n_done + self.npre:
                self.stamp(14)
                a("s_barrier")
            self.w_load(f)
        self.n_late = 26 - n_done
        if self.npre is None: self.stamp(14)
        self.stamp(4)
        a.label("L_ffn_post")
        a(f"s_cmp_lt_u32 s{sWAVE}, 3")
        a.branch("s_cbranch_scc0 L_ffn_w3")
        a(f"""
        s_mov_b32 s92, {WS_P3}
        s_mov_b32 s93, {WS_P3 + 2304}
        s_mov_b32 s94, {WS_P3 + 4608}
        """)
        regs = []
        for q in (self.CGA, self.CSB, self.CCB): regs += [q + 1, q + 3]
        a(f"s_waitcnt vmcnt({self.n_late})")
        self.tagcheck(regs, 58, 59)
        a.branch("s_cbranch_vccz L_p3poll_ok")
        self.poll_begin("L_p3poll")
        a(f"buffer_load_dwordx4 {vr(self.CGA,4)}, v56, {srd(S_WS)}, s92 offen sc1")
        a(f"buffer_load_dwordx4 {vr(self.CSB,4)}, v56, {srd(S_WS)}, s93 offen sc1")
        a(f"buffer_load_dwordx4 {vr(self.CCB,4)}, v56, {srd(S_WS)}, s94 offen sc1")
        a("s_waitcnt vmcnt(0)")
        self.tagcheck(regs, 58, 59)
        self.poll_end("L_p3poll")
        X, GA, CB, SB = self.UXL
        for dst, lo, hi in ((X, self.CX, self.CX + 1), (GA, self.CGA, self.CGA + 2), (CB, self.CCB, self.CCB + 2), (SB, self.CSB, self.CSB + 2)):
            a(f"v_lshlrev_b32 v{dst}, 16, v{lo}")
            a(f"v_and_b32 v{dst+1}, 0xffff0000, v{lo}")
            a(f"v_lshlrev_b32 v{dst+2}, 16, v{hi}")
            a(f"v_and_b32 v{dst+3}, 0xffff0000, v{hi}")
        for r in range(4):
            a(f"v_add_f32 v{CB+r}, 1.0, v{CB+r}")
        for r in range(4): self.rnd(CB + r, CB + r)
        self.stamp(8)
        for k in range(8):
            a(f"s_mov_b32 s{92+k}, {WS_T2 + 4608*k}")
        AC = self.ACC4
        if self.stamps:
            a("s_waitcnt vmcnt(0)")
            self.stamp(15)
        a("v_mov_b32 v58, 0")
        self.lds_spin("L_hfl", HFL_LDS, 1, 58, 59, 30)
        if self.t2gate:
            a(f"""
            v_mul_u32_u24 v58, 2304, v0
            s_lshl_b32 s30, s{sWAVE}, 10
            s_add_u32 s30, s30, {WS_T2}
            s_mov_b64 exec, 0xffff
            """)
            self.poll_begin("L_t2gate")
            a(f"buffer_load_dword v59, v58, {srd(S_WS)}, s30 offen sc1")
            a("s_waitcnt vmcnt(0)")
            a("v_cmp_o_f32 vcc, v59, v59")
            a(f"s_cbranch_vccnz L_t2gate_ok")
            a(f"s_sub_u32 s{sCNT}, s{sCNT}, 1")
            a(f"s_cmp_lg_u32 s{sCNT}, 0")
            a.branch("s_cbranch_scc1 L_t2gate")
            a.label("L_t2gate_ok")
            a("s_mov_b64 exec, -1")
        units = []
        for q in range(4):
            def ld(q=q):
                for s_ in range(4 * q, 4 * q + 4):
                    a(f"buffer_load_dwordx4 {vr(self.TD(s_),4)}, v55, {srd(S_WS)}, s{92 + s_//2} offen offset:{2304*(s_%2)} sc1")
            def ck(q=q):
                t = [self.TD(4 * q + k) for k in range(4)]
                for h in (0, 2):
                    a(f"v_pk_add_f32 {vr(t[0]+h,2)}, {vr(t[0]+h,2)}, {vr(t[1]+h,2)}")
                    a(f"v_pk_add_f32 {vr(t[2]+h,2)}, {vr(t[2]+h,2)}, {vr(t[3]+h,2)}")
                for h in (0, 2):
                    a(f"v_pk_add_f32 {vr(t[0]+h,2)}, {vr(t[0]+h,2)}, {vr(t[2]+h,2)}")
                a(f"v_add_f32 v248, v{t[0]}, v{t[0]+1}")
                a(f"v_add_f32 v249, v{t[0]+2}, v{t[0]+3}")
                a("v_add_f32 v248, v248, v249")
                a("v_cmp_u_f32 vcc, v248, v248")
            units.append((ld, ck, None))
        self.inc_poll("L_t2poll", units, 31)
        q0, q1, q2, q3 = [self.TD(4 * q) for q in range(4)]
        for h in (0, 2):
            a(f"v_pk_add_f32 {vr(q0+h,2)}, {vr(q0+h,2)}, {vr(q1+h,2)}")
            a(f"v_pk_add_f32 {vr(q2+h,2)}, {vr(q2+h,2)}, {vr(q3+h,2)}")
        for h in (0, 2):
            a(f"v_pk_add_f32 {vr(AC+h,2)}, {vr(q0+h,2)}, {vr(q2+h,2)}")
        self.stamp(5)
        for r in range(4): self.rnd(AC + r, AC + r)
        a(f"v_pk_mul_f32 {vr(AC,2)}, {vr(AC,2)}, {vr(GA,2)}")
        a(f"v_pk_mul_f32 {vr(AC+2,2)}, {vr(AC+2,2)}, {vr(GA+2,2)}")
        for r in range(4): self.rnd(AC + r, AC + r)
        a(f"v_pk_add_f32 {vr(AC,2)}, {vr(AC,2)}, {vr(X,2)}")
        a(f"v_pk_add_f32 {vr(AC+2,2)}, {vr(AC+2,2)}, {vr(X+2,2)}")
        for r in range(4): self.rnd(AC + r, AC + r)
        a(f"ds_write_b128 v53, {vr(AC,4)} offset:{X1_LDS}")
        a(f"v_add_f32 v248, v{AC}, v{AC+1}")
        a(f"v_mul_f32 v249, v{AC}, v{AC}")
        a(f"v_add_f32 v250, v{AC+2}, v{AC+3}")
        a(f"v_fmac_f32 v249, v{AC+1}, v{AC+1}")
        a(f"v_add_f32 v248, v248, v250")
        a(f"v_fmac_f32 v249, v{AC+2}, v{AC+2}")
        a(f"v_fmac_f32 v249, v{AC+3}, v{AC+3}")
        self.row_allreduce("add", [248, 249])
        self.cross_rows("add", [248, 249], [250, 251])
        a(f"""
        s_lshl_b32 s30, s{sWAVE}, 3
        v_mov_b32 v250, s30
        s_mov_b64 exec, 1
        ds_write_b64 v250, v[248:249] offset:{ST_LDS}
        s_mov_b64 exec, -1
        s_waitcnt lgkmcnt(0)
        s_barrier
        v_mov_b32 v250, 0
        ds_read_b128 v[20:23], v250 offset:{ST_LDS}
        ds_read_b64 v[24:25], v250 offset:{ST_LDS+16}
        s_waitcnt lgkmcnt(0)
        v_add_f32 v248, v20, v22
        v_add_f32 v249, v21, v23
        v_add_f32 v248, v248, v24
        v_add_f32 v249, v249, v25
        v_mul_f32 v248, {f32(1.0/576.0)}, v248
        v_mul_f32 v249, {f32(1.0/576.0)}, v249
        v_fma_f32 v249, -v248, v248, v249
        v_max_f32 v249, 0, v249
        """)
        self.ln_finish(248, 249)
        for r in range(4):
            a(f"v_sub_f32 v{AC+r}, v{AC+r}, v248")
        for r in range(4): self.rnd(AC + r, AC + r)
        for r in range(4):
            a(f"v_mul_f32 v{AC+r}, v{AC+r}, v249")
        for r in range(4): self.rnd(AC + r, AC + r)
        a(f"v_pk_mul_f32 {vr(AC,2)}, {vr(AC,2)}, {vr(CB,2)}")
        a(f"v_pk_mul_f32 {vr(AC+2,2)}, {vr(AC+2,2)}, {vr(CB+2,2)}")
        for r in range(4): self.rnd(AC + r, AC + r)
        a(f"v_pk_add_f32 {vr(AC,2)}, {vr(AC,2)}, {vr(SB,2)}")
        a(f"v_pk_add_f32 {vr(AC+2,2)}, {vr(AC+2,2)}, {vr(SB+2,2)}")
        if self.dbg:
            a(f"v_cvt_pk_bf16_f32 v250, v{AC}, v{AC+1}")
            a(f"v_cvt_pk_bf16_f32 v251, v{AC+2}, v{AC+3}")
            a(f"s_lshl_b32 s92, s{sIDX}, 11")
            a(f"s_add_u32 s92, s92, {WS_DBG}")
            a(f"buffer_store_dwordx2 v[250:251], v54, {srd(S_WS)}, s92 offen")
        for r in range(4):
            a(f"v_cvt_pk_bf16_f32 v{AC+r}, v{AC+r}, v{AC+r}")
        a(f"ds_write2_b32 v57, v{AC}, v{AC+1} offset0:0 offset1:{HD_P//4}")
        a(f"ds_write2_b32 v57, v{AC+2}, v{AC+3} offset0:{2*HD_P//4} offset1:{3*HD_P//4}")
        a("s_waitcnt lgkmcnt(0)")
        self.stamp(6)
        a.branch("s_branch L_ffn_b4")
        a.label("L_ffn_w3")
        a(f"s_cmp_eq_u32 s{sWAVE}, {self.FINW}")
        a("s_cbranch_scc0 L_ffn_nogb")
        a(f"""
        v_and_b32 v56, 3, v0
        v_lshlrev_b32 v56, 4, v56
        s_min_u32 s92, s{sIDX}, 35
        s_lshl_b32 s92, s92, 6
        s_add_u32 s92, s92, {WS_P3 + 1728*4}
        """)
        self.poll_begin("L_gbpoll")
        a(f"buffer_load_dwordx4 {vr(self.GBQ,4)}, v56, {srd(S_WS)}, s92 offen sc1")
        a("s_waitcnt vmcnt(0)")
        self.tagcheck([self.GBQ + 1, self.GBQ + 3], 58, 59)
        self.poll_end("L_gbpoll")
        a.label("L_ffn_nogb")
        if self.stamps:
            a("s_waitcnt vmcnt(0)")
            a(f"s_cmp_eq_u32 s{sWAVE}, 7")
            a("s_cbranch_scc1 L_ffn_ns15")
            self.stamp(15)
            a.label("L_ffn_ns15")
        a("s_barrier")
        a.label("L_ffn_b4")
        a("s_barrier")
        AV = 16
        for q in range(5):
            a(f"ds_read_b128 {vr(AV+4*q,4)}, v8 offset:{16*q}")
        kb = 0.7978845608028654; kk = 0.044715
        c1 = -2.0 * kb * 1.4426950408889634
        a(f"""
        s_mov_b32 s92, {f32(kk)}
        s_mov_b32 s30, 0x00ff00ff
        s_mov_b32 s31, 0
        s_mul_i32 s93, s{sIDX}, 2304
        s_lshl_b32 s94, s{sWAVE}, 8
        s_add_u32 s93, s93, s94
        s_add_u32 s93, s93, {WS_T3}
        s_waitcnt vmcnt(0) lgkmcnt(0)
        """)
        self.stamp(9)
        self.gemv([self.GUq(t) for t in range(18)], 18, [AV + t for t in range(18)], 40, 48, True)
        self.halfsum(48, 52)
        a(f"""
        s_mov_b64 exec, s[30:31]
        ds_write_b128 v9, v[48:51]
        s_mov_b64 exec, -1
        s_waitcnt lgkmcnt(0)
        s_barrier
        """)
        for w in range(8):
            a(f"ds_read_b32 v{16+w}, v10 offset:{256*w}")
        a(f"""
        s_waitcnt lgkmcnt(4)
        v_add_f32 v16, v16, v17
        v_add_f32 v18, v18, v19
        v_add_f32 v24, v16, v18
        s_waitcnt lgkmcnt(0)
        v_add_f32 v20, v20, v21
        v_add_f32 v22, v22, v23
        v_add_f32 v25, v20, v22
        """)
        self.rnd(24, 24)
        self.rnd(25, 25)
        a(f"""
        v_mul_f32 v26, v24, v24
        v_fma_f32 v26, v26, s92, 1.0
        v_mul_f32 v26, v26, v24
        v_mul_f32 v26, {f32(c1)}, v26
        v_exp_f32 v26, v26
        v_add_f32 v26, 1.0, v26
        v_rcp_f32 v26, v26
        v_mul_f32 v26, v26, v24
        """)
        self.rnd(26, 26)
        a("v_mul_f32 v26, v26, v25")
        a("v_cvt_pk_bf16_f32 v26, v26, v26")
        if self.dbg:
            a(f"""
            v_lshlrev_b32 v54, 1, v0
            s_lshl_b32 s92, s{sIDX}, 7
            s_add_u32 s92, s92, {WS_DBG + 0x40000}
            buffer_store_short v26, v54, {srd(S_WS)}, s92 offen
            s_add_u32 s92, s92, 0x4000
            buffer_store_short_d16_hi v24, v54, {srd(S_WS)}, s92 offen
            s_add_u32 s92, s92, 0x4000
            buffer_store_short_d16_hi v25, v54, {srd(S_WS)}, s92 offen
            """)
        for t in range(8):
            a(f"ds_bpermute_b32 v{16+t}, v11, v26 offset:{32*t}")
        a("s_waitcnt lgkmcnt(0)")
        AVd = [16 + t for t in range(8)]
        self.gemv([self.WDq(t) for t in range(8)], 8, AVd, 40, 48, True)
        self.halfsum(48, 52)
        a(f"""
        s_mov_b64 exec, s[30:31]
        buffer_store_dwordx4 v[48:51], v12, {srd(S_WS)}, s93 offen sc1
        s_mov_b64 exec, -1
        """)
        a(f"s_cmp_eq_u32 s{sWAVE}, 7")
        a("s_cbranch_scc0 L_ffn_nod3")
        self.gemv([self.WDXq(t) for t in range(8)], 8, AVd, 40, 36, True)
        self.halfsum(36, 32)
        a(f"""
        s_mul_i32 s93, s{sIDX}, 2304
        s_add_u32 s93, s93, {WS_T3 + 8*256}
        s_mov_b64 exec, s[30:31]
        buffer_store_dwordx4 v[36:39], v12, {srd(S_WS)}, s93 offen sc1
        s_mov_b64 exec, -1
        """)
        a.label("L_ffn_nod3")
        self.stamp(7)
        a(f"s_cmp_eq_u32 s{sWAVE}, {self.FINW}")
        a.branch("s_cbranch_scc0 L_fin")
        a(f"s_cmp_lt_u32 s{sIDX}, 36")
        a.branch("s_cbranch_scc0 L_fin")
        a(f"""
        v_lshrrev_b32 v1, 2, v0
        v_mul_u32_u24 v2, 2304, v1
        v_and_b32 v3, 3, v0
        v_lshl_add_u32 v2, v3, 4, v2
        v_cmp_gt_u32 vcc, 8, v1
        v_mov_b32 v8, 0x7ffffff0
        v_cndmask_b32 v8, v8, v2, vcc
        v_lshlrev_b32 v9, 4, v3
        s_lshl_b32 s30, s{sIDX}, 6
        v_add_u32 v9, s30, v9
        v_lshrrev_b32 v10, 1, v9
        ds_read_b128 v[40:43], v9 offset:{X1_LDS}
        s_add_u32 s92, s30, {WS_T3}
        s_add_u32 s93, s92, {16*2304}
        s_add_u32 s94, s92, {32*2304}
        s_add_u32 s95, s92, {48*2304}
        s_add_u32 s96, s92, {64*2304}
        """)
        self.poll_begin("L_t3poll")
        for t in range(5):
            a(f"buffer_load_dwordx4 {vr(16+4*t,4)}, v{2 if t < 4 else 8}, {srd(S_WS)}, s{92+t} offen sc1")
        for t in range(1, 5):
            a(f"s_waitcnt vmcnt({4-t})")
            a(f"v_pk_add_f32 v[16:17], v[16:17], {vr(16+4*t,2)}")
            a(f"v_pk_add_f32 v[18:19], v[18:19], {vr(18+4*t,2)}")
        self.row_allreduce("add", [16, 17, 18, 19], shifts=(8, 4))
        self.cross_rows("add", [16, 17, 18, 19], [20, 21, 22, 23])
        a("v_add_f32 v24, v16, v17")
        a("v_add_f32 v25, v18, v19")
        a("v_add_f32 v24, v24, v25")
        a("v_cmp_u_f32 vcc, v24, v24")
        self.poll_end("L_t3poll")
        for r in range(4): self.rnd(16 + r, 16 + r)
        a(f"""
        v_lshlrev_b32 v20, 16, v{self.GBQ}
        v_and_b32 v21, 0xffff0000, v{self.GBQ}
        v_lshlrev_b32 v22, 16, v{self.GBQ+2}
        v_and_b32 v23, 0xffff0000, v{self.GBQ+2}
        s_waitcnt lgkmcnt(0)
        v_pk_mul_f32 v[16:17], v[16:17], v[20:21]
        v_pk_mul_f32 v[18:19], v[18:19], v[22:23]
        """)
        for r in range(4): self.rnd(16 + r, 16 + r)
        a(f"""
        v_pk_add_f32 v[16:17], v[16:17], v[40:41]
        v_pk_add_f32 v[18:19], v[18:19], v[42:43]
        v_cvt_pk_bf16_f32 v16, v16, v17
        v_cvt_pk_bf16_f32 v17, v18, v19
        s_mov_b64 exec, 0xf
        buffer_store_dwordx2 v[16:17], v10, {srd(S_OUT)}, 0 offen
        s_mov_b64 exec, -1
        """)
        a.label("L_fin")
        a("s_cmp_eq_u32 s2, 0")
        a("s_cbranch_scc0 L_fin2")
        a(f"s_cmp_eq_u32 s{sWAVE}, 7")
        a("s_cbranch_scc0 L_fin2")
        a(f"""
        s_load_dword s30, s[28:29], {WS_EPOCH}
        s_waitcnt lgkmcnt(0)
        s_add_u32 s30, s30, 1
        v_mov_b32 v16, s30
        v_mov_b32 v17, {WS_EPOCH}
        s_mov_b64 exec, 1
        buffer_store_dword v16, v17, {srd(S_WS)}, 0 offen sc1
        s_mov_b64 exec, -1
        """)
        a.label("L_fin2")
        self.stamp_flush()
        a("s_endpgm")

    def service(self):
        a = self.a
        a.label("L_service")
        if self.pdelay: a("s_mov_b32 s3, s98")
        AV = 16
        ASET = 40
        ACC = 48
        T4 = 52
        WA = 64
        WQ = 136
        XR = 208
        XP = 214
        CR = 216
        XV = 220
        NP = 232
        G = 64
        PROD = f"s_cmp_lt_i32 s{sPA}, 0"
        a(f"""
        s_setprio 3
        v_lshlrev_b32 v1, 1, v0
        v_lshlrev_b32 v3, 3, v0
        v_lshlrev_b32 v2, 2, v0
        v_lshlrev_b32 v8, 4, v0
        """)
        self.mk_sub(9, 10)
        a(f"""
        v_and_b32 v10, 7, v0
        v_lshlrev_b32 v10, 4, v10
        v_mul_u32_u24 v11, 6912, v9
        v_add_u32 v11, v11, v10
        v_lshl_add_u32 v12, v9, 13, v10
        v_mul_u32_u24 v13, {HD_P}, v9
        s_and_b32 s92, s{sPA}, 3
        s_lshr_b32 s93, s{sPA}, 2
        s_mul_i32 s94, s92, 288
        s_mul_i32 s95, s92, {144*6912}
        s_lshl_b32 s96, s93, 7
        s_add_u32 s95, s95, s96
        s_waitcnt lgkmcnt(0)
        """)
        self.mk_srd(S_C, 22, 1152)
        self.mk_srd(S_WMOD, 24, 576 * 3456 * 2)
        a(PROD)
        a("s_cbranch_scc1 L_sv_nop1a")
        for i in range(3):
            a(f"buffer_load_ushort v{CR+i}, v1, {srd(S_C)}, s94 offen offset:{128*i}")
        for t in range(18):
            a(f"buffer_load_dwordx4 {vr(WA+4*t,4)}, v11, {srd(S_WMOD)}, s95 offen nt")
            if t < 17: a(f"s_add_u32 s95, s95, {8*6912}")
        a.label("L_sv_nop1a")
        a(f"v_mov_b32 v56, {7*self.R}")
        a("v_mov_b32 v57, 0")
        a("v_mov_b32 v58, 0")
        a("v_mov_b32 v59, 0")
        a(f"ds_write_b128 v57, v[56:59] offset:{CTR_LDS}")
        a(f"ds_write_b32 v57, v57 offset:{DFL_LDS}")
        a("s_waitcnt lgkmcnt(0)")
        if self.binit and not self.binit_late: a("s_barrier")
        a(f"s_load_dword s{sTAG}, s[28:29], {WS_EPOCH}")
        self.tab_init()
        self.mk_srd(S_X, 4, 1152)
        self.mk_srd(S_WQ, 10, 576 * 4096 * 2)
        for j in range(3):
            a(f"buffer_load_dwordx2 {vr(XR+2*j,2)}, v3, {srd(S_X)}, 0 offen offset:{512*j}")
        a(f"""
        s_lshr_b32 s96, s{sJ}, 2
        s_mul_i32 s97, s96, 288
        buffer_load_dword v{XP}, v2, {srd(S_X)}, s97 offen
        buffer_load_dword v{XP+1}, v2, {srd(S_X)}, s97 offen offset:256
        s_mul_i32 s98, s96, {144*8192}
        s_lshl_b32 s99, s{sG}, 9
        s_add_u32 s98, s98, s99
        s_and_b32 s99, s{sJ}, 3
        s_lshl_b32 s99, s99, 7
        s_add_u32 s98, s98, s99
        """)
        for t in range(18):
            a(f"buffer_load_dwordx4 {vr(WQ+4*t,4)}, v12, {srd(S_WQ)}, s98 offen nt")
            if t < 17: a(f"s_add_u32 s98, s98, {8*8192}")
        if self.binit and self.binit_late: a("s_barrier")
        self.mk_srd(S_WS, 28, WS_SIZE)
        self.mk_masks(56, 57, 58)
        a("s_waitcnt lgkmcnt(0)")
        a(f"s_mul_i32 s{sTAG}, s{sTAG}, 0x9E3779B1")
        a(f"s_add_u32 s{sTAG}, s{sTAG}, 0x7F4A7C15")
        self.stamp(0)
        a(f"""
        v_and_b32 v15, 7, v0
        v_lshlrev_b32 v15, 6, v15
        v_lshrrev_b32 v56, 4, v0
        v_lshl_add_u32 v15, v56, 5, v15
        v_and_b32 v56, 7, v0
        v_mul_u32_u24 v56, {HD_P}, v56
        v_lshrrev_b32 v57, 3, v0
        v_lshl_add_u32 v56, v57, 2, v56
        """)
        a(PROD)
        a.branch("s_cbranch_scc1 L_sv_nop1b")
        a("s_waitcnt vmcnt(41)")
        for i in range(3):
            a(f"v_lshlrev_b32 v{CR+i}, 16, v{CR+i}")
            self.silu(CR + i, T4 + i, 58, 59)
        a(f"ds_write_b32 v56, v{T4} offset:{HD_LDS}")
        a(f"ds_write_b32 v56, v{T4+1} offset:{HD_LDS+32}")
        a("s_mov_b64 exec, 0xffff")
        a(f"ds_write_b32 v56, v{T4+2} offset:{HD_LDS+64}")
        a("s_mov_b64 exec, -1")
        a("s_waitcnt lgkmcnt(0)")
        for q in range(5):
            a(f"ds_read_b128 {vr(AV+4*q,4)}, v13 offset:{HD_LDS+16*q}")
        a("s_waitcnt lgkmcnt(0)")
        waits = {t: f"s_waitcnt vmcnt({23 + 15 - t})" for t in range(0, 18, 3)}
        self.gemv(WA, 18, [AV + t for t in range(18)], ASET, ACC, True, waits)
        self.halfsum(ACC, T4)
        self.publish_f32(ACC, 15, None)
        a(f"""
        s_and_b32 s92, s{sPA}, 3
        s_mul_i32 s92, s92, {P1S}
        s_lshr_b32 s93, s{sPA}, 2
        s_lshl_b32 s93, s93, 9
        s_add_u32 s92, s92, s93
        s_add_u32 s92, s92, {WS_P1}
        """)
        self.publish_store(15, "s92")
        a.label("L_sv_nop1b")
        self.stamp(1)
        a("s_waitcnt vmcnt(18)")
        for j in range(3):
            for d in range(2):
                a(f"v_lshlrev_b32 v{XV+4*j+2*d}, 16, v{XR+2*j+d}")
                a(f"v_and_b32 v{XV+4*j+2*d+1}, 0xffff0000, v{XR+2*j+d}")
        a(f"v_add_f32 v56, v{XV}, v{XV+1}")
        for k in range(2, 12):
            a(f"v_add_f32 v56, v56, v{XV+k}")
        self.row_allreduce("add", [56])
        self.cross_rows("add", [56], [57])
        a(f"v_mul_f32 v56, {f32(1.0/576.0)}, v56")
        a("v_mov_b32 v57, 0")
        for k in range(8):
            a(f"v_sub_f32 v58, v{XV+k}, v56")
            a("v_fmac_f32 v57, v58, v58")
        a("s_mov_b64 exec, 0xffff")
        for k in range(8, 12):
            a(f"v_sub_f32 v58, v{XV+k}, v56")
            a("v_fmac_f32 v57, v58, v58")
        a("s_mov_b64 exec, -1")
        self.row_allreduce("add", [57])
        self.cross_rows("add", [57], [58])
        a(f"v_mul_f32 v57, {f32(1.0/576.0)}, v57")
        self.ln_finish(56, 57)
        a(f"v_lshlrev_b32 v{NP}, 16, v{XP}")
        a(f"v_and_b32 v{NP+1}, 0xffff0000, v{XP}")
        a(f"v_lshlrev_b32 v{NP+2}, 16, v{XP+1}")
        a(f"v_and_b32 v{NP+3}, 0xffff0000, v{XP+1}")
        for k in range(4): a(f"v_sub_f32 v{NP+k}, v{NP+k}, v56")
        for k in range(4): self.rnd(NP + k, NP + k)
        for k in range(4): a(f"v_mul_f32 v{NP+k}, v{NP+k}, v57")
        for k in range(4): self.rnd(NP + k, NP + k)
        a(f"""
        v_min_u32 v58, 7, v0
        v_lshlrev_b32 v58, 4, v58
        v_add_u32 v58, 1024, v58
        s_lshr_b32 s96, s{sJ}, 2
        s_mul_i32 s96, s96, 1152
        s_add_u32 s92, s96, {WS_P1}
        s_add_u32 s93, s92, {P1S}
        s_add_u32 s94, s92, {2*P1S}
        s_add_u32 s95, s92, {3*P1S}
        s_add_u32 s96, s92, 4608
        s_add_u32 s97, s93, 4608
        s_add_u32 s98, s94, 4608
        s_add_u32 s99, s95, 4608
        v_and_b32 v59, 3, v0
        v_mul_u32_u24 v59, {2*HD_P}, v59
        v_lshrrev_b32 v57, 2, v0
        v_lshl_add_u32 v59, v57, 2, v59
        """)
        a(f"s_cmp_eq_u32 s{sJ}, 0")
        a("s_cbranch_scc0 L_sv_noinit")
        a(f"""
        s_mul_i32 s30, s{sG}, {self.pstride}
        s_add_u32 s30, s30, {WS_POOL}
        v_mov_b32 v56, {self.PBASE if self.nb else 0}
        v_mov_b32 v57, 0
        s_mov_b64 exec, 1
        buffer_store_dword v56, v57, {srd(S_WS)}, s30 offen sc1
        s_mov_b64 exec, -1
        """)
        a.label("L_sv_noinit")
        self.stamp(2)
        self.xdelay("L_xd1", 0)
        self.poll_begin("L_p1poll")
        for s in range(4):
            a(f"buffer_load_dwordx4 {vr(G+16*s,4)}, v8, {srd(S_WS)}, s{92+s} offen sc1")
            a(f"buffer_load_dwordx4 {vr(G+16*s+8,4)}, v8, {srd(S_WS)}, s{96+s} offen sc1")
        for s in range(4):
            a(f"buffer_load_dwordx4 {vr(G+16*s+4,4)}, v58, {srd(S_WS)}, s{92+s} offen sc1")
            a(f"buffer_load_dwordx4 {vr(G+16*s+12,4)}, v58, {srd(S_WS)}, s{96+s} offen sc1")
        a("s_waitcnt vmcnt(0)")
        self.tagcheck([G + 2 * k + 1 for k in range(32)], 56, 57)
        self.poll_end("L_p1poll")
        if self.stamps: a(f"v_writelane_b32 v{V_ST}, s{sCNT}, 6")
        self.stamp(3)
        for o in (0, 2, 4, 6, 8, 10, 12, 14):
            a(f"v_add_f32 v{G+o}, v{G+o}, v{G+16+o}")
            a(f"v_add_f32 v{G+32+o}, v{G+32+o}, v{G+48+o}")
        for o in (0, 2, 4, 6, 8, 10, 12, 14):
            a(f"v_add_f32 v{G+o}, v{G+o}, v{G+32+o}")
        for o in (0, 2, 4, 6, 8, 10, 12, 14):
            self.rnd(G + o, G + o)
        pairs = [(0, 0, 8), (1, 2, 10), (2, 4, 12), (3, 6, 14)]
        for k, so, co in pairs: a(f"v_add_f32 v{G+co}, 1.0, v{G+co}")
        for k, so, co in pairs: self.rnd(G + co, G + co)
        for k, so, co in pairs: a(f"v_mul_f32 v{G+co}, v{G+co}, v{NP+k}")
        for k, so, co in pairs: self.rnd(G + co, G + co)
        for k, so, co in pairs: a(f"v_add_f32 v{G+co}, v{G+co}, v{G+so}")
        for k, so, co in pairs: a(f"v_cvt_pk_bf16_f32 v{G+co}, v{G+co}, v{G+co}")
        a(f"v_add_u32 v59, {HD_LDS}, v59")
        a(f"ds_write2_b32 v59, v{G+8}, v{G+10} offset0:0 offset1:{HD_P//4}")
        a("s_mov_b64 exec, 0xff")
        a(f"ds_write2_b32 v59, v{G+12}, v{G+14} offset0:16 offset1:{16 + HD_P//4}")
        a("s_mov_b64 exec, -1")
        a("s_waitcnt lgkmcnt(0)")
        for q in range(5):
            a(f"ds_read_b128 {vr(AV+4*q,4)}, v13 offset:{HD_LDS+16*q}")
        a(f"""
        s_lshl_b32 s92, s{sG}, 2
        s_lshr_b32 s93, s{sJ}, 2
        s_add_u32 s92, s92, s93
        s_lshl_b32 s92, s92, 11
        s_and_b32 s93, s{sJ}, 3
        s_lshl_b32 s93, s93, 9
        s_add_u32 s92, s92, s93
        s_add_u32 s92, s92, {WS_P2}
        s_lshl_b32 s93, s{sG}, 13
        s_add_u32 s93, s93, {WS_P2}
        s_add_u32 s94, s93, 2048
        s_add_u32 s95, s93, 4096
        s_add_u32 s96, s93, 6144
        s_waitcnt lgkmcnt(0)
        """)
        self.gemv(WQ, 18, [AV + t for t in range(18)], ASET, ACC, True)
        self.halfsum(ACC, T4)
        self.publish_f32(ACC, 15, None)
        self.publish_store(15, "s92")
        self.stamp(4)
        self.xdelay("L_xd2", 1)
        self.poll_begin("L_p2poll")
        for kp in range(4):
            for hf in range(2):
                a(f"buffer_load_dwordx4 {vr(G+8*kp+4*hf,4)}, v8, {srd(S_WS)}, s{93+kp} offen offset:{1024*hf} sc1")
        a("s_waitcnt vmcnt(0)")
        self.tagcheck([G + 2 * k + 1 for k in range(16)], 56, 57)
        self.poll_end("L_p2poll")
        if self.stamps: a(f"v_writelane_b32 v{V_ST}, s{sCNT}, 9")
        for o in (0, 2, 4, 6):
            a(f"v_add_f32 v{G+o}, v{G+o}, v{G+8+o}")
            a(f"v_add_f32 v{G+16+o}, v{G+16+o}, v{G+24+o}")
        for o in (0, 2, 4, 6):
            a(f"v_add_f32 v{G+o}, v{G+o}, v{G+16+o}")
        a(f"v_cvt_pk_bf16_f32 v{G}, v{G}, v{G+2}")
        a(f"v_cvt_pk_bf16_f32 v{G+4}, v{G+4}, v{G+6}")
        a(f"ds_write_b32 v2, v{G} offset:{Q_LDS}")
        a(f"ds_write_b32 v2, v{G+4} offset:{Q_LDS+256}")
        if self.dbg:
            a(f"s_lshl_b32 s92, s2, 9")
            a(f"s_add_u32 s92, s92, {WS_DBG + 0x80000}")
            a(f"buffer_store_dword v{G}, v2, {srd(S_WS)}, s92 offen")
            a(f"buffer_store_dword v{G+4}, v2, {srd(S_WS)}, s92 offen offset:256")
        a("s_waitcnt lgkmcnt(0)")
        if self.qflag:
            a("v_mov_b32 v56, 0")
            a("v_mov_b32 v57, 1")
            a(f"ds_write_b32 v56, v57 offset:{QFL_LDS}")
            self.stamp(5)
        else:
            self.stamp(5)
            a("s_barrier")
        a("s_setprio 1")
        a(f"s_cmp_eq_u32 s{sCLS}, 0")
        a.branch("s_cbranch_scc0 L_sv_now")
        self.mk_srd(S_WU, 18, 576 * 4608 * 2)
        self.mk_srd(S_WD, 20, 4608 * 576 * 2)
        a(f"""
        v_mul_u32_u24 v56, 9216, v9
        v_add_u32 v56, v56, v10
        v_mul_u32_u24 v57, 1152, v9
        v_add_u32 v57, v57, v10
        s_lshl_b32 s92, s{sIDX}, 7
        s_add_u32 s92, s92, {3 * 144 * 9216}
        """)
        for t in range(18):
            a(f"buffer_load_dwordx4 {vr(self.GUq(t),4)}, v56, {srd(S_WU)}, s92 offen nt")
            if t < 17: a(f"s_add_u32 s92, s92, {8*9216}")
        a(f"s_mul_i32 s92, s{sIDX}, {64*1152}")
        a(f"s_add_u32 s92, s92, {7*128}")
        a(f"s_add_u32 s93, s92, 128")
        for t in range(8):
            a(f"buffer_load_dwordx4 {vr(self.WDq(t),4)}, v57, {srd(S_WD)}, s92 offen nt")
            a(f"buffer_load_dwordx4 {vr(self.WDXq(t),4)}, v57, {srd(S_WD)}, s93 offen nt")
            if t < 7:
                a(f"s_add_u32 s92, s92, {8*1152}")
                a(f"s_add_u32 s93, s93, {8*1152}")
        a.label("L_sv_now")
        a(f"""
        v_mov_b32 v44, -1
        v_mov_b32 v45, -1
        v_mov_b32 v46, -1
        v_mov_b32 v47, -1
        s_lshl_b32 s30, s2, 10
        s_add_u32 s30, s30, {WS_T1O}
        buffer_store_dwordx4 v[44:47], v8, {srd(S_WS)}, s30 offen sc1
        s_mov_b64 exec, 1
        s_lshl_b32 s30, s2, 4
        s_add_u32 s30, s30, {WS_T1ML}
        buffer_store_dwordx4 v[44:47], v8, {srd(S_WS)}, s30 offen sc1
        s_mov_b64 exec, -1
        s_cmp_eq_u32 s{sCLS}, 1
        s_cbranch_scc1 L_sv_clr_done
        s_cmp_eq_u32 s{sCLS}, 0
        s_cbranch_scc1 L_sv_clr_ffn
        s_mul_i32 s30, s{sG}, 2304
        s_lshl_b32 s92, s{sIDX}, 8
        s_add_u32 s30, s30, s92
        s_add_u32 s30, s30, {WS_T2}
        s_mov_b64 exec, 0xffff
        buffer_store_dwordx4 v[44:47], v8, {srd(S_WS)}, s30 offen sc1
        s_mov_b64 exec, -1
        s_branch L_sv_clr_done
        """)
        a.label("L_sv_clr_ffn")
        a(f"""
        s_mul_i32 s30, s{sIDX}, 2304
        s_add_u32 s30, s30, {WS_T3}
        buffer_store_dwordx4 v[44:47], v8, {srd(S_WS)}, s30 offen sc1
        buffer_store_dwordx4 v[44:47], v8, {srd(S_WS)}, s30 offen offset:1024 sc1
        s_mov_b64 exec, 0xffff
        buffer_store_dwordx4 v[44:47], v8, {srd(S_WS)}, s30 offen offset:2048 sc1
        s_mov_b64 exec, -1
        """)
        a.label("L_sv_clr_done")
        a(f"""
        s_waitcnt vmcnt(0)
        v_mov_b32 v44, s{sTAG}
        s_lshl_b32 s30, s2, 2
        s_add_u32 s30, s30, {WS_HELLO}
        v_mov_b32 v45, 0
        s_mov_b64 exec, 1
        buffer_store_dword v44, v45, {srd(S_WS)}, s30 offen sc1
        s_mov_b64 exec, -1
        """)
        self.mk_srd(S_WD, 20, 4608 * 576 * 2)
        self.mk_srd(S_OUT, 26, 1152)
        self.stamp(8)
        a(f"s_cmp_lg_u32 s{sCLS}, 1")
        a.branch("s_cbranch_scc1 L_broker")
        a(f"s_cmp_lt_u32 s{sIDX}, 36")
        a.branch("s_cbranch_scc0 L_broker")
        a(f"""
        v_and_b32 v56, 31, v0
        v_lshlrev_b32 v57, 3, v56
        v_lshlrev_b32 v56, 4, v56
        s_lshl_b32 s92, s{sIDX}, 9
        s_add_u32 s92, s92, {WS_P1 + 1152 * 8}
        s_add_u32 s93, s92, {P1S}
        s_add_u32 s94, s92, {2 * P1S}
        s_add_u32 s95, s92, {3 * P1S}
        """)
        self.poll_begin("L_p3bpoll")
        for k in range(4):
            a(f"buffer_load_dwordx4 {vr(64+4*k,4)}, v56, {srd(S_WS)}, s{92+k} offen sc1")
        a("s_waitcnt vmcnt(0)")
        self.tagcheck([64 + 2 * k + 1 for k in range(8)], 58, 59)
        self.poll_end("L_p3bpoll")
        a(f"""
        v_add_f32 v64, v64, v68
        v_add_f32 v72, v72, v76
        v_add_f32 v66, v66, v70
        v_add_f32 v74, v74, v78
        v_add_f32 v64, v64, v72
        v_add_f32 v66, v66, v74
        v_cvt_pk_bf16_f32 v64, v64, v66
        v_mov_b32 v65, s{sTAG}
        s_lshl_b32 s30, s{sIDX}, 8
        s_add_u32 s30, s30, {WS_P3}
        s_mov_b64 exec, 0xffffffff
        buffer_store_dwordx2 v[64:65], v57, {srd(S_WS)}, s30 offen sc1
        s_mov_b64 exec, -1
        """)
        self.stamp(12)
        a.branch("s_branch L_broker")
        self.broker()
        a(f"s_cmp_eq_u32 s{sCLS}, 1")
        a.branch("s_cbranch_scc1 L_sv_b1")
        a.label("L_sv_hello")
        a(f"s_mov_b32 s30, {WS_HELLO}")
        self.poll_begin("L_hpoll")
        a(f"buffer_load_dwordx4 v[48:51], v8, {srd(S_WS)}, s30 offen sc1")
        a("s_waitcnt vmcnt(0)")
        self.tagcheck([48, 49, 50, 51], 58, 59)
        self.poll_end("L_hpoll")
        a("v_mov_b32 v58, 0")
        a("v_mov_b32 v59, 1")
        a(f"ds_write_b32 v58, v59 offset:{HFL_LDS}")
        a.label("L_sv_b1")
        self.stamp(14)

    def pool_map(self, dst, p, t0):
        a = self.a
        a(f"""
        v_bfe_u32 v{dst}, v{p}, 2, 4
        v_lshlrev_b32 v{dst}, 19, v{dst}
        v_lshrrev_b32 v{t0}, 6, v{p}
        v_lshlrev_b32 v{t0}, 2, v{t0}
        v_and_or_b32 v{t0}, v{p}, 3, v{t0}
        v_add_u32 v{t0}, {self.NS}, v{t0}
        v_lshl_add_u32 v{dst}, v{t0}, 12, v{dst}
        v_or_b32 v{dst}, 1, v{dst}
        """)

    def tab_init(self):
        a = self.a
        a("""
        v_mov_b32 v56, 0
        v_mov_b32 v57, 0
        v_mov_b32 v58, 0
        v_mov_b32 v59, 0
        """)
        n = (self.P + 64 + 255) // 256
        for k in range(n):
            a(f"ds_write_b128 v8, v[56:59] offset:{TAB_LDS + 1024 * k}")

    PBASE = 0x10000
    nb = False
    def broker2(self):
        a = self.a
        N, X, NS, P = self.BN, self.BX, self.NS, self.P
        PL = 16; sI = 53; sF = 54; BASE = self.PBASE
        a.label("L_broker")
        a(f"""
        s_mul_i32 s{sPOOL}, s{sG}, {self.pstride}
        s_add_u32 s{sPOOL}, s{sPOOL}, {WS_POOL}
        v_mov_b32 v57, 0
        v_mov_b32 v{PL}, {N}
        s_mov_b32 s{sREQ}, {NS - X}
        s_mov_b32 s{sFILL}, 0
        s_mov_b32 s{sI}, 0
        s_mov_b32 s{sF}, 0
        s_mov_b32 s{sQ2}, {P}
        s_cmp_eq_u32 s{sCLS}, 0
        s_cselect_b32 s{sQ2}, {min(self.QF, P)}, s{sQ2}
        s_cbranch_scc0 L_bk_nq3
        s_and_b32 s92, s{sIDX}, 7
        s_cmp_eq_u32 s92, 3
        s_cselect_b32 s{sQ2}, {min(self.QF3, P)}, s{sQ2}
        L_bk_nq3:
        s_waitcnt vmcnt(0)
        s_mov_b32 s{sCNT}, {SPIN * 8}
        """)
        def fill():
            a(f"v_readlane_b32 s92, v{PL}, s{sF}")
            a(f"s_sub_u32 s92, s92, {BASE}")
            a(f"s_min_u32 s92, s92, {P}")
            a(f"s_sub_u32 s93, {P}, s92")
            a(f"s_min_u32 s93, s93, {N}")
            a(f"v_add_u32 v59, s92, v0")
            self.pool_map(60, 59, 61)
            a(f"s_lshl_b32 s94, s{sFILL}, 2")
            a(f"v_add_u32 v59, s94, v2")
            a(f"v_cmp_gt_u32 vcc, s93, v0")
            a(f"s_and_b64 exec, vcc, -1")
            a(f"ds_write_b32 v59, v60 offset:{TAB_LDS}")
            a("s_mov_b64 exec, -1")
            a(f"s_add_u32 s{sFILL}, s{sFILL}, s93")
            a(f"s_add_u32 s{sF}, s{sF}, 1")
            a(f"s_add_u32 s92, s92, {N}")
            a(f"s_cmp_ge_u32 s92, s{sQ2}")
        first = True
        a.label("L_bk_loop")
        a(f"ds_read_b32 v58, v57 offset:{CTR_LDS}")
        a(f"v_cmp_le_u32 vcc, {BASE}, v{PL}")
        a(f"s_cmp_lt_u32 s{sF}, s{sI}")
        a("s_cbranch_scc0 L_bk_nofill")
        a(f"s_bitcmp1_b64 vcc, s{sF}")
        a("s_cbranch_scc0 L_bk_nofill")
        fill()
        a.branch("s_cbranch_scc1 L_bk_drain")
        a.label("L_bk_nofill")
        a("s_waitcnt lgkmcnt(0)")
        a(f"v_readfirstlane_b32 s{sBC}, v58")
        a(f"s_cmp_gt_u32 s{sBC}, s{sREQ}")
        a("s_cbranch_scc0 L_bk_noreq")
        a(f"s_cmp_lt_u32 s{sI}, 64")
        a("s_cbranch_scc0 L_bk_wrap")
        a(f"s_lshl_b64 exec, 1, s{sI}")
        a(f"buffer_atomic_add v{PL}, v57, {srd(S_WS)}, s{sPOOL} offen {self.atom_flags}")
        a("s_mov_b64 exec, -1")
        a(f"s_add_u32 s{sREQ}, s{sREQ}, {N}")
        a(f"s_add_u32 s{sI}, s{sI}, 1")
        if self.stamps:
            a(f"s_cmp_eq_u32 s{sI}, 1")
            a("s_cbranch_scc0 L_bk_noreq")
            self.stamp(10)
        a.label("L_bk_noreq")
        a(f"s_sub_u32 s{sCNT}, s{sCNT}, 1")
        a(f"s_cmp_lg_u32 s{sCNT}, 0")
        a.branch("s_cbranch_scc1 L_bk_loop")
        a.branch("s_branch L_bk_drain")
        a.label("L_bk_wrap")
        a(f"s_cmp_eq_u32 s{sF}, 64")
        a("s_cbranch_scc0 L_bk_noreq")
        a(f"v_mov_b32 v{PL}, {N}")
        a(f"s_mov_b32 s{sI}, 0")
        a(f"s_mov_b32 s{sF}, 0")
        a.branch("s_branch L_bk_noreq")
        a.label("L_bk_drain")
        a("s_waitcnt vmcnt(0) lgkmcnt(0)")
        a.label("L_bk_dl")
        a(f"s_cmp_ge_u32 s{sF}, s{sI}")
        a("s_cbranch_scc1 L_bk_dd")
        fill()
        a.branch("s_branch L_bk_dl")
        a.label("L_bk_dd")
        a(f"""
        s_lshl_b32 s94, s{sFILL}, 2
        v_add_u32 v59, s94, v2
        v_mov_b32 v60, {STOP:#x}
        ds_write_b32 v59, v60 offset:{TAB_LDS}
        """)
        self.stamp(11)

    def broker(self):
        if self.nb: return self.broker2()
        a = self.a
        N, D, X, NS, P = self.BN, self.BD, self.BX, self.NS, self.P
        PL = 16
        a.label("L_broker")
        a(f"""
        s_mul_i32 s{sPOOL}, s{sG}, {self.pstride}
        s_add_u32 s{sPOOL}, s{sPOOL}, {WS_POOL}
        v_mov_b32 v57, 0
        s_mov_b32 s{sREQ}, {NS - X}
        s_mov_b32 s{sFILL}, 0
        s_mov_b32 s{sQ2}, {P}
        s_cmp_eq_u32 s{sCLS}, 0
        s_cselect_b32 s{sQ2}, {min(self.QF, P)}, s{sQ2}
        s_cbranch_scc0 L_bk_nq3
        s_and_b32 s92, s{sIDX}, 7
        s_cmp_eq_u32 s92, 3
        s_cselect_b32 s{sQ2}, {min(self.QF3, P)}, s{sQ2}
        L_bk_nq3:
        s_waitcnt vmcnt(0)
        """)
        def trig(name):
            a(f"s_mov_b32 s{sCNT}, {SPIN * 4}")
            a.label(name)
            a(f"ds_read_b32 v58, v57 offset:{CTR_LDS}")
            a("s_waitcnt lgkmcnt(0)")
            a(f"v_readfirstlane_b32 s{sBC}, v58")
            a(f"s_cmp_gt_u32 s{sBC}, s{sREQ}")
            a(f"s_cbranch_scc1 {name}_ok")
            a(f"s_sub_u32 s{sCNT}, s{sCNT}, 1")
            a(f"s_cmp_lg_u32 s{sCNT}, 0")
            a.branch(f"s_cbranch_scc1 {name}")
            a.label(name + "_ok")
        def req(d):
            a("s_mov_b64 exec, 1")
            a(f"v_mov_b32 v{PL+d}, {N}")
            a(f"buffer_atomic_add v{PL+d}, v57, {srd(S_WS)}, s{sPOOL} offen {self.atom_flags}")
            a("s_mov_b64 exec, -1")
            a(f"s_add_u32 s{sREQ}, s{sREQ}, {N}")
        def fill(d):
            a(f"v_readfirstlane_b32 s92, v{PL+d}")
            a(f"s_min_u32 s92, s92, {P}")
            a(f"s_sub_u32 s93, {P}, s92")
            a(f"s_min_u32 s93, s93, {N}")
            a(f"v_add_u32 v59, s92, v0")
            self.pool_map(60, 59, 61)
            a(f"s_lshl_b32 s94, s{sFILL}, 2")
            a(f"v_add_u32 v59, s94, v2")
            a(f"v_cmp_gt_u32 vcc, s93, v0")
            a(f"s_and_b64 exec, vcc, -1")
            a(f"ds_write_b32 v59, v60 offset:{TAB_LDS}")
            a("s_mov_b64 exec, -1")
            a(f"s_add_u32 s{sFILL}, s{sFILL}, s93")
            a(f"v_mov_b32 v{PL+d}, {P}")
            a(f"s_add_u32 s92, s92, {N}")
            a(f"s_cmp_ge_u32 s92, s{sQ2}")
        trig("L_bk_w0")
        self.stamp(10)
        for d in range(D - 1): req(d)
        a.label("L_bk_loop")
        for d in range(D):
            trig(f"L_bk_t{d}")
            req((d + D - 1) % D)
            a(f"s_waitcnt vmcnt({D - 1})")
            fill(d)
            a.branch("s_cbranch_scc1 L_bk_drain")
        a.branch("s_branch L_bk_loop")
        a.label("L_bk_drain")
        a("s_waitcnt vmcnt(0)")
        for d in range(D): fill(d)
        a(f"""
        s_lshl_b32 s94, s{sFILL}, 2
        v_add_u32 v59, s94, v2
        v_mov_b32 v60, {STOP:#x}
        ds_write_b32 v59, v60 offset:{TAB_LDS}
        """)
        self.stamp(11)

    def publish_f32(self, ACC, vaddr, _):
        a = self.a
        for r in range(4):
            a(f"v_mov_b32 v{240+2*r}, v{ACC+r}")
            a(f"v_mov_b32 v{241+2*r}, s{sTAG}")

    def publish_store(self, vaddr, soff):
        a = self.a
        a(f"""
        s_mov_b32 s30, 0x00ff00ff
        s_mov_b32 s31, 0
        s_mov_b64 exec, s[30:31]
        buffer_store_dwordx4 v[240:243], v{vaddr}, {srd(S_WS)}, {soff} offen sc1
        buffer_store_dwordx4 v[244:247], v{vaddr}, {srd(S_WS)}, {soff} offen offset:16 sc1
        s_mov_b64 exec, -1
        """)

    def tail_service(self):
        a = self.a
        PRL = [92, 124, 156, 188, 220, 252, 144]
        a(f"""
        s_setprio 3
        v_lshrrev_b32 v1, 5, v0
        v_lshlrev_b32 v1, 5, v1
        s_lshl_b32 s92, s2, 10
        s_add_u32 s92, s92, {WS_T1O}
        s_lshl_b32 s93, s2, 4
        s_add_u32 s93, s93, {WS_T1ML}
        v_lshrrev_b32 v2, 5, v0
        v_lshlrev_b32 v2, 3, v2
        v_mov_b32 v3, 0
        s_waitcnt vmcnt(0) lgkmcnt(0)
        s_cmp_eq_u32 s{sCLS}, 0
        s_cbranch_scc1 L_ts_arr
        s_barrier
        s_branch L_ts_go
        """)
        a.label("L_ts_arr")
        self.lds_spin("L_arr", ARR_LDS, 7, 3, 9, 30)
        a.label("L_ts_go")
        a(f"""
        ds_read_b128 v[16:19], v1 offset:{ML_LDS}
        ds_read_b128 v[20:23], v1 offset:{ML_LDS+16}
        ds_read_b128 v[24:27], v1 offset:{ML_LDS+64}
        ds_read_b128 v[28:31], v1 offset:{ML_LDS+80}
        """)
        for w in range(7):
            a(f"ds_read_b128 {vr(PRL[w],4)}, v8 offset:{PART_LDS+1024*w}")
        self.stamp(7)
        a("s_waitcnt lgkmcnt(9)")
        a("v_max3_f32 v32, v16, v17, v18")
        a("v_max3_f32 v32, v32, v19, v20")
        a("v_max3_f32 v32, v32, v21, v22")
        for w in range(7):
            a(f"v_sub_f32 v{16+w}, v{16+w}, v32")
        for w in range(7):
            a(f"v_exp_f32 v{16+w}, v{16+w}")
        a("s_waitcnt lgkmcnt(7)")
        a("v_mul_f32 v33, v16, v24")
        for w in range(1, 7):
            a(f"v_fmac_f32 v33, v{16+w}, v{24+w}")
        for w in range(7):
            a(f"s_waitcnt lgkmcnt({6-w})")
            for r in range(4):
                if w == 0:
                    a(f"v_mul_f32 v{36+r}, v16, v{PRL[0]+r}")
                else:
                    a(f"v_fmac_f32 v{36+r}, v{16+w}, v{PRL[w]+r}")
        a(f"buffer_store_dwordx4 v[36:39], v8, {srd(S_WS)}, s92 offen sc1")
        a(f"""
        s_mov_b32 s30, 1
        s_mov_b32 s31, 1
        s_mov_b64 exec, s[30:31]
        buffer_store_dwordx2 v[32:33], v2, {srd(S_WS)}, s93 offen sc1
        s_mov_b64 exec, -1
        """)
        self.stamp(15)
        a(f"s_cmp_eq_u32 s{sCLS}, 2")
        a.branch("s_cbranch_scc1 L_wo_mm")
        a(f"s_cmp_eq_u32 s{sCLS}, 1")
        a.branch("s_cbranch_scc1 L_fin")
        if self.npre is not None: a("s_barrier")
        self.ffn_addr()
        a.branch("s_branch L_ffn_post")

    def build(self):
        a = self.a
        self.prologue()
        self.streaming()
        self.wo_tail()
        self.ffn_tail()
        self.service()
        self.tail_service()
        a.label("L_end")
        a("s_endpgm")
        return a.text()


def main():
    ap = argparse.ArgumentParser()
    ap.add_argument("-o", default="main3.s")
    ap.add_argument("--R", type=int, default=6)
    ap.add_argument("--pace", type=int, default=4)
    ap.add_argument("--loopgrp", type=int, default=8)
    ap.add_argument("--prowait", type=int, default=2)
    ap.add_argument("--progrp", type=int, default=4)
    ap.add_argument("--dmawait", type=int, default=32)
    ap.add_argument("--NS", type=int, default=112)
    ap.add_argument("--QF", type=int, default=200)
    ap.add_argument("--S", type=int, default=1)
    ap.add_argument("--BN", type=int, default=4)
    ap.add_argument("--BD", type=int, default=4)
    ap.add_argument("--BX", type=int, default=16)
    ap.add_argument("--wdrain", type=int, default=0)
    ap.add_argument("--dist", type=int, default=0)
    ap.add_argument("--nb", action="store_true")
    ap.add_argument("--pf", type=str, default=None)
    ap.add_argument("--pfn", type=str, default="4,5,7,13")
    ap.add_argument("--wpace", type=int, default=-1)
    ap.add_argument("--wpfirst", type=int, default=3)
    ap.add_argument("--fswap", action="store_true")
    ap.add_argument("--ppace", type=str, default="")
    ap.add_argument("--binitlate", action="store_true")
    ap.add_argument("--pdelay", type=str, default="")
    ap.add_argument("--npre", type=int, default=-1)
    ap.add_argument("--QF3", type=int, default=-1)
    ap.add_argument("--wodrain", type=int, default=0)
    ap.add_argument("--strip", action="store_true")
    ap.add_argument("--nobinit", action="store_true")
    ap.add_argument("--trace", action="store_true")
    ap.add_argument("--noqflag", action="store_true")
    ap.add_argument("--rot", action="store_true")
    ap.add_argument("--not2gate", action="store_true")
    ap.add_argument("--pstride", type=int, default=256)
    ap.add_argument("--aflags", type=str, default="sc0")
    ap.add_argument("--stamps", action="store_true")
    ap.add_argument("--dbg", action="store_true")
    args = ap.parse_args()
    assert args.NS - args.BX > 7 * args.R
    assert args.nb or args.BX >= (args.BD - 1) * args.BN
    assert args.pace + args.loopgrp <= 12 and args.prowait + args.progrp <= 12
    g = Gen(R=args.R, pace=args.pace, pro_wait=args.prowait, pro_grp=args.progrp, stamps=args.stamps, dbg=args.dbg,
            NS=args.NS, QF=args.QF, S=args.S, BN=args.BN, BD=args.BD, BX=args.BX, dma_wait=args.dmawait)
    g.loop_grp = args.loopgrp
    g.strip = args.strip
    g.QF3 = args.QF3 if args.QF3 >= 0 else args.QF
    g.npre = args.npre if args.npre >= 0 else None
    assert g.npre is None or g.npre < 26 - 6 * args.wdrain
    g.pdelay = [int(x) for x in args.pdelay.split(",")] if args.pdelay else None
    g.binit_late = args.binitlate
    g.wdrain = args.wdrain; g.wodrain = args.wodrain
    g.dist = args.dist
    g.nb = args.nb
    g.pf = None if args.pf is None else ("" if args.pf == "def" else args.pf)
    g.pfn = tuple(int(x) for x in args.pfn.split(","))
    g.wpace = args.wpace if args.wpace >= 0 else None
    g.wpace_first = args.wpfirst
    g.fswap = args.fswap
    g.ppace = [int(x) for x in args.ppace.split(",")] if args.ppace else None
    assert args.dist in (0, 2, 3) and not (args.dist and (args.wdrain or args.wodrain))
    assert args.wdrain in (0, 1, 2, 3, 4) and args.wodrain in (0, 2, 4, 8) and args.R == 6
    g.binit = not args.nobinit
    g.trace = args.trace
    g.qflag = not args.noqflag
    assert g.binit or not g.qflag
    g.rot = args.rot
    g.t2gate = not args.not2gate
    g.pstride = args.pstride
    g.atom_flags = args.aflags
    body = g.build()
    nv = 64 + 32 * args.R
    txt = wrap_single(body, 256, 512, LDS_SIZE, max(nv, 256))
    open(args.o, "w").write(txt)
    print(f"wrote {args.o}: {len(txt)} bytes, lds {LDS_SIZE}, nops {g.a.nops_inserted}")

if __name__ == "__main__":
    main()
```

```python
import sys, argparse, struct
from asmlib import *

WS_EPOCH = 0x0
WS_HELLO = 0x400
WS_P1 = 0x1000
P1S = 3456 * 8
WS_P3 = 0x1C000
WS_T1ML = 0x1F000
WS_T2 = 0x20000
WS_P2 = 0x30000
WS_T1O = 0x50000
WS_T3 = 0x90000
WS_POOL = 0xC0000
WS_DBG = 0x100000
WS_SIZE = 0x200000
WS_STAMP = 0x10000000

Q_LDS = 0x0000
O_LDS = 0x0200
ST_LDS = 0x0A00
CTR_LDS = 0x0A20
ARR_LDS = 0x0A24
HFL_LDS = 0x0A28
QFL_LDS = 0x0A2C
DFL_LDS = 0x0A30
ML_LDS = 0x0A40
HD_LDS = 0x0D00
HD_P = 80
X1_LDS = 0x1700
PART_LDS = 0x2400
IMG_LDS = 0x4000
HD2_LDS = 0x4000
PX_LDS = 0x5000
TAB_LDS = 0xC000
LDS_SIZE = 0xD000
STOP = 0x80000000

LOG2E = 0x3FB8AA3B
SCALE = 0x3DB504F3
SPIN = 50000

S_K, S_V, S_WS, S_X, S_C, S_WMOD, S_WQ, S_WO, S_WG, S_WU, S_WD, S_OUT = [32 + 4 * i for i in range(12)]
sTAG, sWAVE, sOFF, sCNT = 80, 81, 82, 83
sSCALE, sLOG2E, sG, sJ, sCLS, sIDX, sPA = 84, 86, 87, 88, 89, 90, 91
sP = 3
sST, sPEND, sQ, sPOOL, sGUB, sWDB, sOOB, sHOME, sLIM, sSPIN = 48, 49, 50, 51, 52, 53, 54, 55, 56, 57
sLANE = 58
sSKIP = 51
sMODE = 59
sDMN = 50
sREQ, sFILL, sBC, sQ2 = 48, 49, 50, 52
V_ST = 62


def srd(s):
    return f"s[{s}:{s+3}]"

def vr(b, n):
    return f"v[{b}:{b+n-1}]"

def f32(x):
    return hex(struct.unpack("<I", struct.pack("<f", x))[0])


class Gen:
    def __init__(self, R=6, pace=4, pro_wait=2, pro_grp=4, stamps=False, dbg=False,
                 NS=112, QF=200, S=1, BN=4, BD=4, BX=16, dma_wait=32):
        self.a = Asm()
        self.R = R; self.pace = pace; self.pro_wait = pro_wait; self.pro_grp = pro_grp
        self.stamps = stamps; self.dbg = dbg
        self.NS = NS; self.QF = QF; self.S = S; self.BN = BN; self.BD = BD; self.BX = BX; self.dma_wait = dma_wait
        self.T = 128 - NS; assert self.T % 4 == 0
        self.P = 16 * self.T
        assert self.P + 64 <= 1024 and BD <= 8

    def mk_srd(self, s, plo, size, add=None):
        a = self.a
        if add is None:
            a(f"s_mov_b32 s{s}, s{plo}")
            a(f"s_and_b32 s{s+1}, s{plo+1}, 0xffff")
        else:
            a(f"s_add_u32 s{s}, s{plo}, {add}")
            a(f"s_addc_u32 s{s+1}, s{plo+1}, 0")
            a(f"s_and_b32 s{s+1}, s{s+1}, 0xffff")
        a(f"s_mov_b32 s{s+2}, {size}")
        a(f"s_mov_b32 s{s+3}, 0x20000")

    def rnd(self, d, s):
        self.a(f"v_cvt_pk_bf16_f32 v{d}, 0, v{s}")

    def stamp(self, k):
        if not self.stamps: return
        a = self.a
        a("s_memrealtime s[100:101]")
        a("s_waitcnt lgkmcnt(0)")
        a(f"v_writelane_b32 v{V_ST}, s100, {k}")

    def stamp_flush(self):
        if not self.stamps: return
        a = self.a
        a(f"""
        s_mov_b64 exec, {-1 if self.trace else 0xffff}
        s_lshl_b32 s92, s2, 3
        s_add_u32 s92, s92, s{sWAVE}
        s_lshl_b32 s92, s92, {9 if self.trace else 7}
        s_add_u32 s92, s92, {WS_STAMP}
        s_add_u32 s92, s28, s92
        s_addc_u32 s93, s29, 0
        v_lshlrev_b32 v60, 3, v0
        v_mov_b32 v{V_ST+1}, 0
        global_store_dwordx2 v60, v[{V_ST}:{V_ST+1}], s[92:93]
        s_mov_b64 exec, -1
        """)

    def row_allreduce(self, op, regs, shifts=(8, 4, 2, 1)):
        a = self.a
        for sh in shifts:
            for r in regs:
                a(f"v_{op}_f32_dpp v{r}, v{r}, v{r} row_ror:{sh} row_mask:0xf bank_mask:0xf")

    def cross_rows(self, op, regs, tmps):
        a = self.a
        for sw in ("16", "32"):
            for r, t in zip(regs, tmps):
                a(f"v_mov_b32 v{t}, v{r}")
            for r, t in zip(regs, tmps):
                a(f"v_permlane{sw}_swap_b32 v{r}, v{t}")
            for r, t in zip(regs, tmps):
                a(f"v_{op}_f32 v{r}, v{r}, v{t}")

    def poll_begin(self, name):
        a = self.a
        a(f"s_mov_b32 s{sCNT}, {SPIN}")
        a.label(name)

    def poll_end(self, name):
        a = self.a
        ok = name + "_ok"
        a(f"s_cbranch_vccz {ok}")
        a(f"s_sub_u32 s{sCNT}, s{sCNT}, 1")
        a(f"s_cmp_lg_u32 s{sCNT}, 0")
        a.branch(f"s_cbranch_scc1 {name}")
        a.label(ok)

    def inc_poll(self, name, units, sm, after_wait=None):
        a = self.a
        n = len(units)
        a(f"s_mov_b32 s{sm}, {(1 << n) - 1}")
        a(f"s_mov_b32 s{sCNT}, {SPIN}")
        a.label(name)
        for u, (ld, ck, ov) in enumerate(units):
            a(f"s_bitcmp1_b32 s{sm}, {u}")
            a(f"s_cbranch_scc0 {name}_l{u}")
            ld()
            a.label(f"{name}_l{u}", fence=False)
        a("s_waitcnt vmcnt(0)")
        if after_wait: after_wait()
        for u, (ld, ck, ov) in enumerate(units):
            a(f"s_bitcmp1_b32 s{sm}, {u}")
            a(f"s_cbranch_scc0 {name}_c{u}")
            ck()
            a.branch(f"s_cbranch_vccnz {name}_c{u}")
            a(f"s_bitset0_b32 s{sm}, {u}")
            if ov: ov()
            a.label(f"{name}_c{u}")
        a(f"s_cmp_eq_u32 s{sm}, 0")
        a(f"s_cbranch_scc1 {name}_ok")
        a(f"s_sub_u32 s{sCNT}, s{sCNT}, 1")
        a(f"s_cmp_lg_u32 s{sCNT}, 0")
        a.branch(f"s_cbranch_scc1 {name}")
        a.label(name + "_ok")

    def lds_spin(self, name, off, val, vaddr, vt, st):
        a = self.a
        a(f"s_mov_b32 s{sCNT}, {SPIN * 4}")
        a.label(name)
        a(f"ds_read_b32 v{vt}, v{vaddr} offset:{off}")
        a("s_waitcnt lgkmcnt(0)")
        a(f"v_readfirstlane_b32 s{st}, v{vt}")
        a(f"s_cmp_eq_u32 s{st}, {val}")
        a(f"s_cbranch_scc1 {name}_ok")
        a(f"s_sub_u32 s{sCNT}, s{sCNT}, 1")
        a(f"s_cmp_lg_u32 s{sCNT}, 0")
        a.branch(f"s_cbranch_scc1 {name}")
        a.label(name + "_ok")

    def tagcheck(self, regs, t0, t1):
        a = self.a
        assert len(regs) % 2 == 0
        a(f"v_max_u32 v{t0}, v{regs[0]}, v{regs[1]}")
        a(f"v_min_u32 v{t1}, v{regs[0]}, v{regs[1]}")
        for k in range(2, len(regs), 2):
            a(f"v_max3_u32 v{t0}, v{t0}, v{regs[k]}, v{regs[k+1]}")
            a(f"v_min3_u32 v{t1}, v{t1}, v{regs[k]}, v{regs[k+1]}")
        a(f"v_xor_b32 v{t0}, s{sTAG}, v{t0}")
        a(f"v_xor_b32 v{t1}, s{sTAG}, v{t1}")
        a(f"v_or_b32 v{t0}, v{t0}, v{t1}")
        a(f"v_cmp_ne_u32 vcc, 0, v{t0}")

    def ln_finish(self, mean, var):
        a = self.a
        self.rnd(mean, mean)
        self.rnd(var, var)
        a(f"v_add_f32 v{var}, {f32(1e-5)}, v{var}")
        self.rnd(var, var)
        a(f"v_sqrt_f32 v{var}, v{var}")
        self.rnd(var, var)
        a(f"v_rcp_f32 v{var}, v{var}")

    vMK = 4

    def mk_masks(self, t0, t1, t2):
        a = self.a
        a(f"""
        v_and_b32 v{t2}, 1, v0
        v_mov_b32 v{t0}, 0xffff
        v_mov_b32 v{t1}, 0xffff0000
        v_cmp_eq_u32 vcc, 1, v{t2}
        v_cndmask_b32 v{t0}, v{t0}, v{t1}, vcc
        v_bfe_u32 v{t2}, v0, 1, 2
        """)
        for d in range(4):
            a(f"v_cmp_eq_u32 vcc, {d}, v{t2}")
            a(f"v_cndmask_b32 v{self.vMK+d}, 0, v{t0}, vcc")

    def mk_sub(self, d, t):
        a = self.a
        a(f"v_bfe_u32 v{d}, v0, 3, 1")
        a(f"v_lshrrev_b32 v{t}, 4, v0")
        a(f"v_lshl_add_u32 v{d}, v{d}, 2, v{t}")

    def gemv(self, W, n, AV, ASET, ACC, first, waits=None):
        a = self.a
        def build(t):
            s = ASET + 4 * (t & 1)
            for d in range(4):
                a(f"v_and_b32 v{s+d}, v{AV[t]}, v{self.vMK+d}")
        build(0)
        for t in range(n):
            if t + 1 < n: build(t + 1)
            if waits and t in waits: a(waits[t])
            s = ASET + 4 * (t & 1)
            c = "0" if (first and t == 0) else vr(ACC, 4)
            wr = W[t] if isinstance(W, (list, tuple)) else W + 4 * t
            a(f"v_mfma_f32_16x16x32_bf16 {vr(ACC,4)}, {vr(s,4)}, {vr(wr,4)}, {c}")

    def halfsum(self, ACC, T):
        a = self.a
        for r in range(4): a(f"v_mov_b32 v{T+r}, v{ACC+r}")
        for r in range(4): a(f"v_permlane32_swap_b32 v{ACC+r}, v{T+r}")
        for r in range(4): a(f"v_add_f32_dpp v{ACC+r}, v{T+r}, v{ACC+r} row_ror:8 row_mask:0xf bank_mask:0xf")

    def silu(self, c, o, t0, t1):
        a = self.a
        a(f"v_mul_f32 v{o}, s{sLOG2E}, v{c}")
        a(f"v_exp_f32 v{o}, -v{o}")
        a(f"v_add_f32 v{o}, 1.0, v{o}")
        a(f"v_rcp_f32 v{t0}, v{o}")
        a(f"v_mul_f32 v{t1}, v{t0}, v{c}")
        a(f"v_fma_f32 v{o}, -v{t1}, v{o}, v{c}")
        a(f"v_fma_f32 v{o}, v{o}, v{t0}, v{t1}")
        a(f"v_cvt_pk_bf16_f32 v{o}, v{o}, v{o}")

    def prologue(self):
        a = self.a
        if self.stamps: a("s_memrealtime s[98:99]")
        a(f"""
        s_cmp_ge_u32 s2, 256
        s_cbranch_scc1 L_end
        s_load_dwordx16 s[4:19], s[0:1], 0
        s_load_dwordx8 s[20:27], s[0:1], 64
        s_load_dwordx2 s[28:29], s[0:1], 104
        v_lshrrev_b32 v1, 6, v0
        v_and_b32 v0, 63, v0
        v_readfirstlane_b32 s{sWAVE}, v1
        """)
        if self.S == 1:
            a("""
            s_and_b32 s92, s2, 7
            s_lshr_b32 s93, s2, 3
            s_lshl_b32 s92, s92, 5
            s_or_b32 s2, s92, s93
            """)
        elif self.S == 2:
            a("""
            s_bfe_u32 s92, s2, 0x20001
            s_lshl_b32 s92, s92, 6
            s_bfe_u32 s93, s2, 0x20006
            s_lshl_b32 s93, s93, 4
            s_or_b32 s92, s92, s93
            s_and_b32 s93, s2, 1
            s_lshl_b32 s93, s93, 3
            s_or_b32 s92, s92, s93
            s_bfe_u32 s93, s2, 0x30003
            s_or_b32 s2, s92, s93
            """)
        elif self.S == 4:
            a("""
            s_bfe_u32 s92, s2, 0x10002
            s_lshl_b32 s92, s92, 7
            s_bfe_u32 s93, s2, 0x30005
            s_lshl_b32 s93, s93, 4
            s_or_b32 s92, s92, s93
            s_and_b32 s93, s2, 3
            s_lshl_b32 s93, s93, 2
            s_or_b32 s92, s92, s93
            s_bfe_u32 s93, s2, 0x20003
            s_or_b32 s2, s92, s93
            """)
        if self.rot:
            a("""
            s_lshr_b32 s92, s2, 4
            s_add_u32 s92, s92, s2
            s_and_b32 s92, s92, 15
            s_and_b32 s2, s2, 0xf0
            s_or_b32 s2, s2, s92
            """)
        a(f"""
        s_lshr_b32 s{sG}, s2, 4
        s_and_b32 s{sJ}, s2, 15
        s_and_b32 s{sP}, s{sG}, 1
        s_sub_u32 s92, 5, s{sP}
        s_sub_i32 s93, s{sJ}, 7
        s_max_i32 s93, s93, 0
        s_mov_b32 s{sLOG2E}, {LOG2E:#x}
        """)
        a(f"""
        s_mul_i32 s94, s{sG}, 14
        s_add_u32 s94, s94, s{sJ}
        s_sub_u32 s94, s94, 2
        s_cmp_lt_u32 s{sJ}, 2
        s_cselect_b32 s94, -1, s94
        s_cmp_lt_u32 s94, 216
        s_cselect_b32 s{sPA}, s94, -1
        s_mov_b32 s{sCLS}, 2
        s_mov_b32 s{sIDX}, s93
        s_cmp_lt_u32 s{sJ}, 7
        s_cbranch_scc0 L_cls_done
        s_lshr_b32 s95, s{sG}, 1
        s_cmp_lt_u32 s{sJ}, s92
        s_cbranch_scc0 L_cls_mid
        s_mov_b32 s{sCLS}, 0
        s_xor_b32 s{sIDX}, s{sG}, {1 if self.fswap else 0}
        s_lshl_b32 s{sIDX}, s{sIDX}, 2
        s_add_u32 s{sIDX}, s{sIDX}, s{sJ}
        s_add_u32 s95, s95, 64
        s_cmp_eq_u32 s{sJ}, 4
        s_cselect_b32 s{sIDX}, s95, s{sIDX}
        s_branch L_cls_done
        """)
        a.label("L_cls_mid", fence=False)
        a(f"""
        s_mov_b32 s{sCLS}, 1
        s_mul_i32 s96, s95, 3
        s_add_u32 s96, s96, s{sJ}
        s_sub_u32 s96, s96, 4
        s_lshl_b32 s97, s95, 1
        s_add_u32 s97, s97, s{sJ}
        s_add_u32 s97, s97, 19
        s_cmp_eq_u32 s{sP}, 1
        s_cselect_b32 s{sIDX}, s96, s97
        """)
        a.label("L_cls_done", fence=False)
        if self.stamps:
            a(f"v_mov_b32 v{V_ST}, 0")
            a("s_waitcnt lgkmcnt(0)")
            a(f"v_writelane_b32 v{V_ST}, s98, 13")
            self.stamp(6) if False else None
        a(f"""
        s_cmp_eq_u32 s{sWAVE}, 7
        s_cbranch_scc1 L_service
        """)

    vK, vV = 1, 2
    vL = 8
    vM = 10
    vA = 12
    vS = 16
    vO = 20
    vB = 24
    vP = 32
    vT = 36
    vQ = 44
    RING = 64

    def kreg(self, slot): return self.RING + 32 * slot
    def vreg(self, slot): return self.RING + 32 * slot + 16

    def issue(self, slot, grp=8, wait=None, step=True):
        a = self.a
        k = self.kreg(slot); v = self.vreg(slot)
        n = 0
        for i in range(4):
            if wait is not None and n % grp == 0: a(f"s_waitcnt vmcnt({wait})")
            a(f"buffer_load_dwordx4 {vr(k+4*i,4)}, v{self.vK}, {srd(S_K)}, s{sOFF} offen offset:{64*i} nt")
            n += 1
        for i in range(4):
            if wait is not None and n % grp == 0: a(f"s_waitcnt vmcnt({wait})")
            a(f"buffer_load_dwordx4 {vr(v+4*i,4)}, v{self.vV}, {srd(S_V)}, s{sOFF} offen offset:{256*i} nt")
            n += 1
        if step: a(f"s_add_u32 s{sOFF}, s{sOFF}, {7*4096}")

    def block(self, slot, wk, wv):
        a = self.a
        k = self.kreg(slot); v = self.vreg(slot)
        S = self.vS; O = self.vO; P = self.vP; T = self.vT; M = self.vM; A = self.vA; L = self.vL
        if self.dist:
            a("s_mov_b64 exec, 1")
            a(f"ds_add_rtn_u32 v{self.vTK}, v{self.vZ}, v{self.vOne} offset:{CTR_LDS}")
            a("s_mov_b64 exec, -1")
            a(f"s_cmp_le_u32 s{sCNT}, {self.dist - 1}")
        else:
            a("s_mov_b64 exec, 1")
            a(f"ds_add_rtn_u32 v{self.vTK}, v{self.vZ}, v{self.vOne} offset:{CTR_LDS}")
            a("s_mov_b64 exec, -1")
            a(f"s_cmp_le_u32 s{sCNT}, 2")
        a.branch(f"s_cbranch_scc1 L_dw_{slot}")
        a.label(f"L_dwb_{slot}", fence=False)
        a(f"s_waitcnt vmcnt({wk})")
        if self.strip:
            for i in range(4):
                a(f"v_mfma_f32_16x16x32_bf16 {vr(S,4)}, {vr(k+4*i,4)}, {vr(self.vQ+4*i,4)}, {vr(S,4)}")
            a(f"s_waitcnt vmcnt({wv})")
            for r in range(4):
                a(f"v_mfma_f32_16x16x32_bf16 {vr(O,4)}, {vr(v+4*r,4)}, {vr(self.vB,4)}, {vr(O,4)}")
        else:
            self.block_compute(slot, wk, wv)
        self.block_end(slot)

    strip = False
    qflag = True
    rot = False
    t2gate = True
    trace = False
    binit = True
    pstride = 256
    atom_flags = 'sc0'
    def block_compute(self, slot, wk, wv):
        a = self.a
        k = self.kreg(slot); v = self.vreg(slot)
        S = self.vS; O = self.vO; P = self.vP; T = self.vT; M = self.vM; A = self.vA; L = self.vL
        a(f"v_mfma_f32_16x16x32_bf16 {vr(S,4)}, {vr(k,4)}, {vr(self.vQ,4)}, 0")
        for i in range(1, 4):
            a(f"v_mfma_f32_16x16x32_bf16 {vr(S,4)}, {vr(k+4*i,4)}, {vr(self.vQ+4*i,4)}, {vr(S,4)}")
        for r in range(4):
            self.rnd(S + r, S + r)
        a(f"v_pk_mul_f32 {vr(S,2)}, {vr(S,2)}, s[{sSCALE}:{sSCALE+1}]")
        a(f"v_pk_mul_f32 {vr(S+2,2)}, {vr(S+2,2)}, s[{sSCALE}:{sSCALE+1}]")
        for r in range(4):
            self.rnd(S + r, S + r)
        a(f"v_max3_f32 v{T}, v{S}, v{S+1}, v{S+2}")
        a(f"v_max_f32 v{T}, v{T}, v{S+3}")
        self.cross_rows("max", [T], [T + 1])
        a(f"v_mul_f32 v{T}, s{sLOG2E}, v{T}")
        a(f"v_max_f32 v{T}, v{M}, v{T}")
        a(f"v_sub_f32 v{A}, v{M}, v{T}")
        a(f"v_exp_f32 v{A}, v{A}")
        a(f"v_mov_b32 v{M}, v{T}")
        for r in range(4):
            a(f"v_fma_f32 v{P+r}, v{S+r}, s{sLOG2E}, -v{T}")
        for r in range(4):
            a(f"v_exp_f32 v{P+r}, v{P+r}")
        a(f"v_pk_mul_f32 {vr(L,2)}, {vr(L,2)}, {vr(A,2)} op_sel_hi:[1,0]")
        a(f"v_pk_mul_f32 {vr(O,2)}, {vr(O,2)}, {vr(A,2)} op_sel_hi:[1,0]")
        a(f"v_pk_mul_f32 {vr(O+2,2)}, {vr(O+2,2)}, {vr(A,2)} op_sel_hi:[1,0]")
        a(f"v_pk_add_f32 {vr(L,2)}, {vr(L,2)}, {vr(P,2)}")
        a(f"v_pk_add_f32 {vr(L,2)}, {vr(L,2)}, {vr(P+2,2)}")
        for r in range(4):
            Bs = self.vB + 4 * (r & 1)
            a(f"v_cvt_pk_bf16_f32 v{T+2+r}, v{P+r}, v{P+r}")
            for d in range(4):
                a(f"v_and_b32 v{Bs+d}, v{T+2+r}, v{self.vMK+d}")
            if r == 0:
                a(f"s_waitcnt vmcnt({wv})")
            a(f"v_mfma_f32_16x16x32_bf16 {vr(O,4)}, {vr(v+4*r,4)}, {vr(Bs,4)}, {vr(O,4)}")

    def block_end(self, slot):
        a = self.a
        a("s_waitcnt lgkmcnt(0)")
        a(f"v_readfirstlane_b32 s30, v{self.vTK}")
        a(f"s_cmp_ge_u32 s30, s{sLIM}")
        a.branch(f"s_cbranch_scc1 L_slow_{slot}")
        a(f"s_lshl_b32 s{sOFF}, s30, 12")
        a(f"s_add_u32 s{sOFF}, s{sOFF}, s{sHOME}")
        a(f"s_waitcnt vmcnt({self.pace})")
        a.label(f"L_kv_{slot}", fence=False)
        self.kv_issue(slot, self.pace if self.loop_grp == 4 else None)
        a.label(f"L_back_{slot}", fence=False)

    def kv_issue(self, slot, mid):
        a = self.a
        a(f"s_add_u32 s{sCNT}, s{sCNT}, 1")
        if self.trace:
            a(f"""
            s_memrealtime s[100:101]
            s_waitcnt lgkmcnt(0)
            s_lshl_b32 s100, s100, 8
            s_and_b32 s101, s30, 0xff
            s_or_b32 s100, s100, s101
            s_add_u32 s{sLANE}, s{sLANE}, 1
            s_lshl_b64 exec, 1, s{sLANE}
            v_mov_b32 v{V_ST}, s100
            s_mov_b64 exec, -1
            """)
        tslot = (slot + self.dist) % self.R if self.dist else slot
        k = self.kreg(tslot); v = self.vreg(tslot)
        for i in range(4):
            a(f"buffer_load_dwordx4 {vr(k+4*i,4)}, v{self.vK}, {srd(S_K)}, s{sOFF} offen offset:{64*i} nt")
        if mid is not None: a(f"s_waitcnt vmcnt({mid})")
        for i in range(4):
            a(f"buffer_load_dwordx4 {vr(v+4*i,4)}, v{self.vV}, {srd(S_V)}, s{sOFF} offen offset:{256*i} nt")

    def slow(self, slot):
        a = self.a
        a.label(f"L_slow_{slot}")
        if self.dist:
            a(f"s_cmp_eq_u32 s{sSKIP}, 0")
            a(f"s_cbranch_scc1 L_nsk_{slot}")
            a(f"s_sub_u32 s{sSKIP}, s{sSKIP}, 1")
            a(f"s_cmp_lg_u32 s{sSKIP}, 0")
            a.branch(f"s_cbranch_scc1 L_back_{slot}")
            a(f"s_mov_b32 s{sLIM}, {self.NS}")
            a(f"v_mov_b32 v{self.vOne}, 1")
            a.branch(f"s_branch L_back_{slot}")
            a.label(f"L_nsk_{slot}")
        a(f"s_cmp_lg_u32 s{sST}, 0")
        a(f"s_cbranch_scc1 L_alt_{slot}")
        a(f"s_lshl_b32 s92, s30, 2")
        a(f"v_mov_b32 v{self.vPL}, s92")
        a(f"s_mov_b32 s93, {SPIN}")
        if self.stamps:
            a(f"s_cmp_lg_u32 s{sPEND}, 0")
            a(f"s_cbranch_scc1 L_spin_{slot}")
            a(f"s_mov_b32 s{sPEND}, 1")
            self.stamp(10)
        a.label(f"L_spin_{slot}")
        a(f"ds_read_b32 v{self.vT}, v{self.vPL} offset:{TAB_LDS - 4 * self.NS}")
        a("s_waitcnt lgkmcnt(0)")
        a(f"v_readfirstlane_b32 s92, v{self.vT}")
        a(f"s_cmp_lg_u32 s92, 0")
        a(f"s_cbranch_scc1 L_got_{slot}")
        if self.stamps: a(f"s_add_u32 s{sSPIN}, s{sSPIN}, 1")
        a(f"s_sub_u32 s93, s93, 1")
        a(f"s_cmp_lg_u32 s93, 0")
        a.branch(f"s_cbranch_scc1 L_spin_{slot}")
        a(f"s_mov_b32 s92, {STOP:#x}")
        a.label(f"L_got_{slot}")
        a(f"s_cmp_lt_i32 s92, 0")
        a(f"s_cbranch_scc1 L_stop_{slot}")
        a(f"s_and_b32 s{sOFF}, s92, 0x7ff000")
        if self.retire:
            a(f"s_and_b32 s93, s92, s{sMODE}")
            a(f"s_cbranch_scc0 L_nret_{slot}")
            a(f"s_mov_b32 s{sST}, 1")
            a(f"s_mov_b32 s{sLIM}, 0")
            a(f"v_mov_b32 v{self.vOne}, 0")
            a.label(f"L_nret_{slot}", fence=False)
        if self.ppace:
            a(f"s_waitcnt vmcnt({self.ppace[0]})")
            self.kv_issue(slot, self.ppace[1])
            a.branch(f"s_branch L_back_{slot}")
        else:
            a(f"s_waitcnt vmcnt({self.pace})")
            a.branch(f"s_branch L_kv_{slot}")
        a.label(f"L_stop_{slot}")
        a(f"s_mov_b32 s{sST}, 1")
        a(f"s_mov_b32 s{sLIM}, 0")
        self.stamp(11)
        a.label(f"L_alt_{slot}")
        if self.wdrain or self.wodrain:
            a(f"s_cmp_eq_u32 s{sMODE}, 2")
            a.branch(f"s_cbranch_scc1 L_back_{slot}")
            a(f"s_cmp_eq_u32 s{sMODE}, 1")
            a(f"s_cbranch_scc1 L_altd_{slot}")
            if self.wdrain:
                n = self.wdrain
                for i in range(n):
                    self.w_load(n * slot + i)
            a.branch(f"s_branch L_back_{slot}")
            a.label(f"L_altd_{slot}")
            if self.wodrain:
                a(f"s_cmp_eq_u32 s{sDMN}, 0")
                a.branch(f"s_cbranch_scc1 L_back_{slot}")
                for p in range(self.wodrain):
                    a(f"s_mov_b32 m0, s{sWDB}")
                    a(f"buffer_load_dwordx4 v{self.vGU}, {srd(S_WO)}, s{sGUB} offen nt lds")
                    a(f"s_add_u32 s{sWDB}, s{sWDB}, 1024")
                    a(f"s_add_u32 s{sGUB}, s{sGUB}, {8*1152}")
                a(f"s_sub_u32 s{sDMN}, s{sDMN}, {self.wodrain}")
        a.branch(f"s_branch L_back_{slot}")
        a.label(f"L_dw_{slot}")
        if self.dist in (1, 2):
            a("s_waitcnt vmcnt(0)")
            a.branch(f"s_branch L_dwb_{slot}")
            return
        w = {0: (8 + 4 * self.wdrain, 5 * self.wdrain), 1: ((16, 8) if self.wodrain else (8, 0)), 2: (8, 0)}
        modes = [0, 1, 2] if (self.wdrain or self.wodrain) else [2]
        for md in modes:
            if md != modes[-1]:
                a(f"s_cmp_eq_u32 s{sMODE}, {md}")
                a(f"s_cbranch_scc0 L_dwm{md}_{slot}")
            a(f"s_cmp_eq_u32 s{sCNT}, 2")
            a(f"s_cbranch_scc1 L_dw2{md}_{slot}")
            a(f"s_waitcnt vmcnt({w[md][1]})")
            a.label(f"L_dw2{md}_{slot}", fence=False)
            a(f"s_waitcnt vmcnt({w[md][0]})")
            a.branch(f"s_branch L_dwb_{slot}")
            if md != modes[-1]:
                a.label(f"L_dwm{md}_{slot}", fence=False)

    pdelay = None
    def xdelay(self, name, k):
        if not self.pdelay: return
        a = self.a
        a.label(name)
        a("s_memrealtime s[100:101]")
        a("s_waitcnt lgkmcnt(0)")
        a("s_sub_u32 s100, s100, s3")
        a(f"s_cmp_lt_u32 s100, {self.pdelay[k]}")
        a(f"s_cbranch_scc1 {name}")
    binit_late = False
    retire = None
    dist = 0
    ppace = None
    wpace = None
    wpace_first = 3
    fswap = False
    wdrain = 0
    npre = None
    QF3 = 400
    wodrain = 0
    def w_list(self):
        L = [(self.GUq(q), S_WG, self.vGU, sGUB, q * 8 * 9216) for q in range(18)]
        L += [(self.WDq(k), S_WD, self.vWDA, sWDB, k * 8 * 1152) for k in range(8)]
        return L
    def w_load(self, idx):
        a = self.a
        reg, sr, va, sb, so = self.w_list()[idx]
        if so:
            a(f"s_add_u32 s92, s{sb}, {so}")
            a(f"buffer_load_dwordx4 {vr(reg,4)}, v{va}, {srd(sr)}, s92 offen nt")
        else:
            a(f"buffer_load_dwordx4 {vr(reg,4)}, v{va}, {srd(sr)}, s{sb} offen nt")
    def Wreg(self, f):
        return self.RING + 32 * (f // 4) + 4 * (f % 4) if f < 24 else self.RING + 32 * (f - 24) + 16
    def GUq(self, q): return self.Wreg(q)
    def WDq(self, k): return self.Wreg(18 + k)
    def WDXq(self, k): return self.RING + 32 * k + 20 if k < 6 else self.RING + 32 * (k - 6) + 24

    loop_grp = 8
    vTK, vZ, vOne = 13, 14, 15
    vPL, vDUM, vGU, vWDA = 3, 63, 60, 61

    wlds = 0
    t3k = 0
    qa = None
    wobt = False
    t3bar = False
    dma_slot = 5
    WL_LDS = 0xD000
    def w_dma(self):
        if not self.wlds: return
        a = self.a
        a(f"s_cmp_eq_u32 s{sCLS}, 0")
        a.branch("s_cbranch_scc0 L_nowdma")
        a(f"s_mul_i32 s30, s{sWAVE}, {self.wlds * 1024}")
        a(f"s_add_u32 m0, s30, {self.WL_LDS}")
        for f in range(self.wlds):
            reg, sr, va, sb, so = self.w_list()[f]
            if f % self.pro_grp == 0: a(f"s_waitcnt vmcnt({self.pro_wait})")
            if so:
                a(f"s_add_u32 s92, s{sb}, {so}")
                a(f"buffer_load_dwordx4 v{va}, {srd(sr)}, s92 offen nt lds")
            else:
                a(f"buffer_load_dwordx4 v{va}, {srd(sr)}, s{sb} offen nt lds")
            if f < self.wlds - 1: a("s_add_u32 m0, m0, 1024")
        a.label("L_nowdma")

    def w_lds_read(self):
        a = self.a
        a(f"s_mul_i32 s30, s{sWAVE}, {self.wlds * 1024}")
        a(f"s_add_u32 s30, s30, {self.WL_LDS}")
        a("v_lshlrev_b32 v13, 4, v0")
        a("v_add_u32 v13, s30, v13")
        for f in range(self.wlds):
            a(f"ds_read_b128 {vr(self.w_list()[f][0], 4)}, v13 offset:{1024 * f}")

    def wo_dma(self):
        a = self.a
        a(f"s_cmp_eq_u32 s{sCLS}, 2")
        a("s_cbranch_scc0 L_nodma")
        a(f"s_cmp_lt_u32 s{sWAVE}, 4")
        a("s_cbranch_scc0 L_nodma")
        self.mk_srd(S_WO, 12, 4096 * 576 * 2)
        T = self.vT
        va = self.vGU if self.wodrain else T
        a(f"""
        v_lshrrev_b32 v{T}, 3, v0
        v_and_b32 v{T+1}, 6, v{T}
        v_and_b32 v{T+2}, 7, v0
        v_xor_b32 v{T+1}, v{T+1}, v{T+2}
        v_mul_u32_u24 v{T}, 1152, v{T}
        v_lshl_add_u32 v{va}, v{T+1}, 4, v{T}
        s_mul_i32 s92, s{sG}, {256*1152}
        s_lshl_b32 s30, s{sIDX}, 7
        s_add_u32 s92, s92, s30
        s_mul_i32 s30, s{sWAVE}, {8*8*1152}
        s_add_u32 s92, s92, s30
        s_lshl_b32 s30, s{sWAVE}, 13
        """)
        if self.wodrain:
            a(f"""
            s_add_u32 s{sWDB}, s30, {IMG_LDS}
            s_mov_b32 s{sGUB}, s92
            s_mov_b32 s{sDMN}, 8
            s_mov_b32 s{sMODE}, 1
            """)
        else:
            a(f"s_add_u32 m0, s30, {IMG_LDS}")
            for p in range(8):
                if p % self.pro_grp == 0: a(f"s_waitcnt vmcnt({self.pro_wait})")
                a(f"buffer_load_dwordx4 v{T}, {srd(S_WO)}, s92 offen nt lds")
                if p < 7:
                    a("s_add_u32 m0, m0, 1024")
                    a(f"s_add_u32 s92, s92, {8*1152}")
        a.label("L_nodma")

    def streaming(self):
        a = self.a; R = self.R
        a(f"""
        v_and_b32 v3, 15, v0
        v_lshlrev_b32 v{self.vK}, 8, v3
        v_lshlrev_b32 v{self.vV}, 4, v3
        v_lshrrev_b32 v3, 4, v0
        v_lshl_add_u32 v{self.vK}, v3, 4, v{self.vK}
        v_lshl_add_u32 v{self.vV}, v3, 10, v{self.vV}
        s_lshl_b32 s30, s{sG}, 23
        s_lshl_b32 s{sHOME}, s{sJ}, 19
        s_lshl_b32 s{sOFF}, s{sWAVE}, 12
        s_add_u32 s{sOFF}, s{sOFF}, s{sHOME}
        v_mov_b32 v{self.vZ}, 0
        v_mov_b32 v{self.vOne}, {0 if self.dist else 1}
        s_mov_b32 s{sSCALE}, {SCALE:#x}
        s_mov_b32 s{sSCALE+1}, {SCALE:#x}
        """)
        self.mk_masks(self.vT, self.vT + 1, 3)
        a(f"""
        v_mov_b32 v{self.vL}, 0
        v_mov_b32 v{self.vL+1}, 0
        v_mov_b32 v{self.vM}, 0xff7fffff
        """)
        for r in range(4):
            a(f"v_mov_b32 v{self.vO+r}, 0")
        a(f"""
        v_bfe_u32 v3, v0, 3, 1
        v_lshlrev_b32 v3, 8, v3
        v_lshrrev_b32 v{self.vT}, 4, v0
        v_lshl_add_u32 v3, v{self.vT}, 4, v3
        s_waitcnt lgkmcnt(0)
        """)
        self.mk_srd(S_K, 6, 0x800000, add="s30")
        self.mk_srd(S_V, 8, 0x800000, add="s30")
        if self.binit: a("s_barrier")
        for s in range(R):
            if s == self.dma_slot:
                self.wo_dma()
                self.w_dma()
            self.issue(s, grp=self.pro_grp, wait=(self.pro_wait if s > 0 or self.pro_grp < 8 else None))
            if s == 0:
                self.stamp(0)
                a(f"s_load_dword s{sTAG}, s[28:29], {WS_EPOCH}")
                self.mk_srd(S_WS, 28, WS_SIZE)
                self.mk_srd(S_WD, 20, 4608 * 576 * 2)
                self.mk_srd(S_X, 4, 1152)
                self.mk_srd(S_OUT, 26, 1152)
                a(f"s_cmp_lt_u32 s{sWAVE}, 4")
                a("s_cbranch_scc0 L_gu_up")
                self.mk_srd(S_WG, 16, 576 * 4608 * 2)
                a("s_branch L_gu_done")
                a.label("L_gu_up", fence=False)
                self.mk_srd(S_WG, 18, 576 * 4608 * 2)
                a.label("L_gu_done", fence=False)
                self.mk_sub(self.vT, self.vT + 1)
                a(f"""
                v_and_b32 v{self.vT+1}, 7, v0
                v_lshlrev_b32 v{self.vT+1}, 4, v{self.vT+1}
                v_mul_u32_u24 v{self.vGU}, 9216, v{self.vT}
                v_add_u32 v{self.vGU}, v{self.vGU}, v{self.vT+1}
                v_mul_u32_u24 v{self.vWDA}, 1152, v{self.vT}
                v_add_u32 v{self.vWDA}, v{self.vWDA}, v{self.vT+1}
                s_and_b32 s92, s{sWAVE}, 3
                s_mul_i32 s{sGUB}, s92, {144 * 9216}
                s_lshl_b32 s92, s{sIDX}, 7
                s_add_u32 s{sGUB}, s{sGUB}, s92
                s_mul_i32 s{sWDB}, s{sIDX}, {64 * 1152}
                s_lshl_b32 s92, s{sWAVE}, 7
                s_add_u32 s{sWDB}, s{sWDB}, s92
                s_mov_b32 s{sOOB}, 0x800000
                s_mov_b32 s{sST}, 0
                s_mov_b32 s{sPEND}, 0
                s_mov_b32 s{sSPIN}, 0
                s_mov_b32 s{sLANE}, 15
                s_mov_b32 s{sLIM}, {self.NS}
                s_mov_b32 s{sMODE}, 2
                s_cmp_eq_u32 s{sCLS}, 0
                s_cselect_b32 s{sMODE}, {0 if self.wdrain else 2}, s{sMODE}
                """)
                if self.retire:
                    a(f"s_cmp_ge_u32 s{sWAVE}, {self.retire[0]}")
                    a(f"s_cselect_b32 s{sMODE}, 2, 0")
                    if self.retire[2] == 0:
                        a(f"s_cmp_eq_u32 s{sCLS}, 0")
                        a(f"s_cselect_b32 s{sMODE}, 0, s{sMODE}")
                if self.dist:
                    a(f"s_mov_b32 s{sSKIP}, {R - self.dist}")
                    a(f"s_mov_b32 s{sLIM}, 0")
                a("s_waitcnt lgkmcnt(0)")
                a(f"s_mul_i32 s{sTAG}, s{sTAG}, 0x9E3779B1")
                a(f"s_add_u32 s{sTAG}, s{sTAG}, 0x7F4A7C15")
        self.stamp(1)
        if self.qflag:
            self.lds_spin("L_qfl", QFL_LDS, 1, self.vZ, self.vT, 30)
        else:
            a("s_barrier")
        for i in range(4):
            a(f"ds_read_b128 {vr(self.vQ+4*i,4)}, v3 offset:{Q_LDS+64*i}")
        a(f"s_mov_b32 s{sCNT}, {R}")
        a("s_waitcnt lgkmcnt(0)")
        self.stamp(2)
        a.label("L_loop")
        for s in range(R):
            dd = self.dist if self.dist else R
            self.block(s, 4 + 8 * (dd - 1), 8 * (dd - 1))
            a(f"s_sub_u32 s{sCNT}, s{sCNT}, 1")
            a(f"s_cmp_eq_u32 s{sCNT}, 0")
            if s < R - 1:
                a.branch("s_cbranch_scc1 L_epi")
            else:
                a.branch("s_cbranch_scc0 L_loop")
        a.label("L_epi")
        self.stamp(3)
        if self.stamps: a(f"v_writelane_b32 v{V_ST}, s{sSPIN}, 12")
        L = self.vL; T = self.vT
        a(f"v_add_f32 v{L}, v{L}, v{L+1}")
        self.cross_rows("add", [L], [T])
        a(f"""
        v_bfe_u32 v3, v0, 3, 1
        v_lshlrev_b32 v3, 9, v3
        v_lshrrev_b32 v{T+1}, 4, v0
        v_lshl_add_u32 v3, v{T+1}, 7, v3
        v_and_b32 v{T+1}, 7, v0
        v_lshl_add_u32 v3, v{T+1}, 2, v3
        s_lshl_b32 s30, s{sWAVE}, 10
        v_add_u32 v3, s30, v3
        """)
        for r in range(4):
            a(f"ds_write_b32 v3, v{self.vO+r} offset:{PART_LDS+32*r}")
        a(f"""
        v_bfe_u32 v{T+1}, v0, 3, 1
        v_lshlrev_b32 v{T+1}, 5, v{T+1}
        s_lshl_b32 s30, s{sWAVE}, 2
        v_add_u32 v{T+1}, s30, v{T+1}
        s_mov_b64 exec, 0x101
        ds_write_b32 v{T+1}, v{self.vM} offset:{ML_LDS}
        ds_write_b32 v{T+1}, v{L} offset:{ML_LDS+64}
        s_mov_b64 exec, -1
        s_cmp_eq_u32 s{sCLS}, 0
        """)
        a.branch("s_cbranch_scc1 L_ffn_tail")
        a(f"s_cmp_eq_u32 s{sCLS}, 2")
        a.branch("s_cbranch_scc1 L_wo_tail")
        a("""
        s_waitcnt lgkmcnt(0)
        s_barrier
        """)
        self.stamp(4)
        self.w_prefetch("mid")
        self.stamp_flush()
        a("s_endpgm")
        for s in range(R):
            self.slow(s)

    pf = None
    pfn = (4, 5, 7, 13)
    def w_prefetch(self, role):
        if self.pf is None: return
        a = self.a
        X, NT, M, C, E, NW = 48, 49, 50, 51, 52, 53
        nWo, nWe, nMo, nMe = self.pfn
        tag = "L_pf" + role
        self.mk_srd(S_WG, 16, 576 * 4608 * 2)
        self.mk_srd(S_WU, 18, 576 * 4608 * 2)
        a(f"""
        s_sub_u32 s{X}, s{sJ}, s{sG}
        s_and_b32 s{X}, s{X}, 7
        s_lshr_b32 s92, s{sG}, 3
        s_bitcmp1_b32 s{X}, 0
        s_cselect_b32 s{NT}, 8, 10
        s_movk_i32 s{M}, 205
        s_cselect_b32 s{M}, 256, s{M}
        s_cselect_b32 s{NW}, {nWo}, {nWe}
        s_cselect_b32 s93, {nMo}, {nMe}
        v_mul_u32_u24 v16, 9216, v0
        v_mul_u32_u24 v17, 1152, v0
        """)
        if role == "wo":
            a(f"""
            s_add_u32 s92, s92, 16
            s_cmp_ge_u32 s{sJ}, 8
            s_cselect_b32 s92, s{sG}, s92
            s_mul_i32 s{C}, s92, s{NW}
            s_add_u32 s{E}, s{C}, s{NW}
            s_add_u32 s{C}, s{C}, s{sWAVE}
            s_sub_u32 s{C}, s{C}, 4
            """)
            step = 3
        else:
            a(f"""
            s_cmp_eq_u32 s{sJ}, 6
            s_cselect_b32 s94, 2, 0
            s_cmp_eq_u32 s{sJ}, 4
            s_cselect_b32 s94, 4, s94
            s_add_u32 s92, s92, s94
            s_mul_i32 s{C}, s92, s93
            s_mul_i32 s94, s{NW}, 18
            s_add_u32 s{C}, s{C}, s94
            s_add_u32 s{E}, s{C}, s93
            s_add_u32 s{C}, s{C}, s{sWAVE}
            """)
            step = 7
        a.label(tag + "_loop")
        a(f"""
        s_cmp_ge_u32 s{C}, s{E}
        s_cbranch_scc1 {tag}_done
        s_mul_i32 s92, s{C}, s{M}
        s_lshr_b32 s92, s92, 11
        s_cmp_ge_u32 s92, 14
        s_cbranch_scc1 {tag}_done
        s_mul_i32 s93, s92, s{NT}
        s_sub_u32 s93, s{C}, s93
        s_add_u32 s{C}, s{C}, {step}
        s_and_b32 s94, s93, 3
        s_lshr_b32 s95, s93, 2
        s_sub_u32 s96, s93, 8
        s_cmp_ge_u32 s93, 8
        s_cselect_b32 s94, 4, s94
        s_cselect_b32 s95, s96, s95
        s_sub_u32 s96, s94, s{X}
        s_and_b32 s96, s96, 7
        s_lshl_b32 s95, s95, 3
        s_add_u32 s96, s96, s95
        s_xor_b32 s95, s96, {1 if self.fswap else 0}
        s_lshl_b32 s95, s95, 2
        s_add_u32 s95, s95, s94
        s_lshr_b32 s96, s96, 1
        s_add_u32 s96, s96, 64
        s_cmp_eq_u32 s94, 4
        s_cselect_b32 s95, s96, s95
        s_cmp_lt_u32 s92, 7
        s_cbranch_scc0 {tag}_wd
        s_and_b32 s93, s92, 3
        s_mul_i32 s93, s93, {144 * 9216}
        s_lshl_b32 s95, s95, 7
        s_add_u32 s93, s93, s95
        s_add_u32 s93, s93, {80 * 9216}
        s_cmp_lt_u32 s92, 4
        s_cbranch_scc0 {tag}_up
        buffer_load_dword v18, v16, {srd(S_WG)}, s93 offen {self.pf}
        s_branch {tag}_loop
        """)
        a.label(tag + "_up", fence=False)
        a(f"buffer_load_dword v18, v16, {srd(S_WU)}, s93 offen {self.pf}")
        a(f"s_branch {tag}_loop")
        a.label(tag + "_wd", fence=False)
        a(f"""
        s_mul_i32 s93, s95, {64 * 1152}
        s_sub_u32 s92, s92, 7
        s_lshl_b32 s92, s92, 7
        s_add_u32 s93, s93, s92
        buffer_load_dword v18, v17, {srd(S_WD)}, s93 offen {self.pf}
        s_branch {tag}_loop
        """)
        a.label(tag + "_done")

    def wo_tail(self):
        a = self.a
        a.label("L_wo_tail")
        a(f"s_cmp_lt_u32 s{sWAVE}, 4")
        a.branch("s_cbranch_scc0 L_wo_c")
        a(f"""
        s_lshl_b32 s30, s{sWAVE}, 6
        v_add_u32 v1, s30, v0
        v_lshlrev_b32 v2, 2, v1
        v_lshrrev_b32 v8, 5, v1
        v_lshlrev_b32 v8, 6, v8
        v_bfe_u32 v9, v1, 2, 2
        v_lshl_add_u32 v8, v9, 4, v8
        v_bfe_u32 v9, v1, 4, 1
        v_lshl_add_u32 v8, v9, 3, v8
        v_and_b32 v9, 3, v1
        v_lshl_add_u32 v8, v9, 1, v8
        v_and_b32 v3, 15, v0
        v_lshlrev_b32 v3, 4, v3
        s_lshr_b32 s30, s{sWAVE}, 1
        s_lshl_b32 s30, s30, 3
        v_add_u32 v3, s30, v3
        s_lshl_b32 s30, s{sG}, 14
        s_add_u32 s92, s30, {WS_T1O}
        s_add_u32 s93, s92, 4096
        s_add_u32 s94, s92, 8192
        s_add_u32 s95, s92, 12288
        s_lshl_b32 s30, s{sG}, 8
        s_add_u32 s96, s30, {WS_T1ML}
        s_waitcnt lgkmcnt(0)
        s_barrier
        """)
        self.stamp(4)
        if self.wobt: a("s_barrier")
        D = 16
        def ml_ld(): a(f"buffer_load_dwordx2 v[32:33], v3, {srd(S_WS)}, s96 offen sc1")
        def ml_ck():
            a("v_add_f32 v34, v32, v33")
            a("v_cmp_u_f32 vcc, v34, v34")
        def ml_ov():
            a("v_mov_b32 v34, v32")
            self.row_allreduce("max", [34])
            a("v_sub_f32 v35, v32, v34")
            a("v_exp_f32 v35, v35")
            a("v_mul_f32 v36, v35, v33")
            self.row_allreduce("add", [36])
            a("v_rcp_f32 v36, v36")
            a("v_mul_f32 v35, v35, v36")
        units = [(ml_ld, ml_ck, ml_ov)]
        for q in range(4):
            def ld(q=q):
                for s_ in range(4 * q, 4 * q + 4):
                    a(f"buffer_load_dword v{D+s_}, v2, {srd(S_WS)}, s{92 + q} offen offset:{1024*(s_%4)} sc1")
            def ck(q=q):
                a(f"v_add_f32 v38, v{D+4*q}, v{D+4*q+1}")
                a(f"v_add_f32 v39, v{D+4*q+2}, v{D+4*q+3}")
                a("v_add_f32 v38, v38, v39")
                a("v_cmp_u_f32 vcc, v38, v38")
            units.append((ld, ck, None))
        def dfl():
            a("s_mov_b64 exec, 1")
            a(f"ds_or_b32 v40, v41 offset:{DFL_LDS}")
            a("s_mov_b64 exec, -1")
        if self.wodrain:
            a(f"s_lshl_b32 s30, 1, s{sWAVE}")
            a("v_mov_b32 v40, 0")
            a("v_mov_b32 v41, s30")
        self.inc_poll("L_t1poll", units, 97, dfl if self.wodrain else None)
        a("v_mov_b32 v37, 0")
        for s_ in range(16):
            a(f"v_fmac_f32_dpp v37, v35, v{D+s_} row_newbcast:{s_} row_mask:0xf bank_mask:0xf")
        a(f"v_cvt_pk_bf16_f32 v37, v37, v37")
        a(f"ds_write_b16 v8, v37 offset:{O_LDS}")
        a("s_waitcnt lgkmcnt(0)")
        self.stamp(5)
        a("s_barrier")
        self.stamp_flush()
        a("s_endpgm")
        a.label("L_wo_c")
        a("""
        s_waitcnt lgkmcnt(0)
        s_barrier
        """)
        self.stamp(4)
        if self.wobt: a("s_barrier")
        self.w_prefetch("wo")
        a.label("L_wo_mm")
        WOF = 64; OF = 96
        a(f"""
        s_sub_u32 s30, s{sWAVE}, 4
        v_bfe_u32 v1, v0, 4, 1
        v_bfe_u32 v2, v0, 2, 2
        v_lshl_add_u32 v1, v1, 2, v2
        v_bfe_u32 v2, v0, 1, 1
        s_lshl_b32 s31, s30, 1
        v_add_u32 v2, s31, v2
        v_and_b32 v3, 6, v1
        v_xor_b32 v2, v2, v3
        v_lshlrev_b32 v2, 4, v2
        v_lshl_add_u32 v2, v1, 7, v2
        v_and_b32 v3, 1, v0
        v_lshl_add_u32 v2, v3, 3, v2
        v_lshrrev_b32 v3, 5, v0
        v_lshl_add_u32 v2, v3, 10, v2
        v_add_u32 v2, {IMG_LDS}, v2
        v_lshrrev_b32 v3, 4, v0
        v_lshlrev_b32 v3, 4, v3
        """)
        if self.wodrain:
            a("v_mov_b32 v8, 0")
            self.lds_spin("L_dfl", DFL_LDS, 15, 8, 9, 31)
        for ks in range(8):
            a(f"ds_read_b64_tr_b16 {vr(WOF+4*ks,2)}, v2 offset:{4096*ks}")
            a(f"ds_read_b64_tr_b16 {vr(WOF+4*ks+2,2)}, v2 offset:{4096*ks+2048}")
        a(f"""
        s_mul_i32 s31, s{sG}, 2304
        s_lshl_b32 s93, s{sIDX}, 8
        s_add_u32 s93, s93, s31
        s_lshl_b32 s31, s30, 6
        s_add_u32 s93, s93, s31
        s_add_u32 s93, s93, {WS_T2}
        s_mov_b32 s30, 0x00010001
        s_mov_b32 s31, 0x00010001
        s_waitcnt lgkmcnt(0)
        s_barrier
        """)
        for s in range(8):
            a(f"ds_read_b128 {vr(OF+4*s,4)}, v3 offset:{O_LDS+64*s}")
        for s in range(8):
            a(f"s_waitcnt lgkmcnt({7-s})")
            c = "0" if s == 0 else vr(12, 4)
            a(f"v_mfma_f32_16x16x32_bf16 {vr(12,4)}, {vr(WOF+4*s,4)}, {vr(OF+4*s,4)}, {c}")
        a(f"""
        s_mov_b64 exec, s[30:31]
        buffer_store_dwordx4 v[12:15], v3, {srd(S_WS)}, s93 offen sc1
        s_mov_b64 exec, -1
        """)
        self.stamp(6)
        a.branch("s_branch L_fin")

    TDX = [84, 116, 148, 180, 212, 88, 120]
    def TD(self, s): return 16 + 4 * s if s < 9 else self.TDX[s - 9]
    CX, CGA, CCB, CSB = 92, 124, 156, 188
    ACC4 = 220
    UXL = (152, 184, 216, 244)
    GBQ = 252
    FINW = 6

    def ffn_addr(self):
        a = self.a
        self.mk_sub(1, 2)
        a(f"""
        v_mul_u32_u24 v8, {HD_P}, v1
        s_and_b32 s30, s{sWAVE}, 3
        s_mul_i32 s30, s30, {8 * HD_P}
        s_add_u32 s30, s30, {HD2_LDS}
        v_add_u32 v8, s30, v8
        v_lshlrev_b32 v11, 2, v1
        v_lshrrev_b32 v12, 4, v0
        v_lshlrev_b32 v12, 4, v12
        v_and_b32 v9, 7, v0
        v_lshl_add_u32 v12, v9, 5, v12
        s_lshl_b32 s30, s{sWAVE}, 8
        s_add_u32 s30, s30, {PX_LDS}
        v_add_u32 v9, s30, v12
        v_lshlrev_b32 v10, 2, v0
        v_add_u32 v10, {PX_LDS}, v10
        """)

    def ffn_tail(self):
        a = self.a
        a.label("L_ffn_tail")
        if self.retire: a(f"v_mov_b32 v{self.vOne}, 1")
        a("s_mov_b64 exec, 1")
        a(f"ds_add_u32 v{self.vZ}, v{self.vOne} offset:{ARR_LDS}")
        a("s_mov_b64 exec, -1")
        self.ffn_addr()
        a(f"s_cmp_lt_u32 s{sWAVE}, 3")
        a("s_cbranch_scc0 L_ffn_nog")
        a(f"""
        s_lshl_b32 s30, s{sWAVE}, 6
        v_add_u32 v52, s30, v0
        v_lshlrev_b32 v53, 4, v52
        v_lshlrev_b32 v54, 3, v52
        v_cmp_gt_u32 vcc, 144, v52
        v_mov_b32 v55, 0x7ffffff0
        v_cndmask_b32 v55, v55, v53, vcc
        v_min_u32 v56, 143, v52
        v_lshlrev_b32 v56, 4, v56
        v_mul_u32_u24 v57, 57, v52
        v_lshrrev_b32 v57, 11, v57
        v_mul_u32_u24 v58, 36, v57
        v_sub_u32 v58, v52, v58
        v_mul_u32_u24 v57, {8 * HD_P}, v57
        v_lshrrev_b32 v59, 1, v58
        v_lshl_add_u32 v57, v59, 2, v57
        v_and_b32 v58, 1, v58
        v_mul_u32_u24 v58, {4 * HD_P}, v58
        v_add_u32 v57, v57, v58
        v_add_u32 v57, {HD2_LDS}, v57
        buffer_load_dwordx2 {vr(self.CX,2)}, v54, {srd(S_X)}, 0 offen
        s_mov_b32 s92, {WS_P3}
        s_mov_b32 s93, {WS_P3 + 2304}
        s_mov_b32 s94, {WS_P3 + 4608}
        """)
        a(f"buffer_load_dwordx4 {vr(self.CGA,4)}, v56, {srd(S_WS)}, s92 offen sc1")
        a(f"buffer_load_dwordx4 {vr(self.CSB,4)}, v56, {srd(S_WS)}, s93 offen sc1")
        a(f"buffer_load_dwordx4 {vr(self.CCB,4)}, v56, {srd(S_WS)}, s94 offen sc1")
        a.label("L_ffn_nog")
        n_done = 6 * self.wdrain
        if self.wpace is not None:
            assert self.npre is not None and n_done == 0
            for f in range(0, self.npre): self.w_load(f)
            self.stamp(14)
            a("s_barrier")
            a(f"s_cmp_lt_u32 s{sWAVE}, {self.wpace_first}")
            a("s_cbranch_scc0 L_ffn_wpaced")
            for f in range(self.npre, 26): self.w_load(f)
            a.branch("s_branch L_ffn_wdone")
            a.label("L_ffn_wpaced")
            for f in range(self.npre, 26):
                a(f"s_waitcnt vmcnt({self.wpace})")
                self.w_load(f)
            a.label("L_ffn_wdone")
        elif self.wlds:
            assert n_done == 0 and self.npre is not None
            n_done = self.wlds
            bt = False
            for f in range(n_done, 26):
                if f == n_done + self.npre:
                    self.w_lds_read()
                    self.stamp(14)
                    a("s_barrier")
                    bt = True
                self.w_load(f)
            if not bt:
                self.w_lds_read()
                self.stamp(14)
                a("s_barrier")
        else:
          for f in range(n_done, 26):
            if self.npre is not None and f == n_done + self.npre:
                self.stamp(14)
                a("s_barrier")
            self.w_load(f)
        self.n_late = 26 - n_done
        if self.npre is None: self.stamp(14)
        self.stamp(4)
        a.label("L_ffn_post")
        a(f"s_cmp_lt_u32 s{sWAVE}, 3")
        a.branch("s_cbranch_scc0 L_ffn_w3")
        a(f"""
        s_mov_b32 s92, {WS_P3}
        s_mov_b32 s93, {WS_P3 + 2304}
        s_mov_b32 s94, {WS_P3 + 4608}
        """)
        regs = []
        for q in (self.CGA, self.CSB, self.CCB): regs += [q + 1, q + 3]
        a(f"s_waitcnt vmcnt({self.n_late})")
        self.tagcheck(regs, 58, 59)
        a.branch("s_cbranch_vccz L_p3poll_ok")
        self.poll_begin("L_p3poll")
        a(f"buffer_load_dwordx4 {vr(self.CGA,4)}, v56, {srd(S_WS)}, s92 offen sc1")
        a(f"buffer_load_dwordx4 {vr(self.CSB,4)}, v56, {srd(S_WS)}, s93 offen sc1")
        a(f"buffer_load_dwordx4 {vr(self.CCB,4)}, v56, {srd(S_WS)}, s94 offen sc1")
        a("s_waitcnt vmcnt(0)")
        self.tagcheck(regs, 58, 59)
        self.poll_end("L_p3poll")
        X, GA, CB, SB = self.UXL
        for dst, lo, hi in ((X, self.CX, self.CX + 1), (GA, self.CGA, self.CGA + 2), (CB, self.CCB, self.CCB + 2), (SB, self.CSB, self.CSB + 2)):
            a(f"v_lshlrev_b32 v{dst}, 16, v{lo}")
            a(f"v_and_b32 v{dst+1}, 0xffff0000, v{lo}")
            a(f"v_lshlrev_b32 v{dst+2}, 16, v{hi}")
            a(f"v_and_b32 v{dst+3}, 0xffff0000, v{hi}")
        for r in range(4):
            a(f"v_add_f32 v{CB+r}, 1.0, v{CB+r}")
        for r in range(4): self.rnd(CB + r, CB + r)
        self.stamp(8)
        for k in range(8):
            a(f"s_mov_b32 s{92+k}, {WS_T2 + 4608*k}")
        AC = self.ACC4
        if self.stamps:
            a("s_waitcnt vmcnt(0)")
            self.stamp(15)
        a("v_mov_b32 v58, 0")
        self.lds_spin("L_hfl", HFL_LDS, 1, 58, 59, 30)
        if self.t2gate:
            a(f"""
            v_mul_u32_u24 v58, 2304, v0
            s_lshl_b32 s30, s{sWAVE}, 10
            s_add_u32 s30, s30, {WS_T2}
            s_mov_b64 exec, 0xffff
            """)
            self.poll_begin("L_t2gate")
            a(f"buffer_load_dword v59, v58, {srd(S_WS)}, s30 offen sc1")
            a("s_waitcnt vmcnt(0)")
            a("v_cmp_o_f32 vcc, v59, v59")
            a(f"s_cbranch_vccnz L_t2gate_ok")
            a(f"s_sub_u32 s{sCNT}, s{sCNT}, 1")
            a(f"s_cmp_lg_u32 s{sCNT}, 0")
            a.branch("s_cbranch_scc1 L_t2gate")
            a.label("L_t2gate_ok")
            a("s_mov_b64 exec, -1")
        units = []
        for q in range(4):
            def ld(q=q):
                for s_ in range(4 * q, 4 * q + 4):
                    a(f"buffer_load_dwordx4 {vr(self.TD(s_),4)}, v55, {srd(S_WS)}, s{92 + s_//2} offen offset:{2304*(s_%2)} sc1")
            def ck(q=q):
                t = [self.TD(4 * q + k) for k in range(4)]
                for h in (0, 2):
                    a(f"v_pk_add_f32 {vr(t[0]+h,2)}, {vr(t[0]+h,2)}, {vr(t[1]+h,2)}")
                    a(f"v_pk_add_f32 {vr(t[2]+h,2)}, {vr(t[2]+h,2)}, {vr(t[3]+h,2)}")
                for h in (0, 2):
                    a(f"v_pk_add_f32 {vr(t[0]+h,2)}, {vr(t[0]+h,2)}, {vr(t[2]+h,2)}")
                a(f"v_add_f32 v248, v{t[0]}, v{t[0]+1}")
                a(f"v_add_f32 v249, v{t[0]+2}, v{t[0]+3}")
                a("v_add_f32 v248, v248, v249")
                a("v_cmp_u_f32 vcc, v248, v248")
            units.append((ld, ck, None))
        self.inc_poll("L_t2poll", units, 31)
        q0, q1, q2, q3 = [self.TD(4 * q) for q in range(4)]
        for h in (0, 2):
            a(f"v_pk_add_f32 {vr(q0+h,2)}, {vr(q0+h,2)}, {vr(q1+h,2)}")
            a(f"v_pk_add_f32 {vr(q2+h,2)}, {vr(q2+h,2)}, {vr(q3+h,2)}")
        for h in (0, 2):
            a(f"v_pk_add_f32 {vr(AC+h,2)}, {vr(q0+h,2)}, {vr(q2+h,2)}")
        self.stamp(5)
        for r in range(4): self.rnd(AC + r, AC + r)
        a(f"v_pk_mul_f32 {vr(AC,2)}, {vr(AC,2)}, {vr(GA,2)}")
        a(f"v_pk_mul_f32 {vr(AC+2,2)}, {vr(AC+2,2)}, {vr(GA+2,2)}")
        for r in range(4): self.rnd(AC + r, AC + r)
        a(f"v_pk_add_f32 {vr(AC,2)}, {vr(AC,2)}, {vr(X,2)}")
        a(f"v_pk_add_f32 {vr(AC+2,2)}, {vr(AC+2,2)}, {vr(X+2,2)}")
        for r in range(4): self.rnd(AC + r, AC + r)
        a(f"ds_write_b128 v53, {vr(AC,4)} offset:{X1_LDS}")
        a(f"v_add_f32 v248, v{AC}, v{AC+1}")
        a(f"v_mul_f32 v249, v{AC}, v{AC}")
        a(f"v_add_f32 v250, v{AC+2}, v{AC+3}")
        a(f"v_fmac_f32 v249, v{AC+1}, v{AC+1}")
        a(f"v_add_f32 v248, v248, v250")
        a(f"v_fmac_f32 v249, v{AC+2}, v{AC+2}")
        a(f"v_fmac_f32 v249, v{AC+3}, v{AC+3}")
        self.row_allreduce("add", [248, 249])
        self.cross_rows("add", [248, 249], [250, 251])
        a(f"""
        s_lshl_b32 s30, s{sWAVE}, 3
        v_mov_b32 v250, s30
        s_mov_b64 exec, 1
        ds_write_b64 v250, v[248:249] offset:{ST_LDS}
        s_mov_b64 exec, -1
        s_waitcnt lgkmcnt(0)
        s_barrier
        v_mov_b32 v250, 0
        ds_read_b128 v[20:23], v250 offset:{ST_LDS}
        ds_read_b64 v[24:25], v250 offset:{ST_LDS+16}
        s_waitcnt lgkmcnt(0)
        v_add_f32 v248, v20, v22
        v_add_f32 v249, v21, v23
        v_add_f32 v248, v248, v24
        v_add_f32 v249, v249, v25
        v_mul_f32 v248, {f32(1.0/576.0)}, v248
        v_mul_f32 v249, {f32(1.0/576.0)}, v249
        v_fma_f32 v249, -v248, v248, v249
        v_max_f32 v249, 0, v249
        """)
        self.ln_finish(248, 249)
        for r in range(4):
            a(f"v_sub_f32 v{AC+r}, v{AC+r}, v248")
        for r in range(4): self.rnd(AC + r, AC + r)
        for r in range(4):
            a(f"v_mul_f32 v{AC+r}, v{AC+r}, v249")
        for r in range(4): self.rnd(AC + r, AC + r)
        a(f"v_pk_mul_f32 {vr(AC,2)}, {vr(AC,2)}, {vr(CB,2)}")
        a(f"v_pk_mul_f32 {vr(AC+2,2)}, {vr(AC+2,2)}, {vr(CB+2,2)}")
        for r in range(4): self.rnd(AC + r, AC + r)
        a(f"v_pk_add_f32 {vr(AC,2)}, {vr(AC,2)}, {vr(SB,2)}")
        a(f"v_pk_add_f32 {vr(AC+2,2)}, {vr(AC+2,2)}, {vr(SB+2,2)}")
        if self.dbg:
            a(f"v_cvt_pk_bf16_f32 v250, v{AC}, v{AC+1}")
            a(f"v_cvt_pk_bf16_f32 v251, v{AC+2}, v{AC+3}")
            a(f"s_lshl_b32 s92, s{sIDX}, 11")
            a(f"s_add_u32 s92, s92, {WS_DBG}")
            a(f"buffer_store_dwordx2 v[250:251], v54, {srd(S_WS)}, s92 offen")
        for r in range(4):
            a(f"v_cvt_pk_bf16_f32 v{AC+r}, v{AC+r}, v{AC+r}")
        a(f"ds_write2_b32 v57, v{AC}, v{AC+1} offset0:0 offset1:{HD_P//4}")
        a(f"ds_write2_b32 v57, v{AC+2}, v{AC+3} offset0:{2*HD_P//4} offset1:{3*HD_P//4}")
        a("s_waitcnt lgkmcnt(0)")
        self.stamp(6)
        a.branch("s_branch L_ffn_b4")
        a.label("L_ffn_w3")
        a(f"s_cmp_eq_u32 s{sWAVE}, {self.FINW}")
        a("s_cbranch_scc0 L_ffn_nogb")
        a(f"""
        v_and_b32 v56, 3, v0
        v_lshlrev_b32 v56, 4, v56
        s_min_u32 s92, s{sIDX}, 35
        s_lshl_b32 s92, s92, 6
        s_add_u32 s92, s92, {WS_P3 + 1728*4}
        """)
        self.poll_begin("L_gbpoll")
        a(f"buffer_load_dwordx4 {vr(self.GBQ,4)}, v56, {srd(S_WS)}, s92 offen sc1")
        a("s_waitcnt vmcnt(0)")
        self.tagcheck([self.GBQ + 1, self.GBQ + 3], 58, 59)
        self.poll_end("L_gbpoll")
        a.label("L_ffn_nogb")
        if self.stamps:
            a("s_waitcnt vmcnt(0)")
            a(f"s_cmp_eq_u32 s{sWAVE}, 7")
            a("s_cbranch_scc1 L_ffn_ns15")
            self.stamp(15)
            a.label("L_ffn_ns15")
        a("s_barrier")
        a.label("L_ffn_b4")
        a("s_barrier")
        AV = 16
        for q in range(5):
            a(f"ds_read_b128 {vr(AV+4*q,4)}, v8 offset:{16*q}")
        kb = 0.7978845608028654; kk = 0.044715
        c1 = -2.0 * kb * 1.4426950408889634
        a(f"""
        s_mov_b32 s92, {f32(kk)}
        s_mov_b32 s30, 0x00ff00ff
        s_mov_b32 s31, 0
        s_mul_i32 s93, s{sIDX}, 2304
        s_lshl_b32 s94, s{sWAVE}, 8
        s_add_u32 s93, s93, s94
        s_add_u32 s93, s93, {WS_T3}
        s_waitcnt vmcnt(0) lgkmcnt(0)
        """)
        self.stamp(9)
        self.gemv([self.GUq(t) for t in range(18)], 18, [AV + t for t in range(18)], 40, 48, True)
        self.halfsum(48, 52)
        a(f"""
        s_mov_b64 exec, s[30:31]
        ds_write_b128 v9, v[48:51]
        s_mov_b64 exec, -1
        s_waitcnt lgkmcnt(0)
        s_barrier
        """)
        for w in range(8):
            a(f"ds_read_b32 v{16+w}, v10 offset:{256*w}")
        a(f"""
        s_waitcnt lgkmcnt(4)
        v_add_f32 v16, v16, v17
        v_add_f32 v18, v18, v19
        v_add_f32 v24, v16, v18
        s_waitcnt lgkmcnt(0)
        v_add_f32 v20, v20, v21
        v_add_f32 v22, v22, v23
        v_add_f32 v25, v20, v22
        """)
        self.rnd(24, 24)
        self.rnd(25, 25)
        a(f"""
        v_mul_f32 v26, v24, v24
        v_fma_f32 v26, v26, s92, 1.0
        v_mul_f32 v26, v26, v24
        v_mul_f32 v26, {f32(c1)}, v26
        v_exp_f32 v26, v26
        v_add_f32 v26, 1.0, v26
        v_rcp_f32 v26, v26
        v_mul_f32 v26, v26, v24
        """)
        self.rnd(26, 26)
        a("v_mul_f32 v26, v26, v25")
        a("v_cvt_pk_bf16_f32 v26, v26, v26")
        if self.dbg:
            a(f"""
            v_lshlrev_b32 v54, 1, v0
            s_lshl_b32 s92, s{sIDX}, 7
            s_add_u32 s92, s92, {WS_DBG + 0x40000}
            buffer_store_short v26, v54, {srd(S_WS)}, s92 offen
            s_add_u32 s92, s92, 0x4000
            buffer_store_short_d16_hi v24, v54, {srd(S_WS)}, s92 offen
            s_add_u32 s92, s92, 0x4000
            buffer_store_short_d16_hi v25, v54, {srd(S_WS)}, s92 offen
            """)
        for t in range(8):
            a(f"ds_bpermute_b32 v{16+t}, v11, v26 offset:{32*t}")
        a("s_waitcnt lgkmcnt(0)")
        AVd = [16 + t for t in range(8)]
        self.gemv([self.WDq(t) for t in range(8)], 8, AVd, 40, 48, True)
        self.halfsum(48, 52)
        a(f"""
        s_mov_b64 exec, s[30:31]
        buffer_store_dwordx4 v[48:51], v12, {srd(S_WS)}, s93 offen sc1
        s_mov_b64 exec, -1
        """)
        a(f"s_cmp_eq_u32 s{sWAVE}, 7")
        a("s_cbranch_scc0 L_ffn_nod3")
        self.gemv([self.WDXq(t) for t in range(8)], 8, AVd, 40, 36, True)
        self.halfsum(36, 32)
        a(f"""
        s_mul_i32 s93, s{sIDX}, 2304
        s_add_u32 s93, s93, {WS_T3 + 8*256}
        s_mov_b64 exec, s[30:31]
        buffer_store_dwordx4 v[36:39], v12, {srd(S_WS)}, s93 offen sc1
        s_mov_b64 exec, -1
        """)
        a.label("L_ffn_nod3")
        self.stamp(7)
        if self.t3bar: a("s_barrier")
        a(f"s_cmp_eq_u32 s{sWAVE}, {self.FINW}")
        a.branch("s_cbranch_scc0 L_fin")
        a(f"s_cmp_lt_u32 s{sIDX}, 36")
        a.branch("s_cbranch_scc0 L_fin")
        a(f"""
        v_lshrrev_b32 v1, 2, v0
        v_mul_u32_u24 v2, 2304, v1
        v_and_b32 v3, 3, v0
        v_lshl_add_u32 v2, v3, 4, v2
        v_cmp_gt_u32 vcc, 8, v1
        v_mov_b32 v8, 0x7ffffff0
        v_cndmask_b32 v8, v8, v2, vcc
        v_lshlrev_b32 v9, 4, v3
        s_lshl_b32 s30, s{sIDX}, 6
        v_add_u32 v9, s30, v9
        v_lshrrev_b32 v10, 1, v9
        ds_read_b128 v[40:43], v9 offset:{X1_LDS}
        s_add_u32 s92, s30, {WS_T3}
        s_add_u32 s93, s92, {16*2304}
        s_add_u32 s94, s92, {32*2304}
        s_add_u32 s95, s92, {48*2304}
        s_add_u32 s96, s92, {64*2304}
        """)
        if self.t3k:
            K = self.t3k
            def base(k): return 64 + 20 * k
            def t3ld(k):
                for t in range(5):
                    a(f"buffer_load_dwordx4 {vr(base(k)+4*t,4)}, v{2 if t < 4 else 8}, {srd(S_WS)}, s{92+t} offen sc1")
            for k in range(K): t3ld(k)
            a(f"s_mov_b32 s{sCNT}, {SPIN}")
            a.label("L_t3poll")
            for k in range(K):
                b = base(k)
                a(f"s_waitcnt vmcnt({5 * (K - 1) + 3})")
                a(f"v_pk_add_f32 v[16:17], {vr(b,2)}, {vr(b+4,2)}")
                a(f"v_pk_add_f32 v[18:19], {vr(b+2,2)}, {vr(b+6,2)}")
                for t in range(2, 5):
                    a(f"s_waitcnt vmcnt({5 * (K - 1) + 4 - t})")
                    a(f"v_pk_add_f32 v[16:17], v[16:17], {vr(b+4*t,2)}")
                    a(f"v_pk_add_f32 v[18:19], v[18:19], {vr(b+4*t+2,2)}")
                a("v_add_f32 v24, v16, v17")
                a("v_add_f32 v25, v18, v19")
                a("v_add_f32 v24, v24, v25")
                a("v_cmp_u_f32 vcc, v24, v24")
                a.branch("s_cbranch_vccz L_t3poll_ok")
                t3ld(k)
            a(f"s_sub_u32 s{sCNT}, s{sCNT}, 1")
            a(f"s_cmp_lg_u32 s{sCNT}, 0")
            a.branch("s_cbranch_scc1 L_t3poll")
            a.label("L_t3poll_ok")
            self.row_allreduce("add", [16, 17, 18, 19], shifts=(8, 4))
            self.cross_rows("add", [16, 17, 18, 19], [20, 21, 22, 23])
        else:
            self.poll_begin("L_t3poll")
            for t in range(5):
                a(f"buffer_load_dwordx4 {vr(16+4*t,4)}, v{2 if t < 4 else 8}, {srd(S_WS)}, s{92+t} offen sc1")
            for t in range(1, 5):
                a(f"s_waitcnt vmcnt({4-t})")
                a(f"v_pk_add_f32 v[16:17], v[16:17], {vr(16+4*t,2)}")
                a(f"v_pk_add_f32 v[18:19], v[18:19], {vr(18+4*t,2)}")
            self.row_allreduce("add", [16, 17, 18, 19], shifts=(8, 4))
            self.cross_rows("add", [16, 17, 18, 19], [20, 21, 22, 23])
            a("v_add_f32 v24, v16, v17")
            a("v_add_f32 v25, v18, v19")
            a("v_add_f32 v24, v24, v25")
            a("v_cmp_u_f32 vcc, v24, v24")
            self.poll_end("L_t3poll")
        for r in range(4): self.rnd(16 + r, 16 + r)
        a(f"""
        v_lshlrev_b32 v20, 16, v{self.GBQ}
        v_and_b32 v21, 0xffff0000, v{self.GBQ}
        v_lshlrev_b32 v22, 16, v{self.GBQ+2}
        v_and_b32 v23, 0xffff0000, v{self.GBQ+2}
        s_waitcnt lgkmcnt(0)
        v_pk_mul_f32 v[16:17], v[16:17], v[20:21]
        v_pk_mul_f32 v[18:19], v[18:19], v[22:23]
        """)
        for r in range(4): self.rnd(16 + r, 16 + r)
        a(f"""
        v_pk_add_f32 v[16:17], v[16:17], v[40:41]
        v_pk_add_f32 v[18:19], v[18:19], v[42:43]
        v_cvt_pk_bf16_f32 v16, v16, v17
        v_cvt_pk_bf16_f32 v17, v18, v19
        s_mov_b64 exec, 0xf
        buffer_store_dwordx2 v[16:17], v10, {srd(S_OUT)}, 0 offen
        s_mov_b64 exec, -1
        """)
        self.stamp(5)
        a.label("L_fin")
        a("s_cmp_eq_u32 s2, 0")
        a("s_cbranch_scc0 L_fin2")
        a(f"s_cmp_eq_u32 s{sWAVE}, 7")
        a("s_cbranch_scc0 L_fin2")
        a(f"""
        s_load_dword s30, s[28:29], {WS_EPOCH}
        s_waitcnt lgkmcnt(0)
        s_add_u32 s30, s30, 1
        v_mov_b32 v16, s30
        v_mov_b32 v17, {WS_EPOCH}
        s_mov_b64 exec, 1
        buffer_store_dword v16, v17, {srd(S_WS)}, 0 offen sc1
        s_mov_b64 exec, -1
        """)
        a.label("L_fin2")
        self.stamp_flush()
        a("s_endpgm")

    def service(self):
        a = self.a
        a.label("L_service")
        if self.pdelay: a("s_mov_b32 s3, s98")
        AV = 16
        ASET = 40
        ACC = 48
        T4 = 52
        WA = 64
        WQ = 136
        XR = 208
        XP = 214
        CR = 216
        XV = 220
        NP = 232
        G = 64
        PROD = f"s_cmp_lt_i32 s{sPA}, 0"
        a(f"""
        s_setprio 3
        v_lshlrev_b32 v1, 1, v0
        v_lshlrev_b32 v3, 3, v0
        v_lshlrev_b32 v2, 2, v0
        v_lshlrev_b32 v8, 4, v0
        """)
        self.mk_sub(9, 10)
        a(f"""
        v_and_b32 v10, 7, v0
        v_lshlrev_b32 v10, 4, v10
        v_mul_u32_u24 v11, 6912, v9
        v_add_u32 v11, v11, v10
        v_lshl_add_u32 v12, v9, 13, v10
        v_mul_u32_u24 v13, {HD_P}, v9
        s_and_b32 s92, s{sPA}, 3
        s_lshr_b32 s93, s{sPA}, 2
        s_mul_i32 s94, s92, 288
        s_mul_i32 s95, s92, {144*6912}
        s_lshl_b32 s96, s93, 7
        s_add_u32 s95, s95, s96
        s_waitcnt lgkmcnt(0)
        """)
        self.mk_srd(S_C, 22, 1152)
        self.mk_srd(S_WMOD, 24, 576 * 3456 * 2)
        a(PROD)
        a("s_cbranch_scc1 L_sv_nop1a")
        for i in range(3):
            a(f"buffer_load_ushort v{CR+i}, v1, {srd(S_C)}, s94 offen offset:{128*i}")
        for t in range(18):
            a(f"buffer_load_dwordx4 {vr(WA+4*t,4)}, v11, {srd(S_WMOD)}, s95 offen nt")
            if t < 17: a(f"s_add_u32 s95, s95, {8*6912}")
        a.label("L_sv_nop1a")
        a(f"v_mov_b32 v56, {7*self.R}")
        a("v_mov_b32 v57, 0")
        a("v_mov_b32 v58, 0")
        a("v_mov_b32 v59, 0")
        a(f"ds_write_b128 v57, v[56:59] offset:{CTR_LDS}")
        a(f"ds_write_b32 v57, v57 offset:{DFL_LDS}")
        a("s_waitcnt lgkmcnt(0)")
        if self.binit and not self.binit_late: a("s_barrier")
        a(f"s_load_dword s{sTAG}, s[28:29], {WS_EPOCH}")
        self.tab_init()
        self.mk_srd(S_X, 4, 1152)
        self.mk_srd(S_WQ, 10, 576 * 4096 * 2)
        for j in range(3):
            a(f"buffer_load_dwordx2 {vr(XR+2*j,2)}, v3, {srd(S_X)}, 0 offen offset:{512*j}")
        a(f"""
        s_lshr_b32 s96, s{sJ}, 2
        s_mul_i32 s97, s96, 288
        buffer_load_dword v{XP}, v2, {srd(S_X)}, s97 offen
        buffer_load_dword v{XP+1}, v2, {srd(S_X)}, s97 offen offset:256
        s_mul_i32 s98, s96, {144*8192}
        s_lshl_b32 s99, s{sG}, 9
        s_add_u32 s98, s98, s99
        s_and_b32 s99, s{sJ}, 3
        s_lshl_b32 s99, s99, 7
        s_add_u32 s98, s98, s99
        """)
        for t in range(18):
            a(f"buffer_load_dwordx4 {vr(WQ+4*t,4)}, v12, {srd(S_WQ)}, s98 offen nt")
            if t < 17: a(f"s_add_u32 s98, s98, {8*8192}")
        if self.binit and self.binit_late: a("s_barrier")
        self.mk_srd(S_WS, 28, WS_SIZE)
        self.mk_masks(56, 57, 58)
        a("s_waitcnt lgkmcnt(0)")
        a(f"s_mul_i32 s{sTAG}, s{sTAG}, 0x9E3779B1")
        a(f"s_add_u32 s{sTAG}, s{sTAG}, 0x7F4A7C15")
        self.stamp(0)
        a(f"""
        v_and_b32 v15, 7, v0
        v_lshlrev_b32 v15, 6, v15
        v_lshrrev_b32 v56, 4, v0
        v_lshl_add_u32 v15, v56, 5, v15
        v_and_b32 v56, 7, v0
        v_mul_u32_u24 v56, {HD_P}, v56
        v_lshrrev_b32 v57, 3, v0
        v_lshl_add_u32 v56, v57, 2, v56
        """)
        a(PROD)
        a.branch("s_cbranch_scc1 L_sv_nop1b")
        a("s_waitcnt vmcnt(41)")
        for i in range(3):
            a(f"v_lshlrev_b32 v{CR+i}, 16, v{CR+i}")
            self.silu(CR + i, T4 + i, 58, 59)
        a(f"ds_write_b32 v56, v{T4} offset:{HD_LDS}")
        a(f"ds_write_b32 v56, v{T4+1} offset:{HD_LDS+32}")
        a("s_mov_b64 exec, 0xffff")
        a(f"ds_write_b32 v56, v{T4+2} offset:{HD_LDS+64}")
        a("s_mov_b64 exec, -1")
        a("s_waitcnt lgkmcnt(0)")
        for q in range(5):
            a(f"ds_read_b128 {vr(AV+4*q,4)}, v13 offset:{HD_LDS+16*q}")
        a("s_waitcnt lgkmcnt(0)")
        waits = {t: f"s_waitcnt vmcnt({23 + 15 - t})" for t in range(0, 18, 3)}
        self.gemv(WA, 18, [AV + t for t in range(18)], ASET, ACC, True, waits)
        self.halfsum(ACC, T4)
        self.publish_f32(ACC, 15, None)
        a(f"""
        s_and_b32 s92, s{sPA}, 3
        s_mul_i32 s92, s92, {P1S}
        s_lshr_b32 s93, s{sPA}, 2
        s_lshl_b32 s93, s93, 9
        s_add_u32 s92, s92, s93
        s_add_u32 s92, s92, {WS_P1}
        """)
        self.publish_store(15, "s92")
        a.label("L_sv_nop1b")
        self.stamp(1)
        a("s_waitcnt vmcnt(18)")
        for j in range(3):
            for d in range(2):
                a(f"v_lshlrev_b32 v{XV+4*j+2*d}, 16, v{XR+2*j+d}")
                a(f"v_and_b32 v{XV+4*j+2*d+1}, 0xffff0000, v{XR+2*j+d}")
        a(f"v_add_f32 v56, v{XV}, v{XV+1}")
        for k in range(2, 12):
            a(f"v_add_f32 v56, v56, v{XV+k}")
        self.row_allreduce("add", [56])
        self.cross_rows("add", [56], [57])
        a(f"v_mul_f32 v56, {f32(1.0/576.0)}, v56")
        a("v_mov_b32 v57, 0")
        for k in range(8):
            a(f"v_sub_f32 v58, v{XV+k}, v56")
            a("v_fmac_f32 v57, v58, v58")
        a("s_mov_b64 exec, 0xffff")
        for k in range(8, 12):
            a(f"v_sub_f32 v58, v{XV+k}, v56")
            a("v_fmac_f32 v57, v58, v58")
        a("s_mov_b64 exec, -1")
        self.row_allreduce("add", [57])
        self.cross_rows("add", [57], [58])
        a(f"v_mul_f32 v57, {f32(1.0/576.0)}, v57")
        self.ln_finish(56, 57)
        a(f"v_lshlrev_b32 v{NP}, 16, v{XP}")
        a(f"v_and_b32 v{NP+1}, 0xffff0000, v{XP}")
        a(f"v_lshlrev_b32 v{NP+2}, 16, v{XP+1}")
        a(f"v_and_b32 v{NP+3}, 0xffff0000, v{XP+1}")
        for k in range(4): a(f"v_sub_f32 v{NP+k}, v{NP+k}, v56")
        for k in range(4): self.rnd(NP + k, NP + k)
        for k in range(4): a(f"v_mul_f32 v{NP+k}, v{NP+k}, v57")
        for k in range(4): self.rnd(NP + k, NP + k)
        a(f"""
        v_min_u32 v58, 7, v0
        v_lshlrev_b32 v58, 4, v58
        v_add_u32 v58, 1024, v58
        s_lshr_b32 s96, s{sJ}, 2
        s_mul_i32 s96, s96, 1152
        s_add_u32 s92, s96, {WS_P1}
        s_add_u32 s93, s92, {P1S}
        s_add_u32 s94, s92, {2*P1S}
        s_add_u32 s95, s92, {3*P1S}
        s_add_u32 s96, s92, 4608
        s_add_u32 s97, s93, 4608
        s_add_u32 s98, s94, 4608
        s_add_u32 s99, s95, 4608
        v_and_b32 v59, 3, v0
        v_mul_u32_u24 v59, {2*HD_P}, v59
        v_lshrrev_b32 v57, 2, v0
        v_lshl_add_u32 v59, v57, 2, v59
        """)
        a(f"s_cmp_eq_u32 s{sJ}, 0")
        a("s_cbranch_scc0 L_sv_noinit")
        a(f"""
        s_mul_i32 s30, s{sG}, {self.pstride}
        s_add_u32 s30, s30, {WS_POOL}
        v_mov_b32 v56, {self.PBASE if self.nb else 0}
        v_mov_b32 v57, 0
        s_mov_b64 exec, 1
        buffer_store_dword v56, v57, {srd(S_WS)}, s30 offen sc1
        s_mov_b64 exec, -1
        """)
        a.label("L_sv_noinit")
        self.stamp(2)
        self.xdelay("L_xd1", 0)
        self.poll_begin("L_p1poll")
        for s in range(4):
            a(f"buffer_load_dwordx4 {vr(G+16*s,4)}, v8, {srd(S_WS)}, s{92+s} offen sc1")
            a(f"buffer_load_dwordx4 {vr(G+16*s+8,4)}, v8, {srd(S_WS)}, s{96+s} offen sc1")
        for s in range(4):
            a(f"buffer_load_dwordx4 {vr(G+16*s+4,4)}, v58, {srd(S_WS)}, s{92+s} offen sc1")
            a(f"buffer_load_dwordx4 {vr(G+16*s+12,4)}, v58, {srd(S_WS)}, s{96+s} offen sc1")
        a("s_waitcnt vmcnt(0)")
        self.tagcheck([G + 2 * k + 1 for k in range(32)], 56, 57)
        self.poll_end("L_p1poll")
        if self.stamps: a(f"v_writelane_b32 v{V_ST}, s{sCNT}, 6")
        self.stamp(3)
        for o in (0, 2, 4, 6, 8, 10, 12, 14):
            a(f"v_add_f32 v{G+o}, v{G+o}, v{G+16+o}")
            a(f"v_add_f32 v{G+32+o}, v{G+32+o}, v{G+48+o}")
        for o in (0, 2, 4, 6, 8, 10, 12, 14):
            a(f"v_add_f32 v{G+o}, v{G+o}, v{G+32+o}")
        for o in (0, 2, 4, 6, 8, 10, 12, 14):
            self.rnd(G + o, G + o)
        pairs = [(0, 0, 8), (1, 2, 10), (2, 4, 12), (3, 6, 14)]
        for k, so, co in pairs: a(f"v_add_f32 v{G+co}, 1.0, v{G+co}")
        for k, so, co in pairs: self.rnd(G + co, G + co)
        for k, so, co in pairs: a(f"v_mul_f32 v{G+co}, v{G+co}, v{NP+k}")
        for k, so, co in pairs: self.rnd(G + co, G + co)
        for k, so, co in pairs: a(f"v_add_f32 v{G+co}, v{G+co}, v{G+so}")
        for k, so, co in pairs: a(f"v_cvt_pk_bf16_f32 v{G+co}, v{G+co}, v{G+co}")
        a(f"v_add_u32 v59, {HD_LDS}, v59")
        a(f"ds_write2_b32 v59, v{G+8}, v{G+10} offset0:0 offset1:{HD_P//4}")
        a("s_mov_b64 exec, 0xff")
        a(f"ds_write2_b32 v59, v{G+12}, v{G+14} offset0:16 offset1:{16 + HD_P//4}")
        a("s_mov_b64 exec, -1")
        a("s_waitcnt lgkmcnt(0)")
        for q in range(5):
            a(f"ds_read_b128 {vr(AV+4*q,4)}, v13 offset:{HD_LDS+16*q}")
        a(f"""
        s_lshl_b32 s92, s{sG}, 2
        s_lshr_b32 s93, s{sJ}, 2
        s_add_u32 s92, s92, s93
        s_lshl_b32 s92, s92, 11
        s_and_b32 s93, s{sJ}, 3
        s_lshl_b32 s93, s93, 9
        s_add_u32 s92, s92, s93
        s_add_u32 s92, s92, {WS_P2}
        s_lshl_b32 s93, s{sG}, 13
        s_add_u32 s93, s93, {WS_P2}
        s_add_u32 s94, s93, 2048
        s_add_u32 s95, s93, 4096
        s_add_u32 s96, s93, 6144
        s_waitcnt lgkmcnt(0)
        """)
        self.gemv(WQ, 18, [AV + t for t in range(18)], ASET, ACC, True)
        self.halfsum(ACC, T4)
        self.publish_f32(ACC, 15, None)
        self.publish_store(15, "s92")
        self.stamp(4)
        self.xdelay("L_xd2", 1)
        self.poll_begin("L_p2poll")
        for kp in range(4):
            for hf in range(2):
                a(f"buffer_load_dwordx4 {vr(G+8*kp+4*hf,4)}, v8, {srd(S_WS)}, s{93+kp} offen offset:{1024*hf} sc1")
        a("s_waitcnt vmcnt(0)")
        self.tagcheck([G + 2 * k + 1 for k in range(16)], 56, 57)
        self.poll_end("L_p2poll")
        if self.stamps: a(f"v_writelane_b32 v{V_ST}, s{sCNT}, 9")
        for o in (0, 2, 4, 6):
            a(f"v_add_f32 v{G+o}, v{G+o}, v{G+8+o}")
            a(f"v_add_f32 v{G+16+o}, v{G+16+o}, v{G+24+o}")
        for o in (0, 2, 4, 6):
            a(f"v_add_f32 v{G+o}, v{G+o}, v{G+16+o}")
        a(f"v_cvt_pk_bf16_f32 v{G}, v{G}, v{G+2}")
        a(f"v_cvt_pk_bf16_f32 v{G+4}, v{G+4}, v{G+6}")
        a(f"ds_write_b32 v2, v{G} offset:{Q_LDS}")
        a(f"ds_write_b32 v2, v{G+4} offset:{Q_LDS+256}")
        if self.dbg:
            a(f"s_lshl_b32 s92, s2, 9")
            a(f"s_add_u32 s92, s92, {WS_DBG + 0x80000}")
            a(f"buffer_store_dword v{G}, v2, {srd(S_WS)}, s92 offen")
            a(f"buffer_store_dword v{G+4}, v2, {srd(S_WS)}, s92 offen offset:256")
        a("s_waitcnt lgkmcnt(0)")
        if self.qflag:
            a("v_mov_b32 v56, 0")
            a("v_mov_b32 v57, 1")
            a(f"ds_write_b32 v56, v57 offset:{QFL_LDS}")
            self.stamp(5)
        else:
            self.stamp(5)
            a("s_barrier")
        a("s_setprio 1")
        a(f"s_cmp_eq_u32 s{sCLS}, 0")
        a.branch("s_cbranch_scc0 L_sv_now")
        self.mk_srd(S_WU, 18, 576 * 4608 * 2)
        self.mk_srd(S_WD, 20, 4608 * 576 * 2)
        a(f"""
        v_mul_u32_u24 v56, 9216, v9
        v_add_u32 v56, v56, v10
        v_mul_u32_u24 v57, 1152, v9
        v_add_u32 v57, v57, v10
        s_lshl_b32 s92, s{sIDX}, 7
        s_add_u32 s92, s92, {3 * 144 * 9216}
        """)
        for t in range(18):
            a(f"buffer_load_dwordx4 {vr(self.GUq(t),4)}, v56, {srd(S_WU)}, s92 offen nt")
            if t < 17: a(f"s_add_u32 s92, s92, {8*9216}")
        a(f"s_mul_i32 s92, s{sIDX}, {64*1152}")
        a(f"s_add_u32 s92, s92, {7*128}")
        a(f"s_add_u32 s93, s92, 128")
        for t in range(8):
            a(f"buffer_load_dwordx4 {vr(self.WDq(t),4)}, v57, {srd(S_WD)}, s92 offen nt")
            a(f"buffer_load_dwordx4 {vr(self.WDXq(t),4)}, v57, {srd(S_WD)}, s93 offen nt")
            if t < 7:
                a(f"s_add_u32 s92, s92, {8*1152}")
                a(f"s_add_u32 s93, s93, {8*1152}")
        a.label("L_sv_now")
        a(f"""
        v_mov_b32 v44, -1
        v_mov_b32 v45, -1
        v_mov_b32 v46, -1
        v_mov_b32 v47, -1
        s_lshl_b32 s30, s2, 10
        s_add_u32 s30, s30, {WS_T1O}
        buffer_store_dwordx4 v[44:47], v8, {srd(S_WS)}, s30 offen sc1
        s_mov_b64 exec, 1
        s_lshl_b32 s30, s2, 4
        s_add_u32 s30, s30, {WS_T1ML}
        buffer_store_dwordx4 v[44:47], v8, {srd(S_WS)}, s30 offen sc1
        s_mov_b64 exec, -1
        s_cmp_eq_u32 s{sCLS}, 1
        s_cbranch_scc1 L_sv_clr_done
        s_cmp_eq_u32 s{sCLS}, 0
        s_cbranch_scc1 L_sv_clr_ffn
        s_mul_i32 s30, s{sG}, 2304
        s_lshl_b32 s92, s{sIDX}, 8
        s_add_u32 s30, s30, s92
        s_add_u32 s30, s30, {WS_T2}
        s_mov_b64 exec, 0xffff
        buffer_store_dwordx4 v[44:47], v8, {srd(S_WS)}, s30 offen sc1
        s_mov_b64 exec, -1
        s_branch L_sv_clr_done
        """)
        a.label("L_sv_clr_ffn")
        a(f"""
        s_mul_i32 s30, s{sIDX}, 2304
        s_add_u32 s30, s30, {WS_T3}
        buffer_store_dwordx4 v[44:47], v8, {srd(S_WS)}, s30 offen sc1
        buffer_store_dwordx4 v[44:47], v8, {srd(S_WS)}, s30 offen offset:1024 sc1
        s_mov_b64 exec, 0xffff
        buffer_store_dwordx4 v[44:47], v8, {srd(S_WS)}, s30 offen offset:2048 sc1
        s_mov_b64 exec, -1
        """)
        a.label("L_sv_clr_done")
        a(f"""
        s_waitcnt vmcnt(0)
        v_mov_b32 v44, s{sTAG}
        s_lshl_b32 s30, s2, 2
        s_add_u32 s30, s30, {WS_HELLO}
        v_mov_b32 v45, 0
        s_mov_b64 exec, 1
        buffer_store_dword v44, v45, {srd(S_WS)}, s30 offen sc1
        s_mov_b64 exec, -1
        """)
        self.mk_srd(S_WD, 20, 4608 * 576 * 2)
        self.mk_srd(S_OUT, 26, 1152)
        self.stamp(8)
        a(f"s_cmp_lg_u32 s{sCLS}, 1")
        a.branch("s_cbranch_scc1 L_broker")
        a(f"s_cmp_lt_u32 s{sIDX}, 36")
        a.branch("s_cbranch_scc0 L_broker")
        a(f"""
        v_and_b32 v56, 31, v0
        v_lshlrev_b32 v57, 3, v56
        v_lshlrev_b32 v56, 4, v56
        s_lshl_b32 s92, s{sIDX}, 9
        s_add_u32 s92, s92, {WS_P1 + 1152 * 8}
        s_add_u32 s93, s92, {P1S}
        s_add_u32 s94, s92, {2 * P1S}
        s_add_u32 s95, s92, {3 * P1S}
        """)
        self.poll_begin("L_p3bpoll")
        for k in range(4):
            a(f"buffer_load_dwordx4 {vr(64+4*k,4)}, v56, {srd(S_WS)}, s{92+k} offen sc1")
        a("s_waitcnt vmcnt(0)")
        self.tagcheck([64 + 2 * k + 1 for k in range(8)], 58, 59)
        self.poll_end("L_p3bpoll")
        a(f"""
        v_add_f32 v64, v64, v68
        v_add_f32 v72, v72, v76
        v_add_f32 v66, v66, v70
        v_add_f32 v74, v74, v78
        v_add_f32 v64, v64, v72
        v_add_f32 v66, v66, v74
        v_cvt_pk_bf16_f32 v64, v64, v66
        v_mov_b32 v65, s{sTAG}
        s_lshl_b32 s30, s{sIDX}, 8
        s_add_u32 s30, s30, {WS_P3}
        s_mov_b64 exec, 0xffffffff
        buffer_store_dwordx2 v[64:65], v57, {srd(S_WS)}, s30 offen sc1
        s_mov_b64 exec, -1
        """)
        self.stamp(12)
        a.branch("s_branch L_broker")
        self.broker()
        a(f"s_cmp_eq_u32 s{sCLS}, 1")
        a.branch("s_cbranch_scc1 L_sv_b1")
        a.label("L_sv_hello")
        a(f"s_mov_b32 s30, {WS_HELLO}")
        self.poll_begin("L_hpoll")
        a(f"buffer_load_dwordx4 v[48:51], v8, {srd(S_WS)}, s30 offen sc1")
        a("s_waitcnt vmcnt(0)")
        self.tagcheck([48, 49, 50, 51], 58, 59)
        self.poll_end("L_hpoll")
        a("v_mov_b32 v58, 0")
        a("v_mov_b32 v59, 1")
        a(f"ds_write_b32 v58, v59 offset:{HFL_LDS}")
        a.label("L_sv_b1")
        self.stamp(14)

    def pool_map(self, dst, p, t0):
        a = self.a
        a(f"""
        v_bfe_u32 v{dst}, v{p}, 2, 4
        v_lshlrev_b32 v{dst}, 19, v{dst}
        v_lshrrev_b32 v{t0}, 6, v{p}
        v_lshlrev_b32 v{t0}, 2, v{t0}
        v_and_or_b32 v{t0}, v{p}, 3, v{t0}
        v_add_u32 v{t0}, {self.NS}, v{t0}
        v_lshl_add_u32 v{dst}, v{t0}, 12, v{dst}
        v_or_b32 v{dst}, 1, v{dst}
        """)
        if self.retire:
            a(f"v_cmp_le_u32 vcc, {self.retire[1]}, v{p}")
            a(f"v_cndmask_b32 v{t0}, 0, 2, vcc")
            a(f"v_or_b32 v{dst}, v{dst}, v{t0}")

    def tab_init(self):
        a = self.a
        a("""
        v_mov_b32 v56, 0
        v_mov_b32 v57, 0
        v_mov_b32 v58, 0
        v_mov_b32 v59, 0
        """)
        n = (self.P + 64 + 255) // 256
        for k in range(n):
            a(f"ds_write_b128 v8, v[56:59] offset:{TAB_LDS + 1024 * k}")

    PBASE = 0x10000
    nb = False
    def broker2(self):
        a = self.a
        N, X, NS, P = self.BN, self.BX, self.NS, self.P
        PL = 16; sI = 53; sF = 54; BASE = self.PBASE
        a.label("L_broker")
        a(f"""
        s_mul_i32 s{sPOOL}, s{sG}, {self.pstride}
        s_add_u32 s{sPOOL}, s{sPOOL}, {WS_POOL}
        v_mov_b32 v57, 0
        v_mov_b32 v{PL}, {N}
        s_mov_b32 s{sREQ}, {NS - X}
        s_mov_b32 s{sFILL}, 0
        s_mov_b32 s{sI}, 0
        s_mov_b32 s{sF}, 0
        s_mov_b32 s{sQ2}, {P}
        s_cmp_eq_u32 s{sCLS}, 0
        s_cselect_b32 s{sQ2}, {min(self.QF, P)}, s{sQ2}
        s_cbranch_scc0 L_bk_nq3
        s_and_b32 s92, s{sIDX}, 7
        s_cmp_eq_u32 s92, 3
        s_cselect_b32 s{sQ2}, {min(self.QF3, P)}, s{sQ2}
        L_bk_nq3:
        s_waitcnt vmcnt(0)
        s_mov_b32 s{sCNT}, {SPIN * 8}
        """)
        sBETA = 55
        if self.qa:
            gf, bf, gf3, go, bo = self.qa
            a(f"""
            s_mov_b32 s{sQ2}, {go}
            s_mov_b32 s{sBETA}, {bo}
            s_cmp_eq_u32 s{sJ}, 15
            s_cselect_b32 s{sQ2}, {P}, s{sQ2}
            s_cmp_eq_u32 s{sCLS}, 0
            s_cbranch_scc0 L_bk_qa
            s_mov_b32 s{sQ2}, {gf}
            s_mov_b32 s{sBETA}, {bf}
            s_and_b32 s92, s{sIDX}, 7
            s_cmp_eq_u32 s92, 3
            s_cselect_b32 s{sQ2}, {gf3}, s{sQ2}
            L_bk_qa:
            """)
        def fill():
            a(f"v_readlane_b32 s92, v{PL}, s{sF}")
            a(f"s_sub_u32 s92, s92, {BASE}")
            a(f"s_min_u32 s92, s92, {P}")
            a(f"s_sub_u32 s93, {P}, s92")
            a(f"s_min_u32 s93, s93, {N}")
            a(f"v_add_u32 v59, s92, v0")
            self.pool_map(60, 59, 61)
            a(f"s_lshl_b32 s94, s{sFILL}, 2")
            a(f"v_add_u32 v59, s94, v2")
            a(f"v_cmp_gt_u32 vcc, s93, v0")
            a(f"s_and_b64 exec, vcc, -1")
            a(f"ds_write_b32 v59, v60 offset:{TAB_LDS}")
            a("s_mov_b64 exec, -1")
            a(f"s_add_u32 s{sFILL}, s{sFILL}, s93")
            if self.qa:
                a(f"s_mul_i32 s94, s93, s{sBETA}")
                a(f"s_add_u32 s{sQ2}, s{sQ2}, s94")
                a(f"s_min_u32 s{sQ2}, s{sQ2}, {P}")
            a(f"s_add_u32 s{sF}, s{sF}, 1")
            a(f"s_add_u32 s92, s92, {N}")
            a(f"s_cmp_ge_u32 s92, s{sQ2}")
        first = True
        a.label("L_bk_loop")
        a(f"ds_read_b32 v58, v57 offset:{CTR_LDS}")
        a(f"v_cmp_le_u32 vcc, {BASE}, v{PL}")
        a(f"s_cmp_lt_u32 s{sF}, s{sI}")
        a("s_cbranch_scc0 L_bk_nofill")
        a(f"s_bitcmp1_b64 vcc, s{sF}")
        a("s_cbranch_scc0 L_bk_nofill")
        fill()
        a.branch("s_cbranch_scc1 L_bk_drain")
        a.label("L_bk_nofill")
        a("s_waitcnt lgkmcnt(0)")
        a(f"v_readfirstlane_b32 s{sBC}, v58")
        a(f"s_cmp_gt_u32 s{sBC}, s{sREQ}")
        a("s_cbranch_scc0 L_bk_noreq")
        a(f"s_cmp_lt_u32 s{sI}, 64")
        a("s_cbranch_scc0 L_bk_wrap")
        a(f"s_lshl_b64 exec, 1, s{sI}")
        a(f"buffer_atomic_add v{PL}, v57, {srd(S_WS)}, s{sPOOL} offen {self.atom_flags}")
        a("s_mov_b64 exec, -1")
        a(f"s_add_u32 s{sREQ}, s{sREQ}, {N}")
        a(f"s_add_u32 s{sI}, s{sI}, 1")
        if self.stamps:
            a(f"s_cmp_eq_u32 s{sI}, 1")
            a("s_cbranch_scc0 L_bk_noreq")
            self.stamp(10)
        a.label("L_bk_noreq")
        a(f"s_sub_u32 s{sCNT}, s{sCNT}, 1")
        a(f"s_cmp_lg_u32 s{sCNT}, 0")
        a.branch("s_cbranch_scc1 L_bk_loop")
        a.branch("s_branch L_bk_drain")
        a.label("L_bk_wrap")
        a(f"s_cmp_eq_u32 s{sF}, 64")
        a("s_cbranch_scc0 L_bk_noreq")
        a(f"v_mov_b32 v{PL}, {N}")
        a(f"s_mov_b32 s{sI}, 0")
        a(f"s_mov_b32 s{sF}, 0")
        a.branch("s_branch L_bk_noreq")
        a.label("L_bk_drain")
        a("s_waitcnt vmcnt(0) lgkmcnt(0)")
        a.label("L_bk_dl")
        a(f"s_cmp_ge_u32 s{sF}, s{sI}")
        a("s_cbranch_scc1 L_bk_dd")
        fill()
        a.branch("s_branch L_bk_dl")
        a.label("L_bk_dd")
        a(f"""
        s_lshl_b32 s94, s{sFILL}, 2
        v_add_u32 v59, s94, v2
        v_mov_b32 v60, {STOP:#x}
        ds_write_b32 v59, v60 offset:{TAB_LDS}
        """)
        self.stamp(11)

    def broker(self):
        if self.nb: return self.broker2()
        a = self.a
        N, D, X, NS, P = self.BN, self.BD, self.BX, self.NS, self.P
        PL = 16
        a.label("L_broker")
        a(f"""
        s_mul_i32 s{sPOOL}, s{sG}, {self.pstride}
        s_add_u32 s{sPOOL}, s{sPOOL}, {WS_POOL}
        v_mov_b32 v57, 0
        s_mov_b32 s{sREQ}, {NS - X}
        s_mov_b32 s{sFILL}, 0
        s_mov_b32 s{sQ2}, {P}
        s_cmp_eq_u32 s{sCLS}, 0
        s_cselect_b32 s{sQ2}, {min(self.QF, P)}, s{sQ2}
        s_cbranch_scc0 L_bk_nq3
        s_and_b32 s92, s{sIDX}, 7
        s_cmp_eq_u32 s92, 3
        s_cselect_b32 s{sQ2}, {min(self.QF3, P)}, s{sQ2}
        L_bk_nq3:
        s_waitcnt vmcnt(0)
        """)
        def trig(name):
            a(f"s_mov_b32 s{sCNT}, {SPIN * 4}")
            a.label(name)
            a(f"ds_read_b32 v58, v57 offset:{CTR_LDS}")
            a("s_waitcnt lgkmcnt(0)")
            a(f"v_readfirstlane_b32 s{sBC}, v58")
            a(f"s_cmp_gt_u32 s{sBC}, s{sREQ}")
            a(f"s_cbranch_scc1 {name}_ok")
            a(f"s_sub_u32 s{sCNT}, s{sCNT}, 1")
            a(f"s_cmp_lg_u32 s{sCNT}, 0")
            a.branch(f"s_cbranch_scc1 {name}")
            a.label(name + "_ok")
        def req(d):
            a("s_mov_b64 exec, 1")
            a(f"v_mov_b32 v{PL+d}, {N}")
            a(f"buffer_atomic_add v{PL+d}, v57, {srd(S_WS)}, s{sPOOL} offen {self.atom_flags}")
            a("s_mov_b64 exec, -1")
            a(f"s_add_u32 s{sREQ}, s{sREQ}, {N}")
        def fill(d):
            a(f"v_readfirstlane_b32 s92, v{PL+d}")
            a(f"s_min_u32 s92, s92, {P}")
            a(f"s_sub_u32 s93, {P}, s92")
            a(f"s_min_u32 s93, s93, {N}")
            a(f"v_add_u32 v59, s92, v0")
            self.pool_map(60, 59, 61)
            a(f"s_lshl_b32 s94, s{sFILL}, 2")
            a(f"v_add_u32 v59, s94, v2")
            a(f"v_cmp_gt_u32 vcc, s93, v0")
            a(f"s_and_b64 exec, vcc, -1")
            a(f"ds_write_b32 v59, v60 offset:{TAB_LDS}")
            a("s_mov_b64 exec, -1")
            a(f"s_add_u32 s{sFILL}, s{sFILL}, s93")
            a(f"v_mov_b32 v{PL+d}, {P}")
            a(f"s_add_u32 s92, s92, {N}")
            a(f"s_cmp_ge_u32 s92, s{sQ2}")
        trig("L_bk_w0")
        self.stamp(10)
        for d in range(D - 1): req(d)
        a.label("L_bk_loop")
        for d in range(D):
            trig(f"L_bk_t{d}")
            req((d + D - 1) % D)
            a(f"s_waitcnt vmcnt({D - 1})")
            fill(d)
            a.branch("s_cbranch_scc1 L_bk_drain")
        a.branch("s_branch L_bk_loop")
        a.label("L_bk_drain")
        a("s_waitcnt vmcnt(0)")
        for d in range(D): fill(d)
        a(f"""
        s_lshl_b32 s94, s{sFILL}, 2
        v_add_u32 v59, s94, v2
        v_mov_b32 v60, {STOP:#x}
        ds_write_b32 v59, v60 offset:{TAB_LDS}
        """)
        self.stamp(11)

    def publish_f32(self, ACC, vaddr, _):
        a = self.a
        for r in range(4):
            a(f"v_mov_b32 v{240+2*r}, v{ACC+r}")
            a(f"v_mov_b32 v{241+2*r}, s{sTAG}")

    def publish_store(self, vaddr, soff):
        a = self.a
        a(f"""
        s_mov_b32 s30, 0x00ff00ff
        s_mov_b32 s31, 0
        s_mov_b64 exec, s[30:31]
        buffer_store_dwordx4 v[240:243], v{vaddr}, {srd(S_WS)}, {soff} offen sc1
        buffer_store_dwordx4 v[244:247], v{vaddr}, {srd(S_WS)}, {soff} offen offset:16 sc1
        s_mov_b64 exec, -1
        """)

    def tail_service(self):
        a = self.a
        PRL = [92, 124, 156, 188, 220, 252, 144]
        a(f"""
        s_setprio 3
        v_lshrrev_b32 v1, 5, v0
        v_lshlrev_b32 v1, 5, v1
        s_lshl_b32 s92, s2, 10
        s_add_u32 s92, s92, {WS_T1O}
        s_lshl_b32 s93, s2, 4
        s_add_u32 s93, s93, {WS_T1ML}
        v_lshrrev_b32 v2, 5, v0
        v_lshlrev_b32 v2, 3, v2
        v_mov_b32 v3, 0
        s_waitcnt vmcnt(0) lgkmcnt(0)
        s_cmp_eq_u32 s{sCLS}, 0
        s_cbranch_scc1 L_ts_arr
        s_barrier
        s_branch L_ts_go
        """)
        a.label("L_ts_arr")
        self.lds_spin("L_arr", ARR_LDS, 7, 3, 9, 30)
        a.label("L_ts_go")
        a(f"""
        ds_read_b128 v[16:19], v1 offset:{ML_LDS}
        ds_read_b128 v[20:23], v1 offset:{ML_LDS+16}
        ds_read_b128 v[24:27], v1 offset:{ML_LDS+64}
        ds_read_b128 v[28:31], v1 offset:{ML_LDS+80}
        """)
        for w in range(7):
            a(f"ds_read_b128 {vr(PRL[w],4)}, v8 offset:{PART_LDS+1024*w}")
        self.stamp(7)
        a("s_waitcnt lgkmcnt(9)")
        a("v_max3_f32 v32, v16, v17, v18")
        a("v_max3_f32 v32, v32, v19, v20")
        a("v_max3_f32 v32, v32, v21, v22")
        for w in range(7):
            a(f"v_sub_f32 v{16+w}, v{16+w}, v32")
        for w in range(7):
            a(f"v_exp_f32 v{16+w}, v{16+w}")
        a("s_waitcnt lgkmcnt(7)")
        a("v_mul_f32 v33, v16, v24")
        for w in range(1, 7):
            a(f"v_fmac_f32 v33, v{16+w}, v{24+w}")
        for w in range(7):
            a(f"s_waitcnt lgkmcnt({6-w})")
            for r in range(4):
                if w == 0:
                    a(f"v_mul_f32 v{36+r}, v16, v{PRL[0]+r}")
                else:
                    a(f"v_fmac_f32 v{36+r}, v{16+w}, v{PRL[w]+r}")
        a(f"buffer_store_dwordx4 v[36:39], v8, {srd(S_WS)}, s92 offen sc1")
        a(f"""
        s_mov_b32 s30, 1
        s_mov_b32 s31, 1
        s_mov_b64 exec, s[30:31]
        buffer_store_dwordx2 v[32:33], v2, {srd(S_WS)}, s93 offen sc1
        s_mov_b64 exec, -1
        """)
        self.stamp(15)
        if self.wobt:
            a(f"s_cmp_eq_u32 s{sCLS}, 2")
            a("s_cbranch_scc0 L_ts_nbt")
            a("s_barrier")
            a.branch("s_branch L_wo_mm")
            a.label("L_ts_nbt")
        a(f"s_cmp_eq_u32 s{sCLS}, 2")
        a.branch("s_cbranch_scc1 L_wo_mm")
        a(f"s_cmp_eq_u32 s{sCLS}, 1")
        a.branch("s_cbranch_scc1 L_fin")
        if self.npre is not None: a("s_barrier")
        self.ffn_addr()
        a.branch("s_branch L_ffn_post")

    def build(self):
        a = self.a
        self.prologue()
        self.streaming()
        self.wo_tail()
        self.ffn_tail()
        self.service()
        self.tail_service()
        a.label("L_end")
        a("s_endpgm")
        return a.text()


def main():
    ap = argparse.ArgumentParser()
    ap.add_argument("-o", default="main3.s")
    ap.add_argument("--R", type=int, default=6)
    ap.add_argument("--pace", type=int, default=4)
    ap.add_argument("--loopgrp", type=int, default=8)
    ap.add_argument("--prowait", type=int, default=2)
    ap.add_argument("--progrp", type=int, default=4)
    ap.add_argument("--dmawait", type=int, default=32)
    ap.add_argument("--NS", type=int, default=112)
    ap.add_argument("--QF", type=int, default=200)
    ap.add_argument("--S", type=int, default=1)
    ap.add_argument("--BN", type=int, default=4)
    ap.add_argument("--BD", type=int, default=4)
    ap.add_argument("--BX", type=int, default=16)
    ap.add_argument("--wdrain", type=int, default=0)
    ap.add_argument("--dist", type=int, default=0)
    ap.add_argument("--nb", action="store_true")
    ap.add_argument("--qa", type=str, default="")
    ap.add_argument("--wobt", action="store_true")
    ap.add_argument("--t3bar", action="store_true")
    ap.add_argument("--t3k", type=int, default=0)
    ap.add_argument("--wlds", type=int, default=0)
    ap.add_argument("--dmaslot", type=int, default=5)
    ap.add_argument("--retire", type=str, default="")
    ap.add_argument("--pf", type=str, default=None)
    ap.add_argument("--pfn", type=str, default="4,5,7,13")
    ap.add_argument("--wpace", type=int, default=-1)
    ap.add_argument("--wpfirst", type=int, default=3)
    ap.add_argument("--fswap", action="store_true")
    ap.add_argument("--ppace", type=str, default="")
    ap.add_argument("--binitlate", action="store_true")
    ap.add_argument("--pdelay", type=str, default="")
    ap.add_argument("--npre", type=int, default=-1)
    ap.add_argument("--QF3", type=int, default=-1)
    ap.add_argument("--wodrain", type=int, default=0)
    ap.add_argument("--strip", action="store_true")
    ap.add_argument("--nobinit", action="store_true")
    ap.add_argument("--trace", action="store_true")
    ap.add_argument("--noqflag", action="store_true")
    ap.add_argument("--rot", action="store_true")
    ap.add_argument("--not2gate", action="store_true")
    ap.add_argument("--pstride", type=int, default=256)
    ap.add_argument("--aflags", type=str, default="sc0")
    ap.add_argument("--stamps", action="store_true")
    ap.add_argument("--dbg", action="store_true")
    args = ap.parse_args()
    assert args.NS - args.BX > 7 * args.R
    assert args.nb or args.BX >= (args.BD - 1) * args.BN
    assert args.pace + args.loopgrp <= 12 and args.prowait + args.progrp <= 12
    g = Gen(R=args.R, pace=args.pace, pro_wait=args.prowait, pro_grp=args.progrp, stamps=args.stamps, dbg=args.dbg,
            NS=args.NS, QF=args.QF, S=args.S, BN=args.BN, BD=args.BD, BX=args.BX, dma_wait=args.dmawait)
    g.loop_grp = args.loopgrp
    g.strip = args.strip
    g.QF3 = args.QF3 if args.QF3 >= 0 else args.QF
    g.npre = args.npre if args.npre >= 0 else None
    assert g.npre is None or args.wlds or g.npre < 26 - 6 * args.wdrain
    g.pdelay = [int(x) for x in args.pdelay.split(",")] if args.pdelay else None
    g.binit_late = args.binitlate
    g.wdrain = args.wdrain; g.wodrain = args.wodrain
    g.dist = args.dist
    g.nb = args.nb
    g.qa = tuple(int(x) for x in args.qa.split(",")) if args.qa else None
    g.wobt = args.wobt
    g.t3bar = args.t3bar
    g.t3k = args.t3k
    g.wlds = args.wlds; g.dma_slot = args.dmaslot
    lds_size = LDS_SIZE if not g.wlds else g.WL_LDS + 7 * 1024 * g.wlds
    assert lds_size <= 163840 and 1 <= g.dma_slot <= 5
    g.retire = tuple(int(x) for x in args.retire.split(",")) if args.retire else None
    if g.retire and len(g.retire) == 2: g.retire = g.retire + (0,)
    assert not g.retire or (args.dist and not args.wdrain and not args.wodrain)
    g.pf = None if args.pf is None else ("" if args.pf == "def" else args.pf)
    g.pfn = tuple(int(x) for x in args.pfn.split(","))
    g.wpace = args.wpace if args.wpace >= 0 else None
    g.wpace_first = args.wpfirst
    g.fswap = args.fswap
    g.ppace = [int(x) for x in args.ppace.split(",")] if args.ppace else None
    assert args.dist in (0, 1, 2, 3) and not (args.dist and (args.wdrain or args.wodrain))
    assert args.wdrain in (0, 1, 2, 3, 4) and args.wodrain in (0, 2, 4, 8) and args.R == 6
    g.binit = not args.nobinit
    g.trace = args.trace
    g.qflag = not args.noqflag
    assert g.binit or not g.qflag
    g.rot = args.rot
    g.t2gate = not args.not2gate
    g.pstride = args.pstride
    g.atom_flags = args.aflags
    body = g.build()
    nv = 64 + 32 * args.R
    txt = wrap_single(body, 256, 512, lds_size, max(nv, 256))
    open(args.o, "w").write(txt)
    print(f"wrote {args.o}: {len(txt)} bytes, lds {lds_size}, nops {g.a.nops_inserted}")

if __name__ == "__main__":
    main()
```

```python
import sys, argparse, struct
from asmlib import *

WS_EPOCH = 0x0
WS_HELLO = 0x400
WS_P1 = 0x1000
P1S = 3456 * 8
WS_P3 = 0x1C000
WS_T1ML = 0x1F000
WS_T2 = 0x20000
WS_P2 = 0x30000
WS_T1O = 0x50000
WS_T3 = 0x90000
WS_POOL = 0xC0000
WS_DBG = 0x100000
WS_SIZE = 0x200000
WS_STAMP = 0x10000000

Q_LDS = 0x0000
O_LDS = 0x0200
ST_LDS = 0x0A00
CTR_LDS = 0x0A20
ARR_LDS = 0x0A24
HFL_LDS = 0x0A28
QFL_LDS = 0x0A2C
DFL_LDS = 0x0A30
ML_LDS = 0x0A40
HD_LDS = 0x0D00
HD_P = 80
X1_LDS = 0x1700
PART_LDS = 0x2400
IMG_LDS = 0x4000
HD2_LDS = 0x4000
PX_LDS = 0x6000
HV_OFF = 3968
TAB_LDS = 0xC000
LDS_SIZE = 0xD000
STOP = 0x80000000

LOG2E = 0x3FB8AA3B
SCALE = 0x3DB504F3
SPIN = 50000

S_K, S_V, S_WS, S_X, S_C, S_WMOD, S_WQ, S_WO, S_WG, S_WU, S_WD, S_OUT = [32 + 4 * i for i in range(12)]
sTAG, sWAVE, sOFF, sCNT = 80, 81, 82, 83
sSCALE, sLOG2E, sG, sJ, sCLS, sIDX, sPA = 84, 86, 87, 88, 89, 90, 91
sP = 3
sST, sPEND, sQ, sPOOL, sGUB, sWDB, sOOB, sHOME, sLIM, sSPIN = 48, 49, 50, 51, 52, 53, 54, 55, 56, 57
sLANE = 58
sSKIP = 51
sMODE = 59
sDMN = 50
sREQ, sFILL, sBC, sQ2 = 48, 49, 50, 52
V_ST = 62


def srd(s):
    return f"s[{s}:{s+3}]"

def vr(b, n):
    return f"v[{b}:{b+n-1}]"

def f32(x):
    return hex(struct.unpack("<I", struct.pack("<f", x))[0])


class Gen:
    def __init__(self, R=6, pace=4, pro_wait=2, pro_grp=4, stamps=False, dbg=False,
                 NS=112, QF=200, S=1, BN=4, BD=4, BX=16, dma_wait=32):
        self.a = Asm()
        self.R = R; self.pace = pace; self.pro_wait = pro_wait; self.pro_grp = pro_grp
        self.stamps = stamps; self.dbg = dbg
        self.NS = NS; self.QF = QF; self.S = S; self.BN = BN; self.BD = BD; self.BX = BX; self.dma_wait = dma_wait
        self.T = 128 - NS; assert self.T % 4 == 0
        self.P = 16 * self.T
        assert self.P + 64 <= 1024 and BD <= 8

    def mk_srd(self, s, plo, size, add=None):
        a = self.a
        if add is None:
            a(f"s_mov_b32 s{s}, s{plo}")
            a(f"s_and_b32 s{s+1}, s{plo+1}, 0xffff")
        else:
            a(f"s_add_u32 s{s}, s{plo}, {add}")
            a(f"s_addc_u32 s{s+1}, s{plo+1}, 0")
            a(f"s_and_b32 s{s+1}, s{s+1}, 0xffff")
        a(f"s_mov_b32 s{s+2}, {size}")
        a(f"s_mov_b32 s{s+3}, 0x20000")

    def rnd(self, d, s):
        self.a(f"v_cvt_pk_bf16_f32 v{d}, 0, v{s}")

    def stamp(self, k):
        if not self.stamps: return
        a = self.a
        a("s_memrealtime s[100:101]")
        a("s_waitcnt lgkmcnt(0)")
        a(f"v_writelane_b32 v{V_ST}, s100, {k}")

    def stamp_flush(self):
        if not self.stamps: return
        a = self.a
        a(f"""
        s_mov_b64 exec, {-1 if self.trace else 0xffff}
        s_lshl_b32 s92, s2, 3
        s_add_u32 s92, s92, s{sWAVE}
        s_lshl_b32 s92, s92, {9 if self.trace else 7}
        s_add_u32 s92, s92, {WS_STAMP}
        s_add_u32 s92, s28, s92
        s_addc_u32 s93, s29, 0
        v_lshlrev_b32 v60, 3, v0
        v_mov_b32 v{V_ST+1}, 0
        global_store_dwordx2 v60, v[{V_ST}:{V_ST+1}], s[92:93]
        s_mov_b64 exec, -1
        """)

    enc = False
    def encst(self, dst):
        if not self.enc: return
        a = self.a
        a("s_memrealtime s[98:99]")
        a("s_waitcnt lgkmcnt(0)")
        a(f"s_sub_u32 s{dst}, s98, s100")

    def row_allreduce(self, op, regs, shifts=(8, 4, 2, 1)):
        a = self.a
        for sh in shifts:
            for r in regs:
                a(f"v_{op}_f32_dpp v{r}, v{r}, v{r} row_ror:{sh} row_mask:0xf bank_mask:0xf")

    def cross_rows(self, op, regs, tmps):
        a = self.a
        for sw in ("16", "32"):
            for r, t in zip(regs, tmps):
                a(f"v_mov_b32 v{t}, v{r}")
            for r, t in zip(regs, tmps):
                a(f"v_permlane{sw}_swap_b32 v{r}, v{t}")
            for r, t in zip(regs, tmps):
                a(f"v_{op}_f32 v{r}, v{r}, v{t}")

    def poll_begin(self, name):
        a = self.a
        a(f"s_mov_b32 s{sCNT}, {SPIN}")
        a.label(name)

    def poll_end(self, name):
        a = self.a
        ok = name + "_ok"
        a(f"s_cbranch_vccz {ok}")
        a(f"s_sub_u32 s{sCNT}, s{sCNT}, 1")
        a(f"s_cmp_lg_u32 s{sCNT}, 0")
        a.branch(f"s_cbranch_scc1 {name}")
        a.label(ok)

    def inc_poll(self, name, units, sm, after_wait=None):
        a = self.a
        n = len(units)
        a(f"s_mov_b32 s{sm}, {(1 << n) - 1}")
        a(f"s_mov_b32 s{sCNT}, {SPIN}")
        a.label(name)
        for u, (ld, ck, ov) in enumerate(units):
            a(f"s_bitcmp1_b32 s{sm}, {u}")
            a(f"s_cbranch_scc0 {name}_l{u}")
            ld()
            a.label(f"{name}_l{u}", fence=False)
        a("s_waitcnt vmcnt(0)")
        if after_wait: after_wait()
        for u, (ld, ck, ov) in enumerate(units):
            a(f"s_bitcmp1_b32 s{sm}, {u}")
            a(f"s_cbranch_scc0 {name}_c{u}")
            ck()
            a.branch(f"s_cbranch_vccnz {name}_c{u}")
            a(f"s_bitset0_b32 s{sm}, {u}")
            if ov: ov()
            a.label(f"{name}_c{u}")
        a(f"s_cmp_eq_u32 s{sm}, 0")
        a(f"s_cbranch_scc1 {name}_ok")
        a(f"s_sub_u32 s{sCNT}, s{sCNT}, 1")
        a(f"s_cmp_lg_u32 s{sCNT}, 0")
        a.branch(f"s_cbranch_scc1 {name}")
        a.label(name + "_ok")

    def fast_poll(self, name, units, sm, X, init=True):
        a = self.a
        n = len(units)
        if init: a(f"s_mov_b32 s{sm}, {(1 << n) - 1}")
        a(f"s_mov_b32 s{sCNT}, {SPIN * 4}")
        a.label(name)
        for u, (regs, ld, ov, masked) in enumerate(units):
            a(f"s_bitcmp1_b32 s{sm}, {u}")
            a.branch(f"s_cbranch_scc0 {name}_n{u}")
            if len(regs) == 1:
                a(f"v_cmp_u_f32 vcc, v{regs[0]}, v{regs[0]}")
                a(f"s_cbranch_vccz {name}_v{u}")
            elif len(regs) == 2:
                a(f"v_cmp_u_f32 vcc, v{regs[0]}, v{regs[1]}")
                a(f"s_cbranch_vccz {name}_v{u}")
            else:
                a(f"v_cmp_u_f32 vcc, v{regs[0]}, v{regs[1]}")
                a(f"v_cmp_u_f32 s[100:101], v{regs[2]}, v{regs[3]}")
                a("s_or_b64 vcc, vcc, s[100:101]")
                a(f"s_cbranch_scc0 {name}_v{u}")
            if masked: a("s_mov_b64 exec, vcc")
            ld()
            if masked: a("s_mov_b64 exec, -1")
            a.branch(f"s_branch {name}_n{u}")
            a.label(f"{name}_v{u}")
            a(f"s_bitset0_b32 s{sm}, {u}")
            if ov: ov()
            a.label(f"{name}_n{u}")
        a(f"s_cmp_eq_u32 s{sm}, 0")
        a(f"s_cbranch_scc1 {name}_ok")
        a(f"s_waitcnt vmcnt({X})")
        a(f"s_sub_u32 s{sCNT}, s{sCNT}, 1")
        a(f"s_cmp_lg_u32 s{sCNT}, 0")
        a.branch(f"s_cbranch_scc1 {name}")
        a.label(name + "_ok")

    def lds_spin(self, name, off, val, vaddr, vt, st):
        a = self.a
        a(f"s_mov_b32 s{sCNT}, {SPIN * 4}")
        a.label(name)
        a(f"ds_read_b32 v{vt}, v{vaddr} offset:{off}")
        a("s_waitcnt lgkmcnt(0)")
        a(f"v_readfirstlane_b32 s{st}, v{vt}")
        a(f"s_cmp_eq_u32 s{st}, {val}")
        a(f"s_cbranch_scc1 {name}_ok")
        a(f"s_sub_u32 s{sCNT}, s{sCNT}, 1")
        a(f"s_cmp_lg_u32 s{sCNT}, 0")
        a.branch(f"s_cbranch_scc1 {name}")
        a.label(name + "_ok")

    def tagcheck(self, regs, t0, t1):
        a = self.a
        assert len(regs) % 2 == 0
        a(f"v_max_u32 v{t0}, v{regs[0]}, v{regs[1]}")
        a(f"v_min_u32 v{t1}, v{regs[0]}, v{regs[1]}")
        for k in range(2, len(regs), 2):
            a(f"v_max3_u32 v{t0}, v{t0}, v{regs[k]}, v{regs[k+1]}")
            a(f"v_min3_u32 v{t1}, v{t1}, v{regs[k]}, v{regs[k+1]}")
        a(f"v_xor_b32 v{t0}, s{sTAG}, v{t0}")
        a(f"v_xor_b32 v{t1}, s{sTAG}, v{t1}")
        a(f"v_or_b32 v{t0}, v{t0}, v{t1}")
        a(f"v_cmp_ne_u32 vcc, 0, v{t0}")

    def ln_finish(self, mean, var):
        a = self.a
        self.rnd(mean, mean)
        self.rnd(var, var)
        a(f"v_add_f32 v{var}, {f32(1e-5)}, v{var}")
        self.rnd(var, var)
        a(f"v_sqrt_f32 v{var}, v{var}")
        self.rnd(var, var)
        a(f"v_rcp_f32 v{var}, v{var}")

    vMK = 4

    def mk_masks(self, t0, t1, t2):
        a = self.a
        a(f"""
        v_and_b32 v{t2}, 1, v0
        v_mov_b32 v{t0}, 0xffff
        v_mov_b32 v{t1}, 0xffff0000
        v_cmp_eq_u32 vcc, 1, v{t2}
        v_cndmask_b32 v{t0}, v{t0}, v{t1}, vcc
        v_bfe_u32 v{t2}, v0, 1, 2
        """)
        for d in range(4):
            a(f"v_cmp_eq_u32 vcc, {d}, v{t2}")
            a(f"v_cndmask_b32 v{self.vMK+d}, 0, v{t0}, vcc")

    def mk_sub(self, d, t):
        a = self.a
        a(f"v_bfe_u32 v{d}, v0, 3, 1")
        a(f"v_lshrrev_b32 v{t}, 4, v0")
        a(f"v_lshl_add_u32 v{d}, v{d}, 2, v{t}")

    def gemv(self, W, n, AV, ASET, ACC, first, waits=None):
        a = self.a
        def build(t):
            s = ASET + 4 * (t & 1)
            for d in range(4):
                a(f"v_and_b32 v{s+d}, v{AV[t]}, v{self.vMK+d}")
        build(0)
        for t in range(n):
            if t + 1 < n: build(t + 1)
            if waits and t in waits: a(waits[t])
            s = ASET + 4 * (t & 1)
            c = "0" if (first and t == 0) else vr(ACC, 4)
            wr = W[t] if isinstance(W, (list, tuple)) else W + 4 * t
            a(f"v_mfma_f32_16x16x32_bf16 {vr(ACC,4)}, {vr(s,4)}, {vr(wr,4)}, {c}")

    def gemv_pk(self, W, n, AV, ASET, ACC, first):
        a = self.a
        def build(t):
            s = ASET + 4 * (t & 1)
            pb, sel = AV[t] & ~1, AV[t] & 1
            for h in (0, 2):
                a(f"v_pk_mul_f32 {vr(s+h,2)}, {vr(pb,2)}, {vr(self.vMK+h,2)} op_sel:[{sel},0] op_sel_hi:[{sel},1]")
        build(0)
        for t in range(n):
            if t + 1 < n: build(t + 1)
            s = ASET + 4 * (t & 1)
            c = "0" if (first and t == 0) else vr(ACC, 4)
            wr = W[t] if isinstance(W, (list, tuple)) else W + 4 * t
            a(f"v_mfma_f32_16x16x32_bf16 {vr(ACC,4)}, {vr(s,4)}, {vr(wr,4)}, {c}")

    def halfsum(self, ACC, T):
        a = self.a
        for r in range(4): a(f"v_mov_b32 v{T+r}, v{ACC+r}")
        for r in range(4): a(f"v_permlane32_swap_b32 v{ACC+r}, v{T+r}")
        for r in range(4): a(f"v_add_f32_dpp v{ACC+r}, v{T+r}, v{ACC+r} row_ror:8 row_mask:0xf bank_mask:0xf")

    def silu(self, c, o, t0, t1):
        a = self.a
        a(f"v_mul_f32 v{o}, s{sLOG2E}, v{c}")
        a(f"v_exp_f32 v{o}, -v{o}")
        a(f"v_add_f32 v{o}, 1.0, v{o}")
        a(f"v_rcp_f32 v{t0}, v{o}")
        a(f"v_mul_f32 v{t1}, v{t0}, v{c}")
        a(f"v_fma_f32 v{o}, -v{t1}, v{o}, v{c}")
        a(f"v_fma_f32 v{o}, v{o}, v{t0}, v{t1}")
        a(f"v_cvt_pk_bf16_f32 v{o}, v{o}, v{o}")

    def prologue(self):
        a = self.a
        if self.stamps: a("s_memrealtime s[98:99]")
        if self.enc: a("s_memrealtime s[100:101]")
        a(f"""
        s_cmp_ge_u32 s2, 256
        s_cbranch_scc1 L_end
        s_load_dwordx16 s[4:19], s[0:1], 0
        s_load_dwordx8 s[20:27], s[0:1], 64
        s_load_dwordx2 s[28:29], s[0:1], 104
        v_lshrrev_b32 v1, 6, v0
        v_and_b32 v0, 63, v0
        v_readfirstlane_b32 s{sWAVE}, v1
        """)
        if self.S == 1:
            a("""
            s_and_b32 s92, s2, 7
            s_lshr_b32 s93, s2, 3
            s_lshl_b32 s92, s92, 5
            s_or_b32 s2, s92, s93
            """)
        elif self.S == 2:
            a("""
            s_bfe_u32 s92, s2, 0x20001
            s_lshl_b32 s92, s92, 6
            s_bfe_u32 s93, s2, 0x20006
            s_lshl_b32 s93, s93, 4
            s_or_b32 s92, s92, s93
            s_and_b32 s93, s2, 1
            s_lshl_b32 s93, s93, 3
            s_or_b32 s92, s92, s93
            s_bfe_u32 s93, s2, 0x30003
            s_or_b32 s2, s92, s93
            """)
        elif self.S == 4:
            a("""
            s_bfe_u32 s92, s2, 0x10002
            s_lshl_b32 s92, s92, 7
            s_bfe_u32 s93, s2, 0x30005
            s_lshl_b32 s93, s93, 4
            s_or_b32 s92, s92, s93
            s_and_b32 s93, s2, 3
            s_lshl_b32 s93, s93, 2
            s_or_b32 s92, s92, s93
            s_bfe_u32 s93, s2, 0x20003
            s_or_b32 s2, s92, s93
            """)
        if self.rot:
            a("""
            s_lshr_b32 s92, s2, 4
            s_add_u32 s92, s92, s2
            s_and_b32 s92, s92, 15
            s_and_b32 s2, s2, 0xf0
            s_or_b32 s2, s2, s92
            """)
        a(f"""
        s_lshr_b32 s{sG}, s2, 4
        s_and_b32 s{sJ}, s2, 15
        s_and_b32 s{sP}, s{sG}, 1
        s_sub_u32 s92, 5, s{sP}
        s_sub_i32 s93, s{sJ}, 7
        s_max_i32 s93, s93, 0
        s_mov_b32 s{sLOG2E}, {LOG2E:#x}
        """)
        a(f"""
        s_mul_i32 s94, s{sG}, 14
        s_add_u32 s94, s94, s{sJ}
        s_sub_u32 s94, s94, 2
        s_cmp_lt_u32 s{sJ}, 2
        s_cselect_b32 s94, -1, s94
        s_cmp_lt_u32 s94, 216
        s_cselect_b32 s{sPA}, s94, -1
        s_mov_b32 s{sCLS}, 2
        s_mov_b32 s{sIDX}, s93
        s_cmp_lt_u32 s{sJ}, 7
        s_cbranch_scc0 L_cls_done
        s_lshr_b32 s95, s{sG}, 1
        s_cmp_lt_u32 s{sJ}, s92
        s_cbranch_scc0 L_cls_mid
        s_mov_b32 s{sCLS}, 0
        s_xor_b32 s{sIDX}, s{sG}, {1 if self.fswap else 0}
        s_lshl_b32 s{sIDX}, s{sIDX}, 2
        s_add_u32 s{sIDX}, s{sIDX}, s{sJ}
        s_add_u32 s95, s95, 64
        s_cmp_eq_u32 s{sJ}, 4
        s_cselect_b32 s{sIDX}, s95, s{sIDX}
        s_branch L_cls_done
        """)
        a.label("L_cls_mid", fence=False)
        a(f"""
        s_mov_b32 s{sCLS}, 1
        s_mul_i32 s96, s95, 3
        s_add_u32 s96, s96, s{sJ}
        s_sub_u32 s96, s96, 4
        s_lshl_b32 s97, s95, 1
        s_add_u32 s97, s97, s{sJ}
        s_add_u32 s97, s97, 19
        s_cmp_eq_u32 s{sP}, 1
        s_cselect_b32 s{sIDX}, s96, s97
        """)
        a.label("L_cls_done", fence=False)
        if self.stamps:
            a(f"v_mov_b32 v{V_ST}, 0")
            a("s_waitcnt lgkmcnt(0)")
            a(f"v_writelane_b32 v{V_ST}, s98, 13")
            self.stamp(6) if False else None
        a(f"""
        s_cmp_eq_u32 s{sWAVE}, 7
        s_cbranch_scc1 L_service
        """)

    vK, vV = 1, 2
    vL = 8
    vM = 10
    vA = 12
    vS = 16
    vO = 20
    vB = 24
    vP = 32
    vT = 36
    vQ = 44
    RING = 64

    def kreg(self, slot): return self.RING + 32 * slot
    def vreg(self, slot): return self.RING + 32 * slot + 16

    def issue(self, slot, grp=8, wait=None, step=True):
        a = self.a
        k = self.kreg(slot); v = self.vreg(slot)
        n = 0
        for i in range(4):
            if wait is not None and n % grp == 0: a(f"s_waitcnt vmcnt({wait})")
            a(f"buffer_load_dwordx4 {vr(k+4*i,4)}, v{self.vK}, {srd(S_K)}, s{sOFF} offen offset:{64*i} nt")
            n += 1
        for i in range(4):
            if wait is not None and n % grp == 0: a(f"s_waitcnt vmcnt({wait})")
            a(f"buffer_load_dwordx4 {vr(v+4*i,4)}, v{self.vV}, {srd(S_V)}, s{sOFF} offen offset:{256*i} nt")
            n += 1
        if step: a(f"s_add_u32 s{sOFF}, s{sOFF}, {7*4096}")

    def block(self, slot, wk, wv):
        a = self.a
        k = self.kreg(slot); v = self.vreg(slot)
        S = self.vS; O = self.vO; P = self.vP; T = self.vT; M = self.vM; A = self.vA; L = self.vL
        if self.dist:
            a("s_mov_b64 exec, 1")
            a(f"ds_add_rtn_u32 v{self.vTK}, v{self.vZ}, v{self.vOne} offset:{CTR_LDS}")
            a("s_mov_b64 exec, -1")
            a(f"s_cmp_le_u32 s{sCNT}, {self.dist - 1}")
        else:
            a("s_mov_b64 exec, 1")
            a(f"ds_add_rtn_u32 v{self.vTK}, v{self.vZ}, v{self.vOne} offset:{CTR_LDS}")
            a("s_mov_b64 exec, -1")
            a(f"s_cmp_le_u32 s{sCNT}, 2")
        a.branch(f"s_cbranch_scc1 L_dw_{slot}")
        a.label(f"L_dwb_{slot}", fence=False)
        a(f"s_waitcnt vmcnt({wk})")
        if self.strip:
            for i in range(4):
                a(f"v_mfma_f32_16x16x32_bf16 {vr(S,4)}, {vr(k+4*i,4)}, {vr(self.vQ+4*i,4)}, {vr(S,4)}")
            a(f"s_waitcnt vmcnt({wv})")
            for r in range(4):
                a(f"v_mfma_f32_16x16x32_bf16 {vr(O,4)}, {vr(v+4*r,4)}, {vr(self.vB,4)}, {vr(O,4)}")
        else:
            self.block_compute(slot, wk, wv)
        self.block_end(slot)

    strip = False
    qflag = True
    rot = False
    t2gate = True
    trace = False
    binit = True
    pstride = 256
    atom_flags = 'sc0'
    def block_compute(self, slot, wk, wv):
        a = self.a
        k = self.kreg(slot); v = self.vreg(slot)
        S = self.vS; O = self.vO; P = self.vP; T = self.vT; M = self.vM; A = self.vA; L = self.vL
        a(f"v_mfma_f32_16x16x32_bf16 {vr(S,4)}, {vr(k,4)}, {vr(self.vQ,4)}, 0")
        for i in range(1, 4):
            a(f"v_mfma_f32_16x16x32_bf16 {vr(S,4)}, {vr(k+4*i,4)}, {vr(self.vQ+4*i,4)}, {vr(S,4)}")
        for r in range(4):
            self.rnd(S + r, S + r)
        a(f"v_pk_mul_f32 {vr(S,2)}, {vr(S,2)}, s[{sSCALE}:{sSCALE+1}]")
        a(f"v_pk_mul_f32 {vr(S+2,2)}, {vr(S+2,2)}, s[{sSCALE}:{sSCALE+1}]")
        for r in range(4):
            self.rnd(S + r, S + r)
        a(f"v_max3_f32 v{T}, v{S}, v{S+1}, v{S+2}")
        a(f"v_max_f32 v{T}, v{T}, v{S+3}")
        self.cross_rows("max", [T], [T + 1])
        a(f"v_mul_f32 v{T}, s{sLOG2E}, v{T}")
        a(f"v_max_f32 v{T}, v{M}, v{T}")
        a(f"v_sub_f32 v{A}, v{M}, v{T}")
        a(f"v_exp_f32 v{A}, v{A}")
        a(f"v_mov_b32 v{M}, v{T}")
        for r in range(4):
            a(f"v_fma_f32 v{P+r}, v{S+r}, s{sLOG2E}, -v{T}")
        for r in range(4):
            a(f"v_exp_f32 v{P+r}, v{P+r}")
        a(f"v_pk_mul_f32 {vr(L,2)}, {vr(L,2)}, {vr(A,2)} op_sel_hi:[1,0]")
        a(f"v_pk_mul_f32 {vr(O,2)}, {vr(O,2)}, {vr(A,2)} op_sel_hi:[1,0]")
        a(f"v_pk_mul_f32 {vr(O+2,2)}, {vr(O+2,2)}, {vr(A,2)} op_sel_hi:[1,0]")
        a(f"v_pk_add_f32 {vr(L,2)}, {vr(L,2)}, {vr(P,2)}")
        a(f"v_pk_add_f32 {vr(L,2)}, {vr(L,2)}, {vr(P+2,2)}")
        for r in range(4):
            Bs = self.vB + 4 * (r & 1)
            a(f"v_cvt_pk_bf16_f32 v{T+2+r}, v{P+r}, v{P+r}")
            for d in range(4):
                a(f"v_and_b32 v{Bs+d}, v{T+2+r}, v{self.vMK+d}")
            if r == 0:
                a(f"s_waitcnt vmcnt({wv})")
            a(f"v_mfma_f32_16x16x32_bf16 {vr(O,4)}, {vr(v+4*r,4)}, {vr(Bs,4)}, {vr(O,4)}")

    def block_end(self, slot):
        a = self.a
        a("s_waitcnt lgkmcnt(0)")
        a(f"v_readfirstlane_b32 s30, v{self.vTK}")
        a(f"s_cmp_ge_u32 s30, s{sLIM}")
        a.branch(f"s_cbranch_scc1 L_slow_{slot}")
        a(f"s_lshl_b32 s{sOFF}, s30, 12")
        a(f"s_add_u32 s{sOFF}, s{sOFF}, s{sHOME}")
        a(f"s_waitcnt vmcnt({self.pace})")
        a.label(f"L_kv_{slot}", fence=False)
        self.kv_issue(slot, self.pace if self.loop_grp == 4 else None)
        a.label(f"L_back_{slot}", fence=False)

    def kv_issue(self, slot, mid):
        a = self.a
        a(f"s_add_u32 s{sCNT}, s{sCNT}, 1")
        if self.trace:
            a(f"""
            s_memrealtime s[100:101]
            s_waitcnt lgkmcnt(0)
            s_lshl_b32 s100, s100, 8
            s_and_b32 s101, s30, 0xff
            s_or_b32 s100, s100, s101
            s_add_u32 s{sLANE}, s{sLANE}, 1
            s_lshl_b64 exec, 1, s{sLANE}
            v_mov_b32 v{V_ST}, s100
            s_mov_b64 exec, -1
            """)
        tslot = (slot + self.dist) % self.R if self.dist else slot
        k = self.kreg(tslot); v = self.vreg(tslot)
        for i in range(4):
            a(f"buffer_load_dwordx4 {vr(k+4*i,4)}, v{self.vK}, {srd(S_K)}, s{sOFF} offen offset:{64*i} nt")
        if mid is not None: a(f"s_waitcnt vmcnt({mid})")
        for i in range(4):
            a(f"buffer_load_dwordx4 {vr(v+4*i,4)}, v{self.vV}, {srd(S_V)}, s{sOFF} offen offset:{256*i} nt")

    def slow(self, slot):
        a = self.a
        a.label(f"L_slow_{slot}")
        if self.dist:
            a(f"s_cmp_eq_u32 s{sSKIP}, 0")
            a(f"s_cbranch_scc1 L_nsk_{slot}")
            a(f"s_sub_u32 s{sSKIP}, s{sSKIP}, 1")
            a(f"s_cmp_lg_u32 s{sSKIP}, 0")
            a.branch(f"s_cbranch_scc1 L_back_{slot}")
            a(f"s_mov_b32 s{sLIM}, {self.NS}")
            a(f"v_mov_b32 v{self.vOne}, 1")
            a.branch(f"s_branch L_back_{slot}")
            a.label(f"L_nsk_{slot}")
        a(f"s_cmp_lg_u32 s{sST}, 0")
        a(f"s_cbranch_scc1 L_alt_{slot}")
        a(f"s_lshl_b32 s92, s30, 2")
        a(f"v_mov_b32 v{self.vPL}, s92")
        a(f"s_mov_b32 s93, {SPIN}")
        if self.stamps:
            a(f"s_cmp_lg_u32 s{sPEND}, 0")
            a(f"s_cbranch_scc1 L_spin_{slot}")
            a(f"s_mov_b32 s{sPEND}, 1")
            self.stamp(10)
        a.label(f"L_spin_{slot}")
        a(f"ds_read_b32 v{self.vT}, v{self.vPL} offset:{TAB_LDS - 4 * self.NS}")
        a("s_waitcnt lgkmcnt(0)")
        a(f"v_readfirstlane_b32 s92, v{self.vT}")
        a(f"s_cmp_lg_u32 s92, 0")
        a(f"s_cbranch_scc1 L_got_{slot}")
        if self.stamps: a(f"s_add_u32 s{sSPIN}, s{sSPIN}, 1")
        a(f"s_sub_u32 s93, s93, 1")
        a(f"s_cmp_lg_u32 s93, 0")
        a.branch(f"s_cbranch_scc1 L_spin_{slot}")
        a(f"s_mov_b32 s92, {STOP:#x}")
        a.label(f"L_got_{slot}")
        a(f"s_cmp_lt_i32 s92, 0")
        a(f"s_cbranch_scc1 L_stop_{slot}")
        a(f"s_and_b32 s{sOFF}, s92, 0x7ff000")
        if self.retire:
            a(f"s_and_b32 s93, s92, s{sMODE}")
            a(f"s_cbranch_scc0 L_nret_{slot}")
            a(f"s_mov_b32 s{sST}, 1")
            a(f"s_mov_b32 s{sLIM}, 0")
            a(f"v_mov_b32 v{self.vOne}, 0")
            a.label(f"L_nret_{slot}", fence=False)
        if self.ppace:
            a(f"s_waitcnt vmcnt({self.ppace[0]})")
            self.kv_issue(slot, self.ppace[1])
            a.branch(f"s_branch L_back_{slot}")
        else:
            a(f"s_waitcnt vmcnt({self.pace})")
            a.branch(f"s_branch L_kv_{slot}")
        a.label(f"L_stop_{slot}")
        a(f"s_mov_b32 s{sST}, 1")
        a(f"s_mov_b32 s{sLIM}, 0")
        self.stamp(11)
        a.label(f"L_alt_{slot}")
        if self.wdrain or self.wodrain:
            a(f"s_cmp_eq_u32 s{sMODE}, 2")
            a.branch(f"s_cbranch_scc1 L_back_{slot}")
            a(f"s_cmp_eq_u32 s{sMODE}, 1")
            a(f"s_cbranch_scc1 L_altd_{slot}")
            if self.wdrain:
                n = self.wdrain
                for i in range(n):
                    self.w_load(n * slot + i)
            a.branch(f"s_branch L_back_{slot}")
            a.label(f"L_altd_{slot}")
            if self.wodrain:
                a(f"s_cmp_eq_u32 s{sDMN}, 0")
                a.branch(f"s_cbranch_scc1 L_back_{slot}")
                for p in range(self.wodrain):
                    a(f"s_mov_b32 m0, s{sWDB}")
                    a(f"buffer_load_dwordx4 v{self.vGU}, {srd(S_WO)}, s{sGUB} offen nt lds")
                    a(f"s_add_u32 s{sWDB}, s{sWDB}, 1024")
                    a(f"s_add_u32 s{sGUB}, s{sGUB}, {8*1152}")
                a(f"s_sub_u32 s{sDMN}, s{sDMN}, {self.wodrain}")
        a.branch(f"s_branch L_back_{slot}")
        a.label(f"L_dw_{slot}")
        if self.dist in (1, 2):
            a("s_waitcnt vmcnt(0)")
            a.branch(f"s_branch L_dwb_{slot}")
            return
        w = {0: (8 + 4 * self.wdrain, 5 * self.wdrain), 1: ((16, 8) if self.wodrain else (8, 0)), 2: (8, 0)}
        modes = [0, 1, 2] if (self.wdrain or self.wodrain) else [2]
        for md in modes:
            if md != modes[-1]:
                a(f"s_cmp_eq_u32 s{sMODE}, {md}")
                a(f"s_cbranch_scc0 L_dwm{md}_{slot}")
            a(f"s_cmp_eq_u32 s{sCNT}, 2")
            a(f"s_cbranch_scc1 L_dw2{md}_{slot}")
            a(f"s_waitcnt vmcnt({w[md][1]})")
            a.label(f"L_dw2{md}_{slot}", fence=False)
            a(f"s_waitcnt vmcnt({w[md][0]})")
            a.branch(f"s_branch L_dwb_{slot}")
            if md != modes[-1]:
                a.label(f"L_dwm{md}_{slot}", fence=False)

    pdelay = None
    def xdelay(self, name, k):
        if not self.pdelay: return
        a = self.a
        a.label(name)
        a("s_memrealtime s[100:101]")
        a("s_waitcnt lgkmcnt(0)")
        a("s_sub_u32 s100, s100, s3")
        a(f"s_cmp_lt_u32 s100, {self.pdelay[k]}")
        a(f"s_cbranch_scc1 {name}")
    binit_late = False
    retire = None
    dist = 0
    ppace = None
    wpace = None
    wpace_first = 3
    fswap = False
    wdrain = 0
    npre = None
    QF3 = 400
    wodrain = 0
    def w_list(self):
        L = [(self.GUq(q), S_WG, self.vGU, sGUB, q * 8 * 9216) for q in range(18)]
        L += [(self.WDq(k), S_WD, self.vWDA, sWDB, k * 8 * 1152) for k in range(8)]
        return L
    def w_load(self, idx):
        a = self.a
        reg, sr, va, sb, so = self.w_list()[idx]
        if so:
            a(f"s_add_u32 s92, s{sb}, {so}")
            a(f"buffer_load_dwordx4 {vr(reg,4)}, v{va}, {srd(sr)}, s92 offen nt")
        else:
            a(f"buffer_load_dwordx4 {vr(reg,4)}, v{va}, {srd(sr)}, s{sb} offen nt")
    def Wreg(self, f):
        return self.RING + 32 * (f // 4) + 4 * (f % 4) if f < 24 else self.RING + 32 * (f - 24) + 16
    def GUq(self, q): return self.Wreg(q)
    def WDq(self, k): return self.Wreg(18 + k)
    def WDXq(self, k): return self.RING + 32 * k + 20 if k < 6 else self.RING + 32 * (k - 6) + 24

    loop_grp = 8
    vTK, vZ, vOne = 13, 14, 15
    vPL, vDUM, vGU, vWDA = 3, 63, 60, 61

    wlds = 0
    t3k = 0
    t1f = None
    t2f = None
    pkm = False
    qa = None
    wobt = False
    t3bar = False
    dma_slot = 5
    WL_LDS = 0xD000
    def w_dma(self):
        if not self.wlds: return
        a = self.a
        a(f"s_cmp_eq_u32 s{sCLS}, 0")
        a.branch("s_cbranch_scc0 L_nowdma")
        a(f"s_mul_i32 s30, s{sWAVE}, {self.wlds * 1024}")
        a(f"s_add_u32 m0, s30, {self.WL_LDS}")
        for f in range(self.wlds):
            reg, sr, va, sb, so = self.w_list()[f]
            if f % self.pro_grp == 0: a(f"s_waitcnt vmcnt({self.pro_wait})")
            if so:
                a(f"s_add_u32 s92, s{sb}, {so}")
                a(f"buffer_load_dwordx4 v{va}, {srd(sr)}, s92 offen nt lds")
            else:
                a(f"buffer_load_dwordx4 v{va}, {srd(sr)}, s{sb} offen nt lds")
            if f < self.wlds - 1: a("s_add_u32 m0, m0, 1024")
        a.label("L_nowdma")

    def w_lds_read(self):
        a = self.a
        a(f"s_mul_i32 s30, s{sWAVE}, {self.wlds * 1024}")
        a(f"s_add_u32 s30, s30, {self.WL_LDS}")
        a("v_lshlrev_b32 v13, 4, v0")
        a("v_add_u32 v13, s30, v13")
        for f in range(self.wlds):
            a(f"ds_read_b128 {vr(self.w_list()[f][0], 4)}, v13 offset:{1024 * f}")

    def wo_dma(self):
        a = self.a
        a(f"s_cmp_eq_u32 s{sCLS}, 2")
        a("s_cbranch_scc0 L_nodma")
        a(f"s_cmp_lt_u32 s{sWAVE}, 4")
        a("s_cbranch_scc0 L_nodma")
        self.mk_srd(S_WO, 12, 4096 * 576 * 2)
        T = self.vT
        va = self.vGU if self.wodrain else T
        a(f"""
        v_lshrrev_b32 v{T}, 3, v0
        v_and_b32 v{T+1}, 6, v{T}
        v_and_b32 v{T+2}, 7, v0
        v_xor_b32 v{T+1}, v{T+1}, v{T+2}
        v_mul_u32_u24 v{T}, 1152, v{T}
        v_lshl_add_u32 v{va}, v{T+1}, 4, v{T}
        s_mul_i32 s92, s{sG}, {256*1152}
        s_lshl_b32 s30, s{sIDX}, 7
        s_add_u32 s92, s92, s30
        s_mul_i32 s30, s{sWAVE}, {8*8*1152}
        s_add_u32 s92, s92, s30
        s_lshl_b32 s30, s{sWAVE}, 13
        """)
        if self.wodrain:
            a(f"""
            s_add_u32 s{sWDB}, s30, {IMG_LDS}
            s_mov_b32 s{sGUB}, s92
            s_mov_b32 s{sDMN}, 8
            s_mov_b32 s{sMODE}, 1
            """)
        else:
            a(f"s_add_u32 m0, s30, {IMG_LDS}")
            for p in range(8):
                if p % self.pro_grp == 0: a(f"s_waitcnt vmcnt({self.pro_wait})")
                a(f"buffer_load_dwordx4 v{T}, {srd(S_WO)}, s92 offen nt lds")
                if p < 7:
                    a("s_add_u32 m0, m0, 1024")
                    a(f"s_add_u32 s92, s92, {8*1152}")
        a.label("L_nodma")

    def streaming(self):
        a = self.a; R = self.R
        a(f"""
        v_and_b32 v3, 15, v0
        v_lshlrev_b32 v{self.vK}, 8, v3
        v_lshlrev_b32 v{self.vV}, 4, v3
        v_lshrrev_b32 v3, 4, v0
        v_lshl_add_u32 v{self.vK}, v3, 4, v{self.vK}
        v_lshl_add_u32 v{self.vV}, v3, 10, v{self.vV}
        s_lshl_b32 s30, s{sG}, 23
        s_lshl_b32 s{sHOME}, s{sJ}, 19
        s_lshl_b32 s{sOFF}, s{sWAVE}, 12
        s_add_u32 s{sOFF}, s{sOFF}, s{sHOME}
        v_mov_b32 v{self.vZ}, 0
        v_mov_b32 v{self.vOne}, {0 if self.dist else 1}
        s_mov_b32 s{sSCALE}, {SCALE:#x}
        s_mov_b32 s{sSCALE+1}, {SCALE:#x}
        """)
        self.mk_masks(self.vT, self.vT + 1, 3)
        a(f"""
        v_mov_b32 v{self.vL}, 0
        v_mov_b32 v{self.vL+1}, 0
        v_mov_b32 v{self.vM}, 0xff7fffff
        """)
        for r in range(4):
            a(f"v_mov_b32 v{self.vO+r}, 0")
        a(f"""
        v_bfe_u32 v3, v0, 3, 1
        v_lshlrev_b32 v3, 8, v3
        v_lshrrev_b32 v{self.vT}, 4, v0
        v_lshl_add_u32 v3, v{self.vT}, 4, v3
        s_waitcnt lgkmcnt(0)
        """)
        self.mk_srd(S_K, 6, 0x800000, add="s30")
        self.mk_srd(S_V, 8, 0x800000, add="s30")
        if self.binit: a("s_barrier")
        for s in range(R):
            if s == self.dma_slot:
                self.wo_dma()
                self.w_dma()
            self.issue(s, grp=self.pro_grp, wait=(self.pro_wait if s > 0 or self.pro_grp < 8 else None))
            if s == 0:
                self.stamp(0)
                a(f"s_load_dword s{sTAG}, s[28:29], {WS_EPOCH}")
                self.mk_srd(S_WS, 28, WS_SIZE)
                self.mk_srd(S_WD, 20, 4608 * 576 * 2)
                self.mk_srd(S_X, 4, 1152)
                self.mk_srd(S_OUT, 26, 1152)
                a(f"s_cmp_lt_u32 s{sWAVE}, 4")
                a("s_cbranch_scc0 L_gu_up")
                self.mk_srd(S_WG, 16, 576 * 4608 * 2)
                a("s_branch L_gu_done")
                a.label("L_gu_up", fence=False)
                self.mk_srd(S_WG, 18, 576 * 4608 * 2)
                a.label("L_gu_done", fence=False)
                self.mk_sub(self.vT, self.vT + 1)
                a(f"""
                v_and_b32 v{self.vT+1}, 7, v0
                v_lshlrev_b32 v{self.vT+1}, 4, v{self.vT+1}
                v_mul_u32_u24 v{self.vGU}, 9216, v{self.vT}
                v_add_u32 v{self.vGU}, v{self.vGU}, v{self.vT+1}
                v_mul_u32_u24 v{self.vWDA}, 1152, v{self.vT}
                v_add_u32 v{self.vWDA}, v{self.vWDA}, v{self.vT+1}
                s_and_b32 s92, s{sWAVE}, 3
                s_mul_i32 s{sGUB}, s92, {144 * 9216}
                s_lshl_b32 s92, s{sIDX}, 7
                s_add_u32 s{sGUB}, s{sGUB}, s92
                s_mul_i32 s{sWDB}, s{sIDX}, {64 * 1152}
                s_lshl_b32 s92, s{sWAVE}, 7
                s_add_u32 s{sWDB}, s{sWDB}, s92
                s_mov_b32 s{sOOB}, 0x800000
                s_mov_b32 s{sST}, 0
                s_mov_b32 s{sPEND}, 0
                s_mov_b32 s{sSPIN}, 0
                s_mov_b32 s{sLANE}, 15
                s_mov_b32 s{sLIM}, {self.NS}
                s_mov_b32 s{sMODE}, 2
                s_cmp_eq_u32 s{sCLS}, 0
                s_cselect_b32 s{sMODE}, {0 if self.wdrain else 2}, s{sMODE}
                """)
                if self.retire:
                    a(f"s_cmp_ge_u32 s{sWAVE}, {self.retire[0]}")
                    a(f"s_cselect_b32 s{sMODE}, 2, 0")
                    if self.retire[2] == 0:
                        a(f"s_cmp_eq_u32 s{sCLS}, 0")
                        a(f"s_cselect_b32 s{sMODE}, 0, s{sMODE}")
                if self.dist:
                    a(f"s_mov_b32 s{sSKIP}, {R - self.dist}")
                    a(f"s_mov_b32 s{sLIM}, 0")
                a("s_waitcnt lgkmcnt(0)")
                a(f"s_mul_i32 s{sTAG}, s{sTAG}, 0x9E3779B1")
                a(f"s_add_u32 s{sTAG}, s{sTAG}, 0x7F4A7C15")
        self.stamp(1)
        if self.qflag:
            self.lds_spin("L_qfl", QFL_LDS, 1, self.vZ, self.vT, 30)
        else:
            a("s_barrier")
        for i in range(4):
            a(f"ds_read_b128 {vr(self.vQ+4*i,4)}, v3 offset:{Q_LDS+64*i}")
        a(f"s_mov_b32 s{sCNT}, {R}")
        a("s_waitcnt lgkmcnt(0)")
        self.stamp(2)
        self.encst(4)
        a.label("L_loop")
        for s in range(R):
            dd = self.dist if self.dist else R
            self.block(s, 4 + 8 * (dd - 1), 8 * (dd - 1))
            a(f"s_sub_u32 s{sCNT}, s{sCNT}, 1")
            a(f"s_cmp_eq_u32 s{sCNT}, 0")
            if s < R - 1:
                a.branch("s_cbranch_scc1 L_epi")
            else:
                a.branch("s_cbranch_scc0 L_loop")
        a.label("L_epi")
        self.stamp(3)
        self.encst(5)
        if self.stamps: a(f"v_writelane_b32 v{V_ST}, s{sSPIN}, 12")
        L = self.vL; T = self.vT
        a(f"v_add_f32 v{L}, v{L}, v{L+1}")
        self.cross_rows("add", [L], [T])
        a(f"""
        v_bfe_u32 v3, v0, 3, 1
        v_lshlrev_b32 v3, 9, v3
        v_lshrrev_b32 v{T+1}, 4, v0
        v_lshl_add_u32 v3, v{T+1}, 7, v3
        v_and_b32 v{T+1}, 7, v0
        v_lshl_add_u32 v3, v{T+1}, 2, v3
        s_lshl_b32 s30, s{sWAVE}, 10
        v_add_u32 v3, s30, v3
        """)
        for r in range(4):
            a(f"ds_write_b32 v3, v{self.vO+r} offset:{PART_LDS+32*r}")
        a(f"""
        v_bfe_u32 v{T+1}, v0, 3, 1
        v_lshlrev_b32 v{T+1}, 5, v{T+1}
        s_lshl_b32 s30, s{sWAVE}, 2
        v_add_u32 v{T+1}, s30, v{T+1}
        s_mov_b64 exec, 0x101
        ds_write_b32 v{T+1}, v{self.vM} offset:{ML_LDS}
        ds_write_b32 v{T+1}, v{L} offset:{ML_LDS+64}
        s_mov_b64 exec, -1
        s_cmp_eq_u32 s{sCLS}, 0
        """)
        a.branch("s_cbranch_scc1 L_ffn_tail")
        a(f"s_cmp_eq_u32 s{sCLS}, 2")
        a.branch("s_cbranch_scc1 L_wo_tail")
        a("""
        s_waitcnt lgkmcnt(0)
        s_barrier
        """)
        self.stamp(4)
        self.w_prefetch("mid")
        self.stamp_flush()
        a("s_endpgm")
        for s in range(R):
            self.slow(s)

    pf = None
    pfn = (4, 5, 7, 13)
    def w_prefetch(self, role):
        if self.pf is None: return
        a = self.a
        X, NT, M, C, E, NW = 48, 49, 50, 51, 52, 53
        nWo, nWe, nMo, nMe = self.pfn
        tag = "L_pf" + role
        self.mk_srd(S_WG, 16, 576 * 4608 * 2)
        self.mk_srd(S_WU, 18, 576 * 4608 * 2)
        a(f"""
        s_sub_u32 s{X}, s{sJ}, s{sG}
        s_and_b32 s{X}, s{X}, 7
        s_lshr_b32 s92, s{sG}, 3
        s_bitcmp1_b32 s{X}, 0
        s_cselect_b32 s{NT}, 8, 10
        s_movk_i32 s{M}, 205
        s_cselect_b32 s{M}, 256, s{M}
        s_cselect_b32 s{NW}, {nWo}, {nWe}
        s_cselect_b32 s93, {nMo}, {nMe}
        v_mul_u32_u24 v16, 9216, v0
        v_mul_u32_u24 v17, 1152, v0
        """)
        if role == "wo":
            a(f"""
            s_add_u32 s92, s92, 16
            s_cmp_ge_u32 s{sJ}, 8
            s_cselect_b32 s92, s{sG}, s92
            s_mul_i32 s{C}, s92, s{NW}
            s_add_u32 s{E}, s{C}, s{NW}
            s_add_u32 s{C}, s{C}, s{sWAVE}
            s_sub_u32 s{C}, s{C}, 4
            """)
            step = 3
        else:
            a(f"""
            s_cmp_eq_u32 s{sJ}, 6
            s_cselect_b32 s94, 2, 0
            s_cmp_eq_u32 s{sJ}, 4
            s_cselect_b32 s94, 4, s94
            s_add_u32 s92, s92, s94
            s_mul_i32 s{C}, s92, s93
            s_mul_i32 s94, s{NW}, 18
            s_add_u32 s{C}, s{C}, s94
            s_add_u32 s{E}, s{C}, s93
            s_add_u32 s{C}, s{C}, s{sWAVE}
            """)
            step = 7
        a.label(tag + "_loop")
        a(f"""
        s_cmp_ge_u32 s{C}, s{E}
        s_cbranch_scc1 {tag}_done
        s_mul_i32 s92, s{C}, s{M}
        s_lshr_b32 s92, s92, 11
        s_cmp_ge_u32 s92, 14
        s_cbranch_scc1 {tag}_done
        s_mul_i32 s93, s92, s{NT}
        s_sub_u32 s93, s{C}, s93
        s_add_u32 s{C}, s{C}, {step}
        s_and_b32 s94, s93, 3
        s_lshr_b32 s95, s93, 2
        s_sub_u32 s96, s93, 8
        s_cmp_ge_u32 s93, 8
        s_cselect_b32 s94, 4, s94
        s_cselect_b32 s95, s96, s95
        s_sub_u32 s96, s94, s{X}
        s_and_b32 s96, s96, 7
        s_lshl_b32 s95, s95, 3
        s_add_u32 s96, s96, s95
        s_xor_b32 s95, s96, {1 if self.fswap else 0}
        s_lshl_b32 s95, s95, 2
        s_add_u32 s95, s95, s94
        s_lshr_b32 s96, s96, 1
        s_add_u32 s96, s96, 64
        s_cmp_eq_u32 s94, 4
        s_cselect_b32 s95, s96, s95
        s_cmp_lt_u32 s92, 7
        s_cbranch_scc0 {tag}_wd
        s_and_b32 s93, s92, 3
        s_mul_i32 s93, s93, {144 * 9216}
        s_lshl_b32 s95, s95, 7
        s_add_u32 s93, s93, s95
        s_add_u32 s93, s93, {80 * 9216}
        s_cmp_lt_u32 s92, 4
        s_cbranch_scc0 {tag}_up
        buffer_load_dword v18, v16, {srd(S_WG)}, s93 offen {self.pf}
        s_branch {tag}_loop
        """)
        a.label(tag + "_up", fence=False)
        a(f"buffer_load_dword v18, v16, {srd(S_WU)}, s93 offen {self.pf}")
        a(f"s_branch {tag}_loop")
        a.label(tag + "_wd", fence=False)
        a(f"""
        s_mul_i32 s93, s95, {64 * 1152}
        s_sub_u32 s92, s92, 7
        s_lshl_b32 s92, s92, 7
        s_add_u32 s93, s93, s92
        buffer_load_dword v18, v17, {srd(S_WD)}, s93 offen {self.pf}
        s_branch {tag}_loop
        """)
        a.label(tag + "_done")

    def wo_tail(self):
        a = self.a
        a.label("L_wo_tail")
        a(f"s_cmp_lt_u32 s{sWAVE}, 4")
        a.branch("s_cbranch_scc0 L_wo_c")
        a(f"""
        s_lshl_b32 s30, s{sWAVE}, 6
        v_add_u32 v1, s30, v0
        v_lshlrev_b32 v2, 2, v1
        v_lshrrev_b32 v8, 5, v1
        v_lshlrev_b32 v8, 6, v8
        v_bfe_u32 v9, v1, 2, 2
        v_lshl_add_u32 v8, v9, 4, v8
        v_bfe_u32 v9, v1, 4, 1
        v_lshl_add_u32 v8, v9, 3, v8
        v_and_b32 v9, 3, v1
        v_lshl_add_u32 v8, v9, 1, v8
        v_and_b32 v3, 15, v0
        v_lshlrev_b32 v3, 4, v3
        s_lshr_b32 s30, s{sWAVE}, 1
        s_lshl_b32 s30, s30, 3
        v_add_u32 v3, s30, v3
        s_lshl_b32 s30, s{sG}, 14
        s_add_u32 s92, s30, {WS_T1O}
        s_add_u32 s93, s92, 4096
        s_add_u32 s94, s92, 8192
        s_add_u32 s95, s92, 12288
        s_lshl_b32 s30, s{sG}, 8
        s_add_u32 s96, s30, {WS_T1ML}
        s_waitcnt lgkmcnt(0)
        s_barrier
        """)
        self.stamp(4)
        if self.wobt: a("s_barrier")
        D = 16
        def ml_ld(): a(f"buffer_load_dwordx2 v[32:33], v3, {srd(S_WS)}, s96 offen sc1")
        def ml_ck():
            a("v_add_f32 v34, v32, v33")
            a("v_cmp_u_f32 vcc, v34, v34")
        def ml_ov():
            a("v_mov_b32 v34, v32")
            self.row_allreduce("max", [34])
            a("v_sub_f32 v35, v32, v34")
            a("v_exp_f32 v35, v35")
            a("v_mul_f32 v36, v35, v33")
            self.row_allreduce("add", [36])
            a("v_rcp_f32 v36, v36")
            a("v_mul_f32 v35, v35, v36")
        units = [(ml_ld, ml_ck, ml_ov)]
        for q in range(4):
            def ld(q=q):
                for s_ in range(4 * q, 4 * q + 4):
                    a(f"buffer_load_dword v{D+s_}, v2, {srd(S_WS)}, s{92 + q} offen offset:{1024*(s_%4)} sc1")
            def ck(q=q):
                a(f"v_add_f32 v38, v{D+4*q}, v{D+4*q+1}")
                a(f"v_add_f32 v39, v{D+4*q+2}, v{D+4*q+3}")
                a("v_add_f32 v38, v38, v39")
                a("v_cmp_u_f32 vcc, v38, v38")
            units.append((ld, ck, None))
        def dfl():
            a("s_mov_b64 exec, 1")
            a(f"ds_or_b32 v40, v41 offset:{DFL_LDS}")
            a("s_mov_b64 exec, -1")
        if self.wodrain:
            a(f"s_lshl_b32 s30, 1, s{sWAVE}")
            a("v_mov_b32 v40, 0")
            a("v_mov_b32 v41, s30")
        if self.t1f:
            TH, X = self.t1f
            for r in list(range(D, D + 16)) + [32, 33]:
                a(f"v_mov_b32 v{r}, -1")
            self.poll_begin("L_t1gate")
            ml_ld()
            a("s_waitcnt vmcnt(0)")
            a("v_cmp_o_f32 vcc, v32, v33")
            a("s_and_b32 s97, vcc_lo, 0xffff")
            a("s_bcnt1_i32_b32 s97, s97")
            a(f"s_cmp_ge_u32 s97, {TH}")
            a("s_cbranch_scc1 L_t1gate_ok")
            a(f"s_sub_u32 s{sCNT}, s{sCNT}, 1")
            a(f"s_cmp_lg_u32 s{sCNT}, 0")
            a.branch("s_cbranch_scc1 L_t1gate")
            a.label("L_t1gate_ok")
            fu = []
            for s_ in range(16):
                def ld1(s_=s_):
                    a(f"buffer_load_dword v{D+s_}, v2, {srd(S_WS)}, s{92 + s_//4} offen offset:{1024*(s_%4)} sc1")
                fu.append(([D + s_], ld1, None, False))
            fu.append(([32, 33], ml_ld, ml_ov, False))
            self.fast_poll("L_t1poll", fu, 97, X)
        else:
            self.inc_poll("L_t1poll", units, 97, dfl if self.wodrain else None)
        a("v_mov_b32 v37, 0")
        for s_ in range(16):
            a(f"v_fmac_f32_dpp v37, v35, v{D+s_} row_newbcast:{s_} row_mask:0xf bank_mask:0xf")
        a(f"v_cvt_pk_bf16_f32 v37, v37, v37")
        a(f"ds_write_b16 v8, v37 offset:{O_LDS}")
        a("s_waitcnt lgkmcnt(0)")
        self.stamp(5)
        a("s_barrier")
        self.stamp_flush()
        a("s_endpgm")
        a.label("L_wo_c")
        a("""
        s_waitcnt lgkmcnt(0)
        s_barrier
        """)
        self.stamp(4)
        if self.wobt: a("s_barrier")
        self.w_prefetch("wo")
        a.label("L_wo_mm")
        WOF = 64; OF = 96
        a(f"""
        s_sub_u32 s30, s{sWAVE}, 4
        v_bfe_u32 v1, v0, 4, 1
        v_bfe_u32 v2, v0, 2, 2
        v_lshl_add_u32 v1, v1, 2, v2
        v_bfe_u32 v2, v0, 1, 1
        s_lshl_b32 s31, s30, 1
        v_add_u32 v2, s31, v2
        v_and_b32 v3, 6, v1
        v_xor_b32 v2, v2, v3
        v_lshlrev_b32 v2, 4, v2
        v_lshl_add_u32 v2, v1, 7, v2
        v_and_b32 v3, 1, v0
        v_lshl_add_u32 v2, v3, 3, v2
        v_lshrrev_b32 v3, 5, v0
        v_lshl_add_u32 v2, v3, 10, v2
        v_add_u32 v2, {IMG_LDS}, v2
        v_lshrrev_b32 v3, 4, v0
        v_lshlrev_b32 v3, 4, v3
        """)
        if self.wodrain:
            a("v_mov_b32 v8, 0")
            self.lds_spin("L_dfl", DFL_LDS, 15, 8, 9, 31)
        for ks in range(8):
            a(f"ds_read_b64_tr_b16 {vr(WOF+4*ks,2)}, v2 offset:{4096*ks}")
            a(f"ds_read_b64_tr_b16 {vr(WOF+4*ks+2,2)}, v2 offset:{4096*ks+2048}")
        a(f"""
        s_mul_i32 s31, s{sG}, 2304
        s_lshl_b32 s93, s{sIDX}, 8
        s_add_u32 s93, s93, s31
        s_lshl_b32 s31, s30, 6
        s_add_u32 s93, s93, s31
        s_add_u32 s93, s93, {WS_T2}
        s_mov_b32 s30, 0x00010001
        s_mov_b32 s31, 0x00010001
        s_waitcnt lgkmcnt(0)
        s_barrier
        """)
        for s in range(8):
            a(f"ds_read_b128 {vr(OF+4*s,4)}, v3 offset:{O_LDS+64*s}")
        for s in range(8):
            a(f"s_waitcnt lgkmcnt({7-s})")
            c = "0" if s == 0 else vr(12, 4)
            a(f"v_mfma_f32_16x16x32_bf16 {vr(12,4)}, {vr(WOF+4*s,4)}, {vr(OF+4*s,4)}, {c}")
        a(f"""
        s_mov_b64 exec, s[30:31]
        buffer_store_dwordx4 v[12:15], v3, {srd(S_WS)}, s93 offen sc1
        s_mov_b64 exec, -1
        """)
        self.stamp(6)
        a.branch("s_branch L_fin")

    TDX = [84, 116, 148, 180, 212, 88, 120]
    def TD(self, s): return 16 + 4 * s if s < 9 else self.TDX[s - 9]
    CX, CGA, CCB, CSB = 92, 124, 156, 188
    ACC4 = 220
    UXL = (152, 184, 216, 244)
    GBQ = 252
    FINW = 6

    def ffn_addr(self):
        a = self.a
        self.mk_sub(1, 2)
        a(f"""
        v_mul_u32_u24 v8, {HD_P}, v1
        s_and_b32 s30, s{sWAVE}, 3
        s_mul_i32 s30, s30, {8 * HD_P}
        s_add_u32 s30, s30, {HD2_LDS}
        v_add_u32 v8, s30, v8
        v_lshlrev_b32 v11, 2, v1
        v_lshrrev_b32 v12, 4, v0
        v_lshlrev_b32 v12, 4, v12
        v_and_b32 v9, 7, v0
        v_lshl_add_u32 v12, v9, 5, v12
        s_lshl_b32 s30, s{sWAVE}, 8
        s_add_u32 s30, s30, {PX_LDS}
        v_add_u32 v9, s30, v12
        v_lshlrev_b32 v10, 2, v0
        v_add_u32 v10, {PX_LDS}, v10
        """)
        if self.pkm:
            M = self.vMK
            a(f"""
            v_and_b32 v14, 1, v0
            v_mul_u32_u24 v14, {HV_OFF}, v14
            v_add_u32 v8, v8, v14
            v_or_b32 v14, v{M}, v{M+1}
            v_or3_b32 v14, v14, v{M+2}, v{M+3}
            """)
            for d in range(4):
                a(f"v_cmp_ne_u32 vcc, 0, v{M+d}")
                a(f"v_cndmask_b32 v{M+d}, 0, 1.0, vcc")

    def ffn_tail(self):
        a = self.a
        a.label("L_ffn_tail")
        if self.retire: a(f"v_mov_b32 v{self.vOne}, 1")
        a("s_mov_b64 exec, 1")
        a(f"ds_add_u32 v{self.vZ}, v{self.vOne} offset:{ARR_LDS}")
        a("s_mov_b64 exec, -1")
        self.ffn_addr()
        a(f"s_cmp_lt_u32 s{sWAVE}, 3")
        a("s_cbranch_scc0 L_ffn_nog")
        a(f"""
        s_lshl_b32 s30, s{sWAVE}, 6
        v_add_u32 v52, s30, v0
        v_lshlrev_b32 v53, 4, v52
        v_lshlrev_b32 v54, 3, v52
        v_cmp_gt_u32 vcc, 144, v52
        v_mov_b32 v55, 0x7ffffff0
        v_cndmask_b32 v55, v55, v53, vcc
        v_min_u32 v56, 143, v52
        v_lshlrev_b32 v56, 4, v56
        v_mul_u32_u24 v57, 57, v52
        v_lshrrev_b32 v57, 11, v57
        v_mul_u32_u24 v58, 36, v57
        v_sub_u32 v58, v52, v58
        v_mul_u32_u24 v57, {8 * HD_P}, v57
        v_lshrrev_b32 v59, 1, v58
        v_lshl_add_u32 v57, v59, 2, v57
        v_and_b32 v58, 1, v58
        v_mul_u32_u24 v58, {4 * HD_P}, v58
        v_add_u32 v57, v57, v58
        v_add_u32 v57, {HD2_LDS}, v57
        buffer_load_dwordx2 {vr(self.CX,2)}, v54, {srd(S_X)}, 0 offen
        s_mov_b32 s92, {WS_P3}
        s_mov_b32 s93, {WS_P3 + 2304}
        s_mov_b32 s94, {WS_P3 + 4608}
        """)
        a(f"buffer_load_dwordx4 {vr(self.CGA,4)}, v56, {srd(S_WS)}, s92 offen sc1")
        a(f"buffer_load_dwordx4 {vr(self.CSB,4)}, v56, {srd(S_WS)}, s93 offen sc1")
        a(f"buffer_load_dwordx4 {vr(self.CCB,4)}, v56, {srd(S_WS)}, s94 offen sc1")
        a.label("L_ffn_nog")
        n_done = 6 * self.wdrain
        if self.wpace is not None:
            assert self.npre is not None and n_done == 0
            for f in range(0, self.npre): self.w_load(f)
            self.stamp(14)
            a("s_barrier")
            a(f"s_cmp_lt_u32 s{sWAVE}, {self.wpace_first}")
            a("s_cbranch_scc0 L_ffn_wpaced")
            for f in range(self.npre, 26): self.w_load(f)
            a.branch("s_branch L_ffn_wdone")
            a.label("L_ffn_wpaced")
            for f in range(self.npre, 26):
                a(f"s_waitcnt vmcnt({self.wpace})")
                self.w_load(f)
            a.label("L_ffn_wdone")
        elif self.wlds:
            assert n_done == 0 and self.npre is not None
            n_done = self.wlds
            bt = False
            for f in range(n_done, 26):
                if f == n_done + self.npre:
                    self.w_lds_read()
                    self.stamp(14)
                    a("s_barrier")
                    bt = True
                self.w_load(f)
            if not bt:
                self.w_lds_read()
                self.stamp(14)
                a("s_barrier")
        else:
          for f in range(n_done, 26):
            if self.npre is not None and f == n_done + self.npre:
                self.stamp(14)
                a("s_barrier")
            self.w_load(f)
        self.n_late = 26 - n_done
        if self.npre is None: self.stamp(14)
        self.stamp(4)
        a.label("L_ffn_post")
        a(f"s_cmp_lt_u32 s{sWAVE}, 3")
        a.branch("s_cbranch_scc0 L_ffn_w3")
        a(f"""
        s_mov_b32 s92, {WS_P3}
        s_mov_b32 s93, {WS_P3 + 2304}
        s_mov_b32 s94, {WS_P3 + 4608}
        """)
        regs = []
        for q in (self.CGA, self.CSB, self.CCB): regs += [q + 1, q + 3]
        a(f"s_waitcnt vmcnt({self.n_late})")
        self.tagcheck(regs, 58, 59)
        a.branch("s_cbranch_vccz L_p3poll_ok")
        self.poll_begin("L_p3poll")
        a(f"buffer_load_dwordx4 {vr(self.CGA,4)}, v56, {srd(S_WS)}, s92 offen sc1")
        a(f"buffer_load_dwordx4 {vr(self.CSB,4)}, v56, {srd(S_WS)}, s93 offen sc1")
        a(f"buffer_load_dwordx4 {vr(self.CCB,4)}, v56, {srd(S_WS)}, s94 offen sc1")
        a("s_waitcnt vmcnt(0)")
        self.tagcheck(regs, 58, 59)
        self.poll_end("L_p3poll")
        X, GA, CB, SB = self.UXL
        for dst, lo, hi in ((X, self.CX, self.CX + 1), (GA, self.CGA, self.CGA + 2), (CB, self.CCB, self.CCB + 2), (SB, self.CSB, self.CSB + 2)):
            a(f"v_lshlrev_b32 v{dst}, 16, v{lo}")
            a(f"v_and_b32 v{dst+1}, 0xffff0000, v{lo}")
            a(f"v_lshlrev_b32 v{dst+2}, 16, v{hi}")
            a(f"v_and_b32 v{dst+3}, 0xffff0000, v{hi}")
        for r in range(4):
            a(f"v_add_f32 v{CB+r}, 1.0, v{CB+r}")
        for r in range(4): self.rnd(CB + r, CB + r)
        self.stamp(8)
        for k in range(8):
            a(f"s_mov_b32 s{92+k}, {WS_T2 + 4608*k}")
        AC = self.ACC4
        if self.stamps:
            a("s_waitcnt vmcnt(0)")
            self.stamp(15)
        a("v_mov_b32 v58, 0")
        self.lds_spin("L_hfl", HFL_LDS, 1, 58, 59, 30)
        if self.t2gate:
            a(f"""
            v_mul_u32_u24 v58, 2304, v0
            s_lshl_b32 s30, s{sWAVE}, 10
            s_add_u32 s30, s30, {WS_T2}
            s_mov_b64 exec, 0xffff
            """)
            self.poll_begin("L_t2gate")
            a(f"buffer_load_dword v59, v58, {srd(S_WS)}, s30 offen sc1")
            a("s_waitcnt vmcnt(0)")
            a("v_cmp_o_f32 vcc, v59, v59")
            a(f"s_cbranch_vccnz L_t2gate_ok")
            a(f"s_sub_u32 s{sCNT}, s{sCNT}, 1")
            a(f"s_cmp_lg_u32 s{sCNT}, 0")
            a.branch("s_cbranch_scc1 L_t2gate")
            a.label("L_t2gate_ok")
            a("s_mov_b64 exec, -1")
        units = []
        for q in range(4):
            def ld(q=q):
                for s_ in range(4 * q, 4 * q + 4):
                    a(f"buffer_load_dwordx4 {vr(self.TD(s_),4)}, v55, {srd(S_WS)}, s{92 + s_//2} offen offset:{2304*(s_%2)} sc1")
            def ck(q=q):
                t = [self.TD(4 * q + k) for k in range(4)]
                for h in (0, 2):
                    a(f"v_pk_add_f32 {vr(t[0]+h,2)}, {vr(t[0]+h,2)}, {vr(t[1]+h,2)}")
                    a(f"v_pk_add_f32 {vr(t[2]+h,2)}, {vr(t[2]+h,2)}, {vr(t[3]+h,2)}")
                for h in (0, 2):
                    a(f"v_pk_add_f32 {vr(t[0]+h,2)}, {vr(t[0]+h,2)}, {vr(t[2]+h,2)}")
                a(f"v_add_f32 v248, v{t[0]}, v{t[0]+1}")
                a(f"v_add_f32 v249, v{t[0]+2}, v{t[0]+3}")
                a("v_add_f32 v248, v248, v249")
                a("v_cmp_u_f32 vcc, v248, v248")
            units.append((ld, ck, None))
        self.inc_poll("L_t2poll", units, 31)
        q0, q1, q2, q3 = [self.TD(4 * q) for q in range(4)]
        for h in (0, 2):
            a(f"v_pk_add_f32 {vr(q0+h,2)}, {vr(q0+h,2)}, {vr(q1+h,2)}")
            a(f"v_pk_add_f32 {vr(q2+h,2)}, {vr(q2+h,2)}, {vr(q3+h,2)}")
        for h in (0, 2):
            a(f"v_pk_add_f32 {vr(AC+h,2)}, {vr(q0+h,2)}, {vr(q2+h,2)}")
        self.stamp(5)
        if self.pkm: a(f"v_add_u32 v55, {HV_OFF}, v57")
        for r in range(4): self.rnd(AC + r, AC + r)
        a(f"v_pk_mul_f32 {vr(AC,2)}, {vr(AC,2)}, {vr(GA,2)}")
        a(f"v_pk_mul_f32 {vr(AC+2,2)}, {vr(AC+2,2)}, {vr(GA+2,2)}")
        for r in range(4): self.rnd(AC + r, AC + r)
        a(f"v_pk_add_f32 {vr(AC,2)}, {vr(AC,2)}, {vr(X,2)}")
        a(f"v_pk_add_f32 {vr(AC+2,2)}, {vr(AC+2,2)}, {vr(X+2,2)}")
        for r in range(4): self.rnd(AC + r, AC + r)
        a(f"ds_write_b128 v53, {vr(AC,4)} offset:{X1_LDS}")
        a(f"v_add_f32 v248, v{AC}, v{AC+1}")
        a(f"v_mul_f32 v249, v{AC}, v{AC}")
        a(f"v_add_f32 v250, v{AC+2}, v{AC+3}")
        a(f"v_fmac_f32 v249, v{AC+1}, v{AC+1}")
        a(f"v_add_f32 v248, v248, v250")
        a(f"v_fmac_f32 v249, v{AC+2}, v{AC+2}")
        a(f"v_fmac_f32 v249, v{AC+3}, v{AC+3}")
        self.row_allreduce("add", [248, 249])
        self.cross_rows("add", [248, 249], [250, 251])
        a(f"""
        s_lshl_b32 s30, s{sWAVE}, 3
        v_mov_b32 v250, s30
        s_mov_b64 exec, 1
        ds_write_b64 v250, v[248:249] offset:{ST_LDS}
        s_mov_b64 exec, -1
        s_waitcnt lgkmcnt(0)
        s_barrier
        v_mov_b32 v250, 0
        ds_read_b128 v[20:23], v250 offset:{ST_LDS}
        ds_read_b64 v[24:25], v250 offset:{ST_LDS+16}
        s_waitcnt lgkmcnt(0)
        v_add_f32 v248, v20, v22
        v_add_f32 v249, v21, v23
        v_add_f32 v248, v248, v24
        v_add_f32 v249, v249, v25
        v_mul_f32 v248, {f32(1.0/576.0)}, v248
        v_mul_f32 v249, {f32(1.0/576.0)}, v249
        v_fma_f32 v249, -v248, v248, v249
        v_max_f32 v249, 0, v249
        """)
        self.ln_finish(248, 249)
        for r in range(4):
            a(f"v_sub_f32 v{AC+r}, v{AC+r}, v248")
        for r in range(4): self.rnd(AC + r, AC + r)
        for r in range(4):
            a(f"v_mul_f32 v{AC+r}, v{AC+r}, v249")
        for r in range(4): self.rnd(AC + r, AC + r)
        a(f"v_pk_mul_f32 {vr(AC,2)}, {vr(AC,2)}, {vr(CB,2)}")
        a(f"v_pk_mul_f32 {vr(AC+2,2)}, {vr(AC+2,2)}, {vr(CB+2,2)}")
        for r in range(4): self.rnd(AC + r, AC + r)
        a(f"v_pk_add_f32 {vr(AC,2)}, {vr(AC,2)}, {vr(SB,2)}")
        a(f"v_pk_add_f32 {vr(AC+2,2)}, {vr(AC+2,2)}, {vr(SB+2,2)}")
        if self.dbg:
            a(f"v_cvt_pk_bf16_f32 v250, v{AC}, v{AC+1}")
            a(f"v_cvt_pk_bf16_f32 v251, v{AC+2}, v{AC+3}")
            a(f"s_lshl_b32 s92, s{sIDX}, 11")
            a(f"s_add_u32 s92, s92, {WS_DBG}")
            a(f"buffer_store_dwordx2 v[250:251], v54, {srd(S_WS)}, s92 offen")
        if self.pkm:
            for r in range(4):
                a(f"v_cvt_pk_bf16_f32 v{16+r}, v{AC+r}, 0")
            a(f"ds_write2_b32 v57, v16, v17 offset0:0 offset1:{HD_P//4}")
            a(f"ds_write2_b32 v57, v18, v19 offset0:{2*HD_P//4} offset1:{3*HD_P//4}")
            for r in range(4):
                a(f"v_cvt_pk_bf16_f32 v{AC+r}, 0, v{AC+r}")
            a(f"ds_write2_b32 v55, v{AC}, v{AC+1} offset0:0 offset1:{HD_P//4}")
            a(f"ds_write2_b32 v55, v{AC+2}, v{AC+3} offset0:{2*HD_P//4} offset1:{3*HD_P//4}")
        else:
            for r in range(4):
                a(f"v_cvt_pk_bf16_f32 v{AC+r}, v{AC+r}, v{AC+r}")
            a(f"ds_write2_b32 v57, v{AC}, v{AC+1} offset0:0 offset1:{HD_P//4}")
            a(f"ds_write2_b32 v57, v{AC+2}, v{AC+3} offset0:{2*HD_P//4} offset1:{3*HD_P//4}")
        a("s_waitcnt lgkmcnt(0)")
        self.stamp(6)
        a.branch("s_branch L_ffn_b4")
        a.label("L_ffn_w3")
        a(f"s_cmp_eq_u32 s{sWAVE}, {self.FINW}")
        a("s_cbranch_scc0 L_ffn_nogb")
        a(f"""
        v_and_b32 v56, 3, v0
        v_lshlrev_b32 v56, 4, v56
        s_min_u32 s92, s{sIDX}, 35
        s_lshl_b32 s92, s92, 6
        s_add_u32 s92, s92, {WS_P3 + 1728*4}
        """)
        self.poll_begin("L_gbpoll")
        a(f"buffer_load_dwordx4 {vr(self.GBQ,4)}, v56, {srd(S_WS)}, s92 offen sc1")
        a("s_waitcnt vmcnt(0)")
        self.tagcheck([self.GBQ + 1, self.GBQ + 3], 58, 59)
        self.poll_end("L_gbpoll")
        a.label("L_ffn_nogb")
        if self.stamps:
            a("s_waitcnt vmcnt(0)")
            a(f"s_cmp_eq_u32 s{sWAVE}, 7")
            a("s_cbranch_scc1 L_ffn_ns15")
            self.stamp(15)
            a.label("L_ffn_ns15")
        a("s_barrier")
        a.label("L_ffn_b4")
        if self.pkm: a("s_setreg_imm32_b32 hwreg(HW_REG_MODE, 4, 2), 3")
        a("s_barrier")
        AV = 16
        for q in range(5):
            a(f"ds_read_b128 {vr(AV+4*q,4)}, v8 offset:{16*q}")
        kb = 0.7978845608028654; kk = 0.044715
        c1 = -2.0 * kb * 1.4426950408889634
        a(f"""
        s_mov_b32 s92, {f32(kk)}
        s_mov_b32 s30, 0x00ff00ff
        s_mov_b32 s31, 0
        s_mul_i32 s93, s{sIDX}, 2304
        s_lshl_b32 s94, s{sWAVE}, 8
        s_add_u32 s93, s93, s94
        s_add_u32 s93, s93, {WS_T3}
        s_waitcnt vmcnt(0) lgkmcnt(0)
        """)
        self.stamp(9)
        G = self.gemv_pk if self.pkm else self.gemv
        G([self.GUq(t) for t in range(18)], 18, [AV + t for t in range(18)], 40, 48, True)
        self.halfsum(48, 52)
        a(f"""
        s_mov_b64 exec, s[30:31]
        ds_write_b128 v9, v[48:51]
        s_mov_b64 exec, -1
        s_waitcnt lgkmcnt(0)
        s_barrier
        """)
        for w in range(8):
            a(f"ds_read_b32 v{16+w}, v10 offset:{256*w}")
        a(f"""
        s_waitcnt lgkmcnt(4)
        v_add_f32 v16, v16, v17
        v_add_f32 v18, v18, v19
        v_add_f32 v24, v16, v18
        s_waitcnt lgkmcnt(0)
        v_add_f32 v20, v20, v21
        v_add_f32 v22, v22, v23
        v_add_f32 v25, v20, v22
        """)
        self.rnd(24, 24)
        self.rnd(25, 25)
        a(f"""
        v_mul_f32 v26, v24, v24
        v_fma_f32 v26, v26, s92, 1.0
        v_mul_f32 v26, v26, v24
        v_mul_f32 v26, {f32(c1)}, v26
        v_exp_f32 v26, v26
        v_add_f32 v26, 1.0, v26
        v_rcp_f32 v26, v26
        v_mul_f32 v26, v26, v24
        """)
        self.rnd(26, 26)
        a("v_mul_f32 v26, v26, v25")
        a("v_cvt_pk_bf16_f32 v26, v26, v26")
        if self.dbg:
            a(f"""
            v_lshlrev_b32 v54, 1, v0
            s_lshl_b32 s92, s{sIDX}, 7
            s_add_u32 s92, s92, {WS_DBG + 0x40000}
            buffer_store_short v26, v54, {srd(S_WS)}, s92 offen
            s_add_u32 s92, s92, 0x4000
            buffer_store_short_d16_hi v24, v54, {srd(S_WS)}, s92 offen
            s_add_u32 s92, s92, 0x4000
            buffer_store_short_d16_hi v25, v54, {srd(S_WS)}, s92 offen
            """)
        for t in range(8):
            a(f"ds_bpermute_b32 v{16+t}, v11, v26 offset:{32*t}")
        AVd = [16 + t for t in range(8)]
        if self.pkm:
            for t in range(8):
                a(f"s_waitcnt lgkmcnt({7 - t})")
                a(f"v_and_b32 v{16+t}, v{16+t}, v14")
        else:
            a("s_waitcnt lgkmcnt(0)")
        G([self.WDq(t) for t in range(8)], 8, AVd, 40, 48, True)
        self.halfsum(48, 52)
        a(f"""
        s_mov_b64 exec, s[30:31]
        buffer_store_dwordx4 v[48:51], v12, {srd(S_WS)}, s93 offen sc1
        s_mov_b64 exec, -1
        """)
        a(f"s_cmp_eq_u32 s{sWAVE}, 7")
        a("s_cbranch_scc0 L_ffn_nod3")
        G([self.WDXq(t) for t in range(8)], 8, AVd, 40, 36, True)
        self.halfsum(36, 32)
        a(f"""
        s_mul_i32 s93, s{sIDX}, 2304
        s_add_u32 s93, s93, {WS_T3 + 8*256}
        s_mov_b64 exec, s[30:31]
        buffer_store_dwordx4 v[36:39], v12, {srd(S_WS)}, s93 offen sc1
        s_mov_b64 exec, -1
        """)
        a.label("L_ffn_nod3")
        self.stamp(7)
        self.encst(6)
        if self.t3bar: a("s_barrier")
        a(f"s_cmp_eq_u32 s{sWAVE}, {self.FINW}")
        a.branch("s_cbranch_scc0 L_fin")
        a(f"s_cmp_lt_u32 s{sIDX}, 36")
        a.branch("s_cbranch_scc0 L_fin")
        a(f"""
        v_lshrrev_b32 v1, 2, v0
        v_mul_u32_u24 v2, 2304, v1
        v_and_b32 v3, 3, v0
        v_lshl_add_u32 v2, v3, 4, v2
        v_cmp_gt_u32 vcc, 8, v1
        v_mov_b32 v8, 0x7ffffff0
        v_cndmask_b32 v8, v8, v2, vcc
        v_lshlrev_b32 v9, 4, v3
        s_lshl_b32 s30, s{sIDX}, 6
        v_add_u32 v9, s30, v9
        v_lshrrev_b32 v10, 1, v9
        ds_read_b128 v[40:43], v9 offset:{X1_LDS}
        s_add_u32 s92, s30, {WS_T3}
        s_add_u32 s93, s92, {16*2304}
        s_add_u32 s94, s92, {32*2304}
        s_add_u32 s95, s92, {48*2304}
        s_add_u32 s96, s92, {64*2304}
        """)
        if self.t3k:
            K = self.t3k
            def base(k): return 64 + 20 * k
            def t3ld(k):
                for t in range(5):
                    a(f"buffer_load_dwordx4 {vr(base(k)+4*t,4)}, v{2 if t < 4 else 8}, {srd(S_WS)}, s{92+t} offen sc1")
            for k in range(K): t3ld(k)
            a(f"s_mov_b32 s{sCNT}, {SPIN}")
            a.label("L_t3poll")
            for k in range(K):
                b = base(k)
                a(f"s_waitcnt vmcnt({5 * (K - 1) + 3})")
                a(f"v_pk_add_f32 v[16:17], {vr(b,2)}, {vr(b+4,2)}")
                a(f"v_pk_add_f32 v[18:19], {vr(b+2,2)}, {vr(b+6,2)}")
                for t in range(2, 5):
                    a(f"s_waitcnt vmcnt({5 * (K - 1) + 4 - t})")
                    a(f"v_pk_add_f32 v[16:17], v[16:17], {vr(b+4*t,2)}")
                    a(f"v_pk_add_f32 v[18:19], v[18:19], {vr(b+4*t+2,2)}")
                a("v_add_f32 v24, v16, v17")
                a("v_add_f32 v25, v18, v19")
                a("v_add_f32 v24, v24, v25")
                a("v_cmp_u_f32 vcc, v24, v24")
                a.branch("s_cbranch_vccz L_t3poll_ok")
                t3ld(k)
            a(f"s_sub_u32 s{sCNT}, s{sCNT}, 1")
            a(f"s_cmp_lg_u32 s{sCNT}, 0")
            a.branch("s_cbranch_scc1 L_t3poll")
            a.label("L_t3poll_ok")
            self.row_allreduce("add", [16, 17, 18, 19], shifts=(8, 4))
            self.cross_rows("add", [16, 17, 18, 19], [20, 21, 22, 23])
        else:
            self.poll_begin("L_t3poll")
            for t in range(5):
                a(f"buffer_load_dwordx4 {vr(16+4*t,4)}, v{2 if t < 4 else 8}, {srd(S_WS)}, s{92+t} offen sc1")
            for t in range(1, 5):
                a(f"s_waitcnt vmcnt({4-t})")
                a(f"v_pk_add_f32 v[16:17], v[16:17], {vr(16+4*t,2)}")
                a(f"v_pk_add_f32 v[18:19], v[18:19], {vr(18+4*t,2)}")
            self.row_allreduce("add", [16, 17, 18, 19], shifts=(8, 4))
            self.cross_rows("add", [16, 17, 18, 19], [20, 21, 22, 23])
            a("v_add_f32 v24, v16, v17")
            a("v_add_f32 v25, v18, v19")
            a("v_add_f32 v24, v24, v25")
            a("v_cmp_u_f32 vcc, v24, v24")
            self.poll_end("L_t3poll")
        for r in range(4): self.rnd(16 + r, 16 + r)
        a(f"""
        v_lshlrev_b32 v20, 16, v{self.GBQ}
        v_and_b32 v21, 0xffff0000, v{self.GBQ}
        v_lshlrev_b32 v22, 16, v{self.GBQ+2}
        v_and_b32 v23, 0xffff0000, v{self.GBQ+2}
        s_waitcnt lgkmcnt(0)
        v_pk_mul_f32 v[16:17], v[16:17], v[20:21]
        v_pk_mul_f32 v[18:19], v[18:19], v[22:23]
        """)
        for r in range(4): self.rnd(16 + r, 16 + r)
        a(f"""
        v_pk_add_f32 v[16:17], v[16:17], v[40:41]
        v_pk_add_f32 v[18:19], v[18:19], v[42:43]
        v_cvt_pk_bf16_f32 v16, v16, v17
        v_cvt_pk_bf16_f32 v17, v18, v19
        """)
        if self.enc:
            self.encst(7)
            a(f"""
            s_and_b32 s92, s{sIDX}, 3
            s_cmp_eq_u32 s92, 1
            s_cselect_b32 s7, s5, s7
            s_cmp_eq_u32 s92, 2
            s_cselect_b32 s7, s4, s7
            s_cmp_eq_u32 s92, 3
            s_cselect_b32 s7, s6, s7
            v_lshlrev_b32 v20, 2, v0
            v_lshrrev_b32 v20, v20, s7
            v_and_b32 v21, 1, v20
            v_bfe_u32 v22, v20, 1, 1
            v_lshl_or_b32 v21, v22, 16, v21
            v_and_b32 v16, 0xfffefffe, v16
            v_or_b32 v16, v16, v21
            v_bfe_u32 v21, v20, 2, 1
            v_bfe_u32 v22, v20, 3, 1
            v_lshl_or_b32 v21, v22, 16, v21
            v_and_b32 v17, 0xfffefffe, v17
            v_or_b32 v17, v17, v21
            """)
        a(f"""
        s_mov_b64 exec, 0xf
        buffer_store_dwordx2 v[16:17], v10, {srd(S_OUT)}, 0 offen
        s_mov_b64 exec, -1
        """)
        self.stamp(5)
        a.label("L_fin")
        a("s_cmp_eq_u32 s2, 0")
        a("s_cbranch_scc0 L_fin2")
        a(f"s_cmp_eq_u32 s{sWAVE}, 7")
        a("s_cbranch_scc0 L_fin2")
        a(f"""
        s_load_dword s30, s[28:29], {WS_EPOCH}
        s_waitcnt lgkmcnt(0)
        s_add_u32 s30, s30, 1
        v_mov_b32 v16, s30
        v_mov_b32 v17, {WS_EPOCH}
        s_mov_b64 exec, 1
        buffer_store_dword v16, v17, {srd(S_WS)}, 0 offen sc1
        s_mov_b64 exec, -1
        """)
        a.label("L_fin2")
        self.stamp_flush()
        a("s_endpgm")

    def service(self):
        a = self.a
        a.label("L_service")
        if self.pdelay: a("s_mov_b32 s3, s98")
        AV = 16
        ASET = 40
        ACC = 48
        T4 = 52
        WA = 64
        WQ = 136
        XR = 208
        XP = 214
        CR = 216
        XV = 220
        NP = 232
        G = 64
        PROD = f"s_cmp_lt_i32 s{sPA}, 0"
        a(f"""
        s_setprio 3
        v_lshlrev_b32 v1, 1, v0
        v_lshlrev_b32 v3, 3, v0
        v_lshlrev_b32 v2, 2, v0
        v_lshlrev_b32 v8, 4, v0
        """)
        self.mk_sub(9, 10)
        a(f"""
        v_and_b32 v10, 7, v0
        v_lshlrev_b32 v10, 4, v10
        v_mul_u32_u24 v11, 6912, v9
        v_add_u32 v11, v11, v10
        v_lshl_add_u32 v12, v9, 13, v10
        v_mul_u32_u24 v13, {HD_P}, v9
        s_and_b32 s92, s{sPA}, 3
        s_lshr_b32 s93, s{sPA}, 2
        s_mul_i32 s94, s92, 288
        s_mul_i32 s95, s92, {144*6912}
        s_lshl_b32 s96, s93, 7
        s_add_u32 s95, s95, s96
        s_waitcnt lgkmcnt(0)
        """)
        self.mk_srd(S_C, 22, 1152)
        self.mk_srd(S_WMOD, 24, 576 * 3456 * 2)
        a(PROD)
        a("s_cbranch_scc1 L_sv_nop1a")
        for i in range(3):
            a(f"buffer_load_ushort v{CR+i}, v1, {srd(S_C)}, s94 offen offset:{128*i}")
        for t in range(18):
            a(f"buffer_load_dwordx4 {vr(WA+4*t,4)}, v11, {srd(S_WMOD)}, s95 offen nt")
            if t < 17: a(f"s_add_u32 s95, s95, {8*6912}")
        a.label("L_sv_nop1a")
        a(f"v_mov_b32 v56, {7*self.R}")
        a("v_mov_b32 v57, 0")
        a("v_mov_b32 v58, 0")
        a("v_mov_b32 v59, 0")
        a(f"ds_write_b128 v57, v[56:59] offset:{CTR_LDS}")
        a(f"ds_write_b32 v57, v57 offset:{DFL_LDS}")
        a("s_waitcnt lgkmcnt(0)")
        if self.binit and not self.binit_late: a("s_barrier")
        a(f"s_load_dword s{sTAG}, s[28:29], {WS_EPOCH}")
        self.tab_init()
        self.mk_srd(S_X, 4, 1152)
        self.mk_srd(S_WQ, 10, 576 * 4096 * 2)
        for j in range(3):
            a(f"buffer_load_dwordx2 {vr(XR+2*j,2)}, v3, {srd(S_X)}, 0 offen offset:{512*j}")
        a(f"""
        s_lshr_b32 s96, s{sJ}, 2
        s_mul_i32 s97, s96, 288
        buffer_load_dword v{XP}, v2, {srd(S_X)}, s97 offen
        buffer_load_dword v{XP+1}, v2, {srd(S_X)}, s97 offen offset:256
        s_mul_i32 s98, s96, {144*8192}
        s_lshl_b32 s99, s{sG}, 9
        s_add_u32 s98, s98, s99
        s_and_b32 s99, s{sJ}, 3
        s_lshl_b32 s99, s99, 7
        s_add_u32 s98, s98, s99
        """)
        for t in range(18):
            a(f"buffer_load_dwordx4 {vr(WQ+4*t,4)}, v12, {srd(S_WQ)}, s98 offen nt")
            if t < 17: a(f"s_add_u32 s98, s98, {8*8192}")
        if self.binit and self.binit_late: a("s_barrier")
        self.mk_srd(S_WS, 28, WS_SIZE)
        self.mk_masks(56, 57, 58)
        a("s_waitcnt lgkmcnt(0)")
        a(f"s_mul_i32 s{sTAG}, s{sTAG}, 0x9E3779B1")
        a(f"s_add_u32 s{sTAG}, s{sTAG}, 0x7F4A7C15")
        self.stamp(0)
        a(f"""
        v_and_b32 v15, 7, v0
        v_lshlrev_b32 v15, 6, v15
        v_lshrrev_b32 v56, 4, v0
        v_lshl_add_u32 v15, v56, 5, v15
        v_and_b32 v56, 7, v0
        v_mul_u32_u24 v56, {HD_P}, v56
        v_lshrrev_b32 v57, 3, v0
        v_lshl_add_u32 v56, v57, 2, v56
        """)
        a(PROD)
        a.branch("s_cbranch_scc1 L_sv_nop1b")
        a("s_waitcnt vmcnt(41)")
        for i in range(3):
            a(f"v_lshlrev_b32 v{CR+i}, 16, v{CR+i}")
            self.silu(CR + i, T4 + i, 58, 59)
        a(f"ds_write_b32 v56, v{T4} offset:{HD_LDS}")
        a(f"ds_write_b32 v56, v{T4+1} offset:{HD_LDS+32}")
        a("s_mov_b64 exec, 0xffff")
        a(f"ds_write_b32 v56, v{T4+2} offset:{HD_LDS+64}")
        a("s_mov_b64 exec, -1")
        a("s_waitcnt lgkmcnt(0)")
        for q in range(5):
            a(f"ds_read_b128 {vr(AV+4*q,4)}, v13 offset:{HD_LDS+16*q}")
        a("s_waitcnt lgkmcnt(0)")
        waits = {t: f"s_waitcnt vmcnt({23 + 15 - t})" for t in range(0, 18, 3)}
        self.gemv(WA, 18, [AV + t for t in range(18)], ASET, ACC, True, waits)
        self.halfsum(ACC, T4)
        self.publish_f32(ACC, 15, None)
        a(f"""
        s_and_b32 s92, s{sPA}, 3
        s_mul_i32 s92, s92, {P1S}
        s_lshr_b32 s93, s{sPA}, 2
        s_lshl_b32 s93, s93, 9
        s_add_u32 s92, s92, s93
        s_add_u32 s92, s92, {WS_P1}
        """)
        self.publish_store(15, "s92")
        a.label("L_sv_nop1b")
        self.stamp(1)
        a("s_waitcnt vmcnt(18)")
        for j in range(3):
            for d in range(2):
                a(f"v_lshlrev_b32 v{XV+4*j+2*d}, 16, v{XR+2*j+d}")
                a(f"v_and_b32 v{XV+4*j+2*d+1}, 0xffff0000, v{XR+2*j+d}")
        a(f"v_add_f32 v56, v{XV}, v{XV+1}")
        for k in range(2, 12):
            a(f"v_add_f32 v56, v56, v{XV+k}")
        self.row_allreduce("add", [56])
        self.cross_rows("add", [56], [57])
        a(f"v_mul_f32 v56, {f32(1.0/576.0)}, v56")
        a("v_mov_b32 v57, 0")
        for k in range(8):
            a(f"v_sub_f32 v58, v{XV+k}, v56")
            a("v_fmac_f32 v57, v58, v58")
        a("s_mov_b64 exec, 0xffff")
        for k in range(8, 12):
            a(f"v_sub_f32 v58, v{XV+k}, v56")
            a("v_fmac_f32 v57, v58, v58")
        a("s_mov_b64 exec, -1")
        self.row_allreduce("add", [57])
        self.cross_rows("add", [57], [58])
        a(f"v_mul_f32 v57, {f32(1.0/576.0)}, v57")
        self.ln_finish(56, 57)
        a(f"v_lshlrev_b32 v{NP}, 16, v{XP}")
        a(f"v_and_b32 v{NP+1}, 0xffff0000, v{XP}")
        a(f"v_lshlrev_b32 v{NP+2}, 16, v{XP+1}")
        a(f"v_and_b32 v{NP+3}, 0xffff0000, v{XP+1}")
        for k in range(4): a(f"v_sub_f32 v{NP+k}, v{NP+k}, v56")
        for k in range(4): self.rnd(NP + k, NP + k)
        for k in range(4): a(f"v_mul_f32 v{NP+k}, v{NP+k}, v57")
        for k in range(4): self.rnd(NP + k, NP + k)
        a(f"""
        v_min_u32 v58, 7, v0
        v_lshlrev_b32 v58, 4, v58
        v_add_u32 v58, 1024, v58
        s_lshr_b32 s96, s{sJ}, 2
        s_mul_i32 s96, s96, 1152
        s_add_u32 s92, s96, {WS_P1}
        s_add_u32 s93, s92, {P1S}
        s_add_u32 s94, s92, {2*P1S}
        s_add_u32 s95, s92, {3*P1S}
        s_add_u32 s96, s92, 4608
        s_add_u32 s97, s93, 4608
        s_add_u32 s98, s94, 4608
        s_add_u32 s99, s95, 4608
        v_and_b32 v59, 3, v0
        v_mul_u32_u24 v59, {2*HD_P}, v59
        v_lshrrev_b32 v57, 2, v0
        v_lshl_add_u32 v59, v57, 2, v59
        """)
        a(f"s_cmp_eq_u32 s{sJ}, 0")
        a("s_cbranch_scc0 L_sv_noinit")
        a(f"""
        s_mul_i32 s30, s{sG}, {self.pstride}
        s_add_u32 s30, s30, {WS_POOL}
        v_mov_b32 v56, {self.PBASE if self.nb else 0}
        v_mov_b32 v57, 0
        s_mov_b64 exec, 1
        buffer_store_dword v56, v57, {srd(S_WS)}, s30 offen sc1
        s_mov_b64 exec, -1
        """)
        a.label("L_sv_noinit")
        self.stamp(2)
        self.xdelay("L_xd1", 0)
        self.poll_begin("L_p1poll")
        for s in range(4):
            a(f"buffer_load_dwordx4 {vr(G+16*s,4)}, v8, {srd(S_WS)}, s{92+s} offen sc1")
            a(f"buffer_load_dwordx4 {vr(G+16*s+8,4)}, v8, {srd(S_WS)}, s{96+s} offen sc1")
        for s in range(4):
            a(f"buffer_load_dwordx4 {vr(G+16*s+4,4)}, v58, {srd(S_WS)}, s{92+s} offen sc1")
            a(f"buffer_load_dwordx4 {vr(G+16*s+12,4)}, v58, {srd(S_WS)}, s{96+s} offen sc1")
        a("s_waitcnt vmcnt(0)")
        self.tagcheck([G + 2 * k + 1 for k in range(32)], 56, 57)
        self.poll_end("L_p1poll")
        if self.stamps: a(f"v_writelane_b32 v{V_ST}, s{sCNT}, 6")
        self.stamp(3)
        for o in (0, 2, 4, 6, 8, 10, 12, 14):
            a(f"v_add_f32 v{G+o}, v{G+o}, v{G+16+o}")
            a(f"v_add_f32 v{G+32+o}, v{G+32+o}, v{G+48+o}")
        for o in (0, 2, 4, 6, 8, 10, 12, 14):
            a(f"v_add_f32 v{G+o}, v{G+o}, v{G+32+o}")
        for o in (0, 2, 4, 6, 8, 10, 12, 14):
            self.rnd(G + o, G + o)
        pairs = [(0, 0, 8), (1, 2, 10), (2, 4, 12), (3, 6, 14)]
        for k, so, co in pairs: a(f"v_add_f32 v{G+co}, 1.0, v{G+co}")
        for k, so, co in pairs: self.rnd(G + co, G + co)
        for k, so, co in pairs: a(f"v_mul_f32 v{G+co}, v{G+co}, v{NP+k}")
        for k, so, co in pairs: self.rnd(G + co, G + co)
        for k, so, co in pairs: a(f"v_add_f32 v{G+co}, v{G+co}, v{G+so}")
        for k, so, co in pairs: a(f"v_cvt_pk_bf16_f32 v{G+co}, v{G+co}, v{G+co}")
        a(f"v_add_u32 v59, {HD_LDS}, v59")
        a(f"ds_write2_b32 v59, v{G+8}, v{G+10} offset0:0 offset1:{HD_P//4}")
        a("s_mov_b64 exec, 0xff")
        a(f"ds_write2_b32 v59, v{G+12}, v{G+14} offset0:16 offset1:{16 + HD_P//4}")
        a("s_mov_b64 exec, -1")
        a("s_waitcnt lgkmcnt(0)")
        for q in range(5):
            a(f"ds_read_b128 {vr(AV+4*q,4)}, v13 offset:{HD_LDS+16*q}")
        a(f"""
        s_lshl_b32 s92, s{sG}, 2
        s_lshr_b32 s93, s{sJ}, 2
        s_add_u32 s92, s92, s93
        s_lshl_b32 s92, s92, 11
        s_and_b32 s93, s{sJ}, 3
        s_lshl_b32 s93, s93, 9
        s_add_u32 s92, s92, s93
        s_add_u32 s92, s92, {WS_P2}
        s_lshl_b32 s93, s{sG}, 13
        s_add_u32 s93, s93, {WS_P2}
        s_add_u32 s94, s93, 2048
        s_add_u32 s95, s93, 4096
        s_add_u32 s96, s93, 6144
        s_waitcnt lgkmcnt(0)
        """)
        self.gemv(WQ, 18, [AV + t for t in range(18)], ASET, ACC, True)
        self.halfsum(ACC, T4)
        self.publish_f32(ACC, 15, None)
        self.publish_store(15, "s92")
        self.stamp(4)
        self.xdelay("L_xd2", 1)
        self.poll_begin("L_p2poll")
        for kp in range(4):
            for hf in range(2):
                a(f"buffer_load_dwordx4 {vr(G+8*kp+4*hf,4)}, v8, {srd(S_WS)}, s{93+kp} offen offset:{1024*hf} sc1")
        a("s_waitcnt vmcnt(0)")
        self.tagcheck([G + 2 * k + 1 for k in range(16)], 56, 57)
        self.poll_end("L_p2poll")
        if self.stamps: a(f"v_writelane_b32 v{V_ST}, s{sCNT}, 9")
        for o in (0, 2, 4, 6):
            a(f"v_add_f32 v{G+o}, v{G+o}, v{G+8+o}")
            a(f"v_add_f32 v{G+16+o}, v{G+16+o}, v{G+24+o}")
        for o in (0, 2, 4, 6):
            a(f"v_add_f32 v{G+o}, v{G+o}, v{G+16+o}")
        a(f"v_cvt_pk_bf16_f32 v{G}, v{G}, v{G+2}")
        a(f"v_cvt_pk_bf16_f32 v{G+4}, v{G+4}, v{G+6}")
        a(f"ds_write_b32 v2, v{G} offset:{Q_LDS}")
        a(f"ds_write_b32 v2, v{G+4} offset:{Q_LDS+256}")
        if self.dbg:
            a(f"s_lshl_b32 s92, s2, 9")
            a(f"s_add_u32 s92, s92, {WS_DBG + 0x80000}")
            a(f"buffer_store_dword v{G}, v2, {srd(S_WS)}, s92 offen")
            a(f"buffer_store_dword v{G+4}, v2, {srd(S_WS)}, s92 offen offset:256")
        a("s_waitcnt lgkmcnt(0)")
        if self.qflag:
            a("v_mov_b32 v56, 0")
            a("v_mov_b32 v57, 1")
            a(f"ds_write_b32 v56, v57 offset:{QFL_LDS}")
            self.stamp(5)
        else:
            self.stamp(5)
            a("s_barrier")
        a("s_setprio 1")
        a(f"s_cmp_eq_u32 s{sCLS}, 0")
        a.branch("s_cbranch_scc0 L_sv_now")
        self.mk_srd(S_WU, 18, 576 * 4608 * 2)
        self.mk_srd(S_WD, 20, 4608 * 576 * 2)
        a(f"""
        v_mul_u32_u24 v56, 9216, v9
        v_add_u32 v56, v56, v10
        v_mul_u32_u24 v57, 1152, v9
        v_add_u32 v57, v57, v10
        s_lshl_b32 s92, s{sIDX}, 7
        s_add_u32 s92, s92, {3 * 144 * 9216}
        """)
        for t in range(18):
            a(f"buffer_load_dwordx4 {vr(self.GUq(t),4)}, v56, {srd(S_WU)}, s92 offen nt")
            if t < 17: a(f"s_add_u32 s92, s92, {8*9216}")
        a(f"s_mul_i32 s92, s{sIDX}, {64*1152}")
        a(f"s_add_u32 s92, s92, {7*128}")
        a(f"s_add_u32 s93, s92, 128")
        for t in range(8):
            a(f"buffer_load_dwordx4 {vr(self.WDq(t),4)}, v57, {srd(S_WD)}, s92 offen nt")
            a(f"buffer_load_dwordx4 {vr(self.WDXq(t),4)}, v57, {srd(S_WD)}, s93 offen nt")
            if t < 7:
                a(f"s_add_u32 s92, s92, {8*1152}")
                a(f"s_add_u32 s93, s93, {8*1152}")
        a.label("L_sv_now")
        a(f"""
        v_mov_b32 v44, -1
        v_mov_b32 v45, -1
        v_mov_b32 v46, -1
        v_mov_b32 v47, -1
        s_lshl_b32 s30, s2, 10
        s_add_u32 s30, s30, {WS_T1O}
        buffer_store_dwordx4 v[44:47], v8, {srd(S_WS)}, s30 offen sc1
        s_mov_b64 exec, 1
        s_lshl_b32 s30, s2, 4
        s_add_u32 s30, s30, {WS_T1ML}
        buffer_store_dwordx4 v[44:47], v8, {srd(S_WS)}, s30 offen sc1
        s_mov_b64 exec, -1
        s_cmp_eq_u32 s{sCLS}, 1
        s_cbranch_scc1 L_sv_clr_done
        s_cmp_eq_u32 s{sCLS}, 0
        s_cbranch_scc1 L_sv_clr_ffn
        s_mul_i32 s30, s{sG}, 2304
        s_lshl_b32 s92, s{sIDX}, 8
        s_add_u32 s30, s30, s92
        s_add_u32 s30, s30, {WS_T2}
        s_mov_b64 exec, 0xffff
        buffer_store_dwordx4 v[44:47], v8, {srd(S_WS)}, s30 offen sc1
        s_mov_b64 exec, -1
        s_branch L_sv_clr_done
        """)
        a.label("L_sv_clr_ffn")
        a(f"""
        s_mul_i32 s30, s{sIDX}, 2304
        s_add_u32 s30, s30, {WS_T3}
        buffer_store_dwordx4 v[44:47], v8, {srd(S_WS)}, s30 offen sc1
        buffer_store_dwordx4 v[44:47], v8, {srd(S_WS)}, s30 offen offset:1024 sc1
        s_mov_b64 exec, 0xffff
        buffer_store_dwordx4 v[44:47], v8, {srd(S_WS)}, s30 offen offset:2048 sc1
        s_mov_b64 exec, -1
        """)
        a.label("L_sv_clr_done")
        a(f"""
        s_waitcnt vmcnt(0)
        v_mov_b32 v44, s{sTAG}
        s_lshl_b32 s30, s2, 2
        s_add_u32 s30, s30, {WS_HELLO}
        v_mov_b32 v45, 0
        s_mov_b64 exec, 1
        buffer_store_dword v44, v45, {srd(S_WS)}, s30 offen sc1
        s_mov_b64 exec, -1
        """)
        self.mk_srd(S_WD, 20, 4608 * 576 * 2)
        self.mk_srd(S_OUT, 26, 1152)
        self.stamp(8)
        a(f"s_cmp_lg_u32 s{sCLS}, 1")
        a.branch("s_cbranch_scc1 L_broker")
        a(f"s_cmp_lt_u32 s{sIDX}, 36")
        a.branch("s_cbranch_scc0 L_broker")
        a(f"""
        v_and_b32 v56, 31, v0
        v_lshlrev_b32 v57, 3, v56
        v_lshlrev_b32 v56, 4, v56
        s_lshl_b32 s92, s{sIDX}, 9
        s_add_u32 s92, s92, {WS_P1 + 1152 * 8}
        s_add_u32 s93, s92, {P1S}
        s_add_u32 s94, s92, {2 * P1S}
        s_add_u32 s95, s92, {3 * P1S}
        """)
        self.poll_begin("L_p3bpoll")
        for k in range(4):
            a(f"buffer_load_dwordx4 {vr(64+4*k,4)}, v56, {srd(S_WS)}, s{92+k} offen sc1")
        a("s_waitcnt vmcnt(0)")
        self.tagcheck([64 + 2 * k + 1 for k in range(8)], 58, 59)
        self.poll_end("L_p3bpoll")
        a(f"""
        v_add_f32 v64, v64, v68
        v_add_f32 v72, v72, v76
        v_add_f32 v66, v66, v70
        v_add_f32 v74, v74, v78
        v_add_f32 v64, v64, v72
        v_add_f32 v66, v66, v74
        v_cvt_pk_bf16_f32 v64, v64, v66
        v_mov_b32 v65, s{sTAG}
        s_lshl_b32 s30, s{sIDX}, 8
        s_add_u32 s30, s30, {WS_P3}
        s_mov_b64 exec, 0xffffffff
        buffer_store_dwordx2 v[64:65], v57, {srd(S_WS)}, s30 offen sc1
        s_mov_b64 exec, -1
        """)
        self.stamp(12)
        a.branch("s_branch L_broker")
        self.broker()
        a(f"s_cmp_eq_u32 s{sCLS}, 1")
        a.branch("s_cbranch_scc1 L_sv_b1")
        a.label("L_sv_hello")
        a(f"s_mov_b32 s30, {WS_HELLO}")
        self.poll_begin("L_hpoll")
        a(f"buffer_load_dwordx4 v[48:51], v8, {srd(S_WS)}, s30 offen sc1")
        a("s_waitcnt vmcnt(0)")
        self.tagcheck([48, 49, 50, 51], 58, 59)
        self.poll_end("L_hpoll")
        a("v_mov_b32 v58, 0")
        a("v_mov_b32 v59, 1")
        a(f"ds_write_b32 v58, v59 offset:{HFL_LDS}")
        a.label("L_sv_b1")
        self.stamp(14)

    def pool_map(self, dst, p, t0):
        a = self.a
        a(f"""
        v_bfe_u32 v{dst}, v{p}, 2, 4
        v_lshlrev_b32 v{dst}, 19, v{dst}
        v_lshrrev_b32 v{t0}, 6, v{p}
        v_lshlrev_b32 v{t0}, 2, v{t0}
        v_and_or_b32 v{t0}, v{p}, 3, v{t0}
        v_add_u32 v{t0}, {self.NS}, v{t0}
        v_lshl_add_u32 v{dst}, v{t0}, 12, v{dst}
        v_or_b32 v{dst}, 1, v{dst}
        """)
        if self.retire:
            a(f"v_cmp_le_u32 vcc, {self.retire[1]}, v{p}")
            a(f"v_cndmask_b32 v{t0}, 0, 2, vcc")
            a(f"v_or_b32 v{dst}, v{dst}, v{t0}")

    def tab_init(self):
        a = self.a
        a("""
        v_mov_b32 v56, 0
        v_mov_b32 v57, 0
        v_mov_b32 v58, 0
        v_mov_b32 v59, 0
        """)
        n = (self.P + 64 + 255) // 256
        for k in range(n):
            a(f"ds_write_b128 v8, v[56:59] offset:{TAB_LDS + 1024 * k}")

    PBASE = 0x10000
    nb = False
    def broker2(self):
        a = self.a
        N, X, NS, P = self.BN, self.BX, self.NS, self.P
        PL = 16; sI = 53; sF = 54; BASE = self.PBASE
        a.label("L_broker")
        a(f"""
        s_mul_i32 s{sPOOL}, s{sG}, {self.pstride}
        s_add_u32 s{sPOOL}, s{sPOOL}, {WS_POOL}
        v_mov_b32 v57, 0
        v_mov_b32 v{PL}, {N}
        s_mov_b32 s{sREQ}, {NS - X}
        s_mov_b32 s{sFILL}, 0
        s_mov_b32 s{sI}, 0
        s_mov_b32 s{sF}, 0
        s_mov_b32 s{sQ2}, {P}
        s_cmp_eq_u32 s{sCLS}, 0
        s_cselect_b32 s{sQ2}, {min(self.QF, P)}, s{sQ2}
        s_cbranch_scc0 L_bk_nq3
        s_and_b32 s92, s{sIDX}, 7
        s_cmp_eq_u32 s92, 3
        s_cselect_b32 s{sQ2}, {min(self.QF3, P)}, s{sQ2}
        L_bk_nq3:
        s_waitcnt vmcnt(0)
        s_mov_b32 s{sCNT}, {SPIN * 8}
        """)
        sBETA = 55
        if self.qa:
            gf, bf, gf3, go, bo = self.qa
            a(f"""
            s_mov_b32 s{sQ2}, {go}
            s_mov_b32 s{sBETA}, {bo}
            s_cmp_eq_u32 s{sJ}, 15
            s_cselect_b32 s{sQ2}, {P}, s{sQ2}
            s_cmp_eq_u32 s{sCLS}, 0
            s_cbranch_scc0 L_bk_qa
            s_mov_b32 s{sQ2}, {gf}
            s_mov_b32 s{sBETA}, {bf}
            s_and_b32 s92, s{sIDX}, 7
            s_cmp_eq_u32 s92, 3
            s_cselect_b32 s{sQ2}, {gf3}, s{sQ2}
            L_bk_qa:
            """)
        def fill():
            a(f"v_readlane_b32 s92, v{PL}, s{sF}")
            a(f"s_sub_u32 s92, s92, {BASE}")
            a(f"s_min_u32 s92, s92, {P}")
            a(f"s_sub_u32 s93, {P}, s92")
            a(f"s_min_u32 s93, s93, {N}")
            a(f"v_add_u32 v59, s92, v0")
            self.pool_map(60, 59, 61)
            a(f"s_lshl_b32 s94, s{sFILL}, 2")
            a(f"v_add_u32 v59, s94, v2")
            a(f"v_cmp_gt_u32 vcc, s93, v0")
            a(f"s_and_b64 exec, vcc, -1")
            a(f"ds_write_b32 v59, v60 offset:{TAB_LDS}")
            a("s_mov_b64 exec, -1")
            a(f"s_add_u32 s{sFILL}, s{sFILL}, s93")
            if self.qa:
                a(f"s_mul_i32 s94, s93, s{sBETA}")
                a(f"s_add_u32 s{sQ2}, s{sQ2}, s94")
                a(f"s_min_u32 s{sQ2}, s{sQ2}, {P}")
            a(f"s_add_u32 s{sF}, s{sF}, 1")
            a(f"s_add_u32 s92, s92, {N}")
            a(f"s_cmp_ge_u32 s92, s{sQ2}")
        first = True
        a.label("L_bk_loop")
        a(f"ds_read_b32 v58, v57 offset:{CTR_LDS}")
        a(f"v_cmp_le_u32 vcc, {BASE}, v{PL}")
        a(f"s_cmp_lt_u32 s{sF}, s{sI}")
        a("s_cbranch_scc0 L_bk_nofill")
        a(f"s_bitcmp1_b64 vcc, s{sF}")
        a("s_cbranch_scc0 L_bk_nofill")
        fill()
        a.branch("s_cbranch_scc1 L_bk_drain")
        a.label("L_bk_nofill")
        a("s_waitcnt lgkmcnt(0)")
        a(f"v_readfirstlane_b32 s{sBC}, v58")
        a(f"s_cmp_gt_u32 s{sBC}, s{sREQ}")
        a("s_cbranch_scc0 L_bk_noreq")
        a(f"s_cmp_lt_u32 s{sI}, 64")
        a("s_cbranch_scc0 L_bk_wrap")
        a(f"s_lshl_b64 exec, 1, s{sI}")
        a(f"buffer_atomic_add v{PL}, v57, {srd(S_WS)}, s{sPOOL} offen {self.atom_flags}")
        a("s_mov_b64 exec, -1")
        a(f"s_add_u32 s{sREQ}, s{sREQ}, {N}")
        a(f"s_add_u32 s{sI}, s{sI}, 1")
        if self.stamps:
            a(f"s_cmp_eq_u32 s{sI}, 1")
            a("s_cbranch_scc0 L_bk_noreq")
            self.stamp(10)
        a.label("L_bk_noreq")
        a(f"s_sub_u32 s{sCNT}, s{sCNT}, 1")
        a(f"s_cmp_lg_u32 s{sCNT}, 0")
        a.branch("s_cbranch_scc1 L_bk_loop")
        a.branch("s_branch L_bk_drain")
        a.label("L_bk_wrap")
        a(f"s_cmp_eq_u32 s{sF}, 64")
        a("s_cbranch_scc0 L_bk_noreq")
        a(f"v_mov_b32 v{PL}, {N}")
        a(f"s_mov_b32 s{sI}, 0")
        a(f"s_mov_b32 s{sF}, 0")
        a.branch("s_branch L_bk_noreq")
        a.label("L_bk_drain")
        a("s_waitcnt vmcnt(0) lgkmcnt(0)")
        a.label("L_bk_dl")
        a(f"s_cmp_ge_u32 s{sF}, s{sI}")
        a("s_cbranch_scc1 L_bk_dd")
        fill()
        a.branch("s_branch L_bk_dl")
        a.label("L_bk_dd")
        a(f"""
        s_lshl_b32 s94, s{sFILL}, 2
        v_add_u32 v59, s94, v2
        v_mov_b32 v60, {STOP:#x}
        ds_write_b32 v59, v60 offset:{TAB_LDS}
        """)
        self.stamp(11)

    def broker(self):
        if self.nb: return self.broker2()
        a = self.a
        N, D, X, NS, P = self.BN, self.BD, self.BX, self.NS, self.P
        PL = 16
        a.label("L_broker")
        a(f"""
        s_mul_i32 s{sPOOL}, s{sG}, {self.pstride}
        s_add_u32 s{sPOOL}, s{sPOOL}, {WS_POOL}
        v_mov_b32 v57, 0
        s_mov_b32 s{sREQ}, {NS - X}
        s_mov_b32 s{sFILL}, 0
        s_mov_b32 s{sQ2}, {P}
        s_cmp_eq_u32 s{sCLS}, 0
        s_cselect_b32 s{sQ2}, {min(self.QF, P)}, s{sQ2}
        s_cbranch_scc0 L_bk_nq3
        s_and_b32 s92, s{sIDX}, 7
        s_cmp_eq_u32 s92, 3
        s_cselect_b32 s{sQ2}, {min(self.QF3, P)}, s{sQ2}
        L_bk_nq3:
        s_waitcnt vmcnt(0)
        """)
        def trig(name):
            a(f"s_mov_b32 s{sCNT}, {SPIN * 4}")
            a.label(name)
            a(f"ds_read_b32 v58, v57 offset:{CTR_LDS}")
            a("s_waitcnt lgkmcnt(0)")
            a(f"v_readfirstlane_b32 s{sBC}, v58")
            a(f"s_cmp_gt_u32 s{sBC}, s{sREQ}")
            a(f"s_cbranch_scc1 {name}_ok")
            a(f"s_sub_u32 s{sCNT}, s{sCNT}, 1")
            a(f"s_cmp_lg_u32 s{sCNT}, 0")
            a.branch(f"s_cbranch_scc1 {name}")
            a.label(name + "_ok")
        def req(d):
            a("s_mov_b64 exec, 1")
            a(f"v_mov_b32 v{PL+d}, {N}")
            a(f"buffer_atomic_add v{PL+d}, v57, {srd(S_WS)}, s{sPOOL} offen {self.atom_flags}")
            a("s_mov_b64 exec, -1")
            a(f"s_add_u32 s{sREQ}, s{sREQ}, {N}")
        def fill(d):
            a(f"v_readfirstlane_b32 s92, v{PL+d}")
            a(f"s_min_u32 s92, s92, {P}")
            a(f"s_sub_u32 s93, {P}, s92")
            a(f"s_min_u32 s93, s93, {N}")
            a(f"v_add_u32 v59, s92, v0")
            self.pool_map(60, 59, 61)
            a(f"s_lshl_b32 s94, s{sFILL}, 2")
            a(f"v_add_u32 v59, s94, v2")
            a(f"v_cmp_gt_u32 vcc, s93, v0")
            a(f"s_and_b64 exec, vcc, -1")
            a(f"ds_write_b32 v59, v60 offset:{TAB_LDS}")
            a("s_mov_b64 exec, -1")
            a(f"s_add_u32 s{sFILL}, s{sFILL}, s93")
            a(f"v_mov_b32 v{PL+d}, {P}")
            a(f"s_add_u32 s92, s92, {N}")
            a(f"s_cmp_ge_u32 s92, s{sQ2}")
        trig("L_bk_w0")
        self.stamp(10)
        for d in range(D - 1): req(d)
        a.label("L_bk_loop")
        for d in range(D):
            trig(f"L_bk_t{d}")
            req((d + D - 1) % D)
            a(f"s_waitcnt vmcnt({D - 1})")
            fill(d)
            a.branch("s_cbranch_scc1 L_bk_drain")
        a.branch("s_branch L_bk_loop")
        a.label("L_bk_drain")
        a("s_waitcnt vmcnt(0)")
        for d in range(D): fill(d)
        a(f"""
        s_lshl_b32 s94, s{sFILL}, 2
        v_add_u32 v59, s94, v2
        v_mov_b32 v60, {STOP:#x}
        ds_write_b32 v59, v60 offset:{TAB_LDS}
        """)
        self.stamp(11)

    def publish_f32(self, ACC, vaddr, _):
        a = self.a
        for r in range(4):
            a(f"v_mov_b32 v{240+2*r}, v{ACC+r}")
            a(f"v_mov_b32 v{241+2*r}, s{sTAG}")

    def publish_store(self, vaddr, soff):
        a = self.a
        a(f"""
        s_mov_b32 s30, 0x00ff00ff
        s_mov_b32 s31, 0
        s_mov_b64 exec, s[30:31]
        buffer_store_dwordx4 v[240:243], v{vaddr}, {srd(S_WS)}, {soff} offen sc1
        buffer_store_dwordx4 v[244:247], v{vaddr}, {srd(S_WS)}, {soff} offen offset:16 sc1
        s_mov_b64 exec, -1
        """)

    def tail_service(self):
        a = self.a
        PRL = [92, 124, 156, 188, 220, 252, 144]
        a(f"""
        s_setprio 3
        v_lshrrev_b32 v1, 5, v0
        v_lshlrev_b32 v1, 5, v1
        s_lshl_b32 s92, s2, 10
        s_add_u32 s92, s92, {WS_T1O}
        s_lshl_b32 s93, s2, 4
        s_add_u32 s93, s93, {WS_T1ML}
        v_lshrrev_b32 v2, 5, v0
        v_lshlrev_b32 v2, 3, v2
        v_mov_b32 v3, 0
        s_waitcnt vmcnt(0) lgkmcnt(0)
        s_cmp_eq_u32 s{sCLS}, 0
        s_cbranch_scc1 L_ts_arr
        s_barrier
        s_branch L_ts_go
        """)
        a.label("L_ts_arr")
        self.lds_spin("L_arr", ARR_LDS, 7, 3, 9, 30)
        a.label("L_ts_go")
        a(f"""
        ds_read_b128 v[16:19], v1 offset:{ML_LDS}
        ds_read_b128 v[20:23], v1 offset:{ML_LDS+16}
        ds_read_b128 v[24:27], v1 offset:{ML_LDS+64}
        ds_read_b128 v[28:31], v1 offset:{ML_LDS+80}
        """)
        for w in range(7):
            a(f"ds_read_b128 {vr(PRL[w],4)}, v8 offset:{PART_LDS+1024*w}")
        self.stamp(7)
        a("s_waitcnt lgkmcnt(9)")
        a("v_max3_f32 v32, v16, v17, v18")
        a("v_max3_f32 v32, v32, v19, v20")
        a("v_max3_f32 v32, v32, v21, v22")
        for w in range(7):
            a(f"v_sub_f32 v{16+w}, v{16+w}, v32")
        for w in range(7):
            a(f"v_exp_f32 v{16+w}, v{16+w}")
        a("s_waitcnt lgkmcnt(7)")
        a("v_mul_f32 v33, v16, v24")
        for w in range(1, 7):
            a(f"v_fmac_f32 v33, v{16+w}, v{24+w}")
        for w in range(7):
            a(f"s_waitcnt lgkmcnt({6-w})")
            for r in range(4):
                if w == 0:
                    a(f"v_mul_f32 v{36+r}, v16, v{PRL[0]+r}")
                else:
                    a(f"v_fmac_f32 v{36+r}, v{16+w}, v{PRL[w]+r}")
        a(f"buffer_store_dwordx4 v[36:39], v8, {srd(S_WS)}, s92 offen sc1")
        a(f"""
        s_mov_b32 s30, 1
        s_mov_b32 s31, 1
        s_mov_b64 exec, s[30:31]
        buffer_store_dwordx2 v[32:33], v2, {srd(S_WS)}, s93 offen sc1
        s_mov_b64 exec, -1
        """)
        self.stamp(15)
        if self.wobt:
            a(f"s_cmp_eq_u32 s{sCLS}, 2")
            a("s_cbranch_scc0 L_ts_nbt")
            a("s_barrier")
            a.branch("s_branch L_wo_mm")
            a.label("L_ts_nbt")
        a(f"s_cmp_eq_u32 s{sCLS}, 2")
        a.branch("s_cbranch_scc1 L_wo_mm")
        a(f"s_cmp_eq_u32 s{sCLS}, 1")
        a.branch("s_cbranch_scc1 L_fin")
        if self.npre is not None: a("s_barrier")
        self.ffn_addr()
        a.branch("s_branch L_ffn_post")

    def build(self):
        a = self.a
        self.prologue()
        self.streaming()
        self.wo_tail()
        self.ffn_tail()
        self.service()
        self.tail_service()
        a.label("L_end")
        a("s_endpgm")
        return a.text()


def main():
    ap = argparse.ArgumentParser()
    ap.add_argument("-o", default="main3.s")
    ap.add_argument("--R", type=int, default=6)
    ap.add_argument("--pace", type=int, default=4)
    ap.add_argument("--loopgrp", type=int, default=8)
    ap.add_argument("--prowait", type=int, default=2)
    ap.add_argument("--progrp", type=int, default=4)
    ap.add_argument("--dmawait", type=int, default=32)
    ap.add_argument("--NS", type=int, default=112)
    ap.add_argument("--QF", type=int, default=200)
    ap.add_argument("--S", type=int, default=1)
    ap.add_argument("--BN", type=int, default=4)
    ap.add_argument("--BD", type=int, default=4)
    ap.add_argument("--BX", type=int, default=16)
    ap.add_argument("--wdrain", type=int, default=0)
    ap.add_argument("--dist", type=int, default=0)
    ap.add_argument("--nb", action="store_true")
    ap.add_argument("--t1f", type=str, default="")
    ap.add_argument("--t2f", type=str, default="")
    ap.add_argument("--pkm", action="store_true")
    ap.add_argument("--qa", type=str, default="")
    ap.add_argument("--wobt", action="store_true")
    ap.add_argument("--t3bar", action="store_true")
    ap.add_argument("--t3k", type=int, default=0)
    ap.add_argument("--wlds", type=int, default=0)
    ap.add_argument("--dmaslot", type=int, default=5)
    ap.add_argument("--retire", type=str, default="")
    ap.add_argument("--pf", type=str, default=None)
    ap.add_argument("--pfn", type=str, default="4,5,7,13")
    ap.add_argument("--wpace", type=int, default=-1)
    ap.add_argument("--wpfirst", type=int, default=3)
    ap.add_argument("--fswap", action="store_true")
    ap.add_argument("--ppace", type=str, default="")
    ap.add_argument("--binitlate", action="store_true")
    ap.add_argument("--pdelay", type=str, default="")
    ap.add_argument("--npre", type=int, default=-1)
    ap.add_argument("--QF3", type=int, default=-1)
    ap.add_argument("--wodrain", type=int, default=0)
    ap.add_argument("--strip", action="store_true")
    ap.add_argument("--nobinit", action="store_true")
    ap.add_argument("--trace", action="store_true")
    ap.add_argument("--noqflag", action="store_true")
    ap.add_argument("--rot", action="store_true")
    ap.add_argument("--not2gate", action="store_true")
    ap.add_argument("--pstride", type=int, default=256)
    ap.add_argument("--aflags", type=str, default="sc0")
    ap.add_argument("--stamps", action="store_true")
    ap.add_argument("--dbg", action="store_true")
    ap.add_argument("--enc", action="store_true")
    args = ap.parse_args()
    assert args.NS - args.BX > 7 * args.R
    assert args.nb or args.BX >= (args.BD - 1) * args.BN
    assert args.pace + args.loopgrp <= 12 and args.prowait + args.progrp <= 12
    g = Gen(R=args.R, pace=args.pace, pro_wait=args.prowait, pro_grp=args.progrp, stamps=args.stamps, dbg=args.dbg,
            NS=args.NS, QF=args.QF, S=args.S, BN=args.BN, BD=args.BD, BX=args.BX, dma_wait=args.dmawait)
    g.loop_grp = args.loopgrp
    g.enc = args.enc; assert not (args.enc and args.stamps)
    g.strip = args.strip
    g.QF3 = args.QF3 if args.QF3 >= 0 else args.QF
    g.npre = args.npre if args.npre >= 0 else None
    assert g.npre is None or args.wlds or g.npre < 26 - 6 * args.wdrain
    g.pdelay = [int(x) for x in args.pdelay.split(",")] if args.pdelay else None
    g.binit_late = args.binitlate
    g.wdrain = args.wdrain; g.wodrain = args.wodrain
    g.dist = args.dist
    g.nb = args.nb
    g.t1f = tuple(int(x) for x in args.t1f.split(",")) if args.t1f else None
    g.t2f = tuple(int(x) for x in args.t2f.split(",")) if args.t2f else None
    g.pkm = args.pkm
    g.qa = tuple(int(x) for x in args.qa.split(",")) if args.qa else None
    g.wobt = args.wobt
    g.t3bar = args.t3bar
    g.t3k = args.t3k
    g.wlds = args.wlds; g.dma_slot = args.dmaslot
    lds_size = LDS_SIZE if not g.wlds else g.WL_LDS + 7 * 1024 * g.wlds
    assert lds_size <= 163840 and 1 <= g.dma_slot <= 5
    g.retire = tuple(int(x) for x in args.retire.split(",")) if args.retire else None
    if g.retire and len(g.retire) == 2: g.retire = g.retire + (0,)
    assert not g.retire or (args.dist and not args.wdrain and not args.wodrain)
    g.pf = None if args.pf is None else ("" if args.pf == "def" else args.pf)
    g.pfn = tuple(int(x) for x in args.pfn.split(","))
    g.wpace = args.wpace if args.wpace >= 0 else None
    g.wpace_first = args.wpfirst
    g.fswap = args.fswap
    g.ppace = [int(x) for x in args.ppace.split(",")] if args.ppace else None
    assert args.dist in (0, 1, 2, 3) and not (args.dist and (args.wdrain or args.wodrain))
    assert args.wdrain in (0, 1, 2, 3, 4) and args.wodrain in (0, 2, 4, 8) and args.R == 6
    g.binit = not args.nobinit
    g.trace = args.trace
    g.qflag = not args.noqflag
    assert g.binit or not g.qflag
    g.rot = args.rot
    g.t2gate = not args.not2gate
    g.pstride = args.pstride
    g.atom_flags = args.aflags
    body = g.build()
    nv = 64 + 32 * args.R
    txt = wrap_single(body, 256, 512, lds_size, max(nv, 256))
    open(args.o, "w").write(txt)
    print(f"wrote {args.o}: {len(txt)} bytes, lds {lds_size}, nops {g.a.nops_inserted}")

if __name__ == "__main__":
    main()
```
